```python
import torch

def _softmax(x, axis=-1):
    return torch.softmax(x, dim=axis)
def _gelu(x):
    return torch.nn.functional.gelu(x, approximate="tanh")
def _silu(x):
    return torch.nn.functional.silu(x)
def _sigmoid(x):
    return torch.sigmoid(x)
def _layernorm(x, axis=-1, eps=1e-5):
    m = x.mean(dim=axis, keepdim=True)
    v = x.var(dim=axis, keepdim=True, unbiased=False)
    return (x - m) / torch.sqrt(v + eps)
def _scatter_add(tgt, idx, src, axis=0):
    return tgt.clone().index_add_(axis, idx, src)
def _segment_sum(src, seg, n):
    out = torch.zeros((n,) + src.shape[1:], dtype=src.dtype)
    return out.index_add_(0, seg, src)
def _pad(x, pw):
    flat = tuple(v for pair in reversed(pw) for v in pair)
    return torch.nn.functional.pad(x, flat)

kernel_name = 'standalone__w4a16_gemm_dequant__prompt'

def setup_inputs():

    _w = (lambda a: (lambda t: t.to(torch.bfloat16) if t.is_floating_point() else t)(torch.as_tensor(a)))
    B, S, D, F = 1, 2048, 576, 4608
    G = 32 if 32 > 0 else D
    D = (D // G) * G
    ng = D // G
    qw = torch.randint(0, 16, (D, F)).to(torch.int32)
    return {
        "x": _w((lambda *s: torch.randn(*s, dtype=torch.bfloat16) * 0.05)(B, S, D)),
        "qw": _w(qw),
        "scales": _w(torch.abs((lambda *s: torch.randn(*s, dtype=torch.bfloat16) * 0.05)(ng, F)) + 0.01),
        "zeros": _w(torch.full((ng, F), 8.0, dtype=float)),
    }

def reference(x, qw, scales, zeros):
    B, S, D = x.shape
    ng, F = scales.shape
    G = D // ng
    s = (lambda x, n, axis: torch.repeat_interleave(x, n, dim=axis))(scales, G, axis=0)
    z = (lambda x, n, axis: torch.repeat_interleave(x, n, dim=axis))(zeros, G, axis=0)
    w = ((lambda x, dt: x.to(dt))(qw, x.dtype) - z) * s
    return x @ w
```

```python
import sys
NAME = "standalone__w4a16_gemm_dequant__prompt"
M, K, N = 2048, 576, 4608
out = []
def e(s): out.append("    " + s)
def lab(s): out.append(s + ":")

hdr = open("cdna_kernels/%s.s.ref" % NAME).read().split("\n")
head = [l for l in hdr if l.startswith(";") and "@launch" not in l and "Override" not in l and "grid=ceil" not in l]
NWG = 8 * 72
out += head
out.append("; @launch grid=(%d,1,1) block=(256,1,1) lds=0" % NWG)
out.append('.amdgcn_target "amdgcn-amd-amdhsa--gfx950"')
out.append(".text")
out.append(".globl %s_kernel" % NAME)
out.append(".p2align 8")
out.append(".type %s_kernel,@function" % NAME)
lab("%s_kernel" % NAME)
e("s_cmp_ge_u32 s2, %d" % NWG)
e("s_cbranch_scc1 L_done")
e("s_load_dwordx8 s[4:11], s[0:1], 0")
e("s_load_dwordx2 s[12:13], s[0:1], 32")
e("s_lshr_b32 s14, s2, 3")
e("s_and_b32 s15, s2, 7")
e("v_lshrrev_b32 v1, 6, v0")
e("v_and_b32 v2, 63, v0")
e("v_and_b32 v3, 15, v2")
e("v_lshrrev_b32 v4, 4, v2")
e("s_waitcnt lgkmcnt(0)")
def srd(d, b, nbytes):
    e("s_mov_b32 s%d, s%d" % (d, b))
    e("s_and_b32 s%d, s%d, 0xffff" % (d+1, b+1))
    e("s_mov_b32 s%d, %d" % (d+2, nbytes))
    e("s_mov_b32 s%d, 0x00020000" % (d+3))
srd(16, 4, M*K*2)
srd(20, 6, K*N*4)
srd(24, 8, 18*N*2)
srd(28, 10, 18*N*2)
srd(32, 12, M*N*2)
e("s_lshl_b32 s36, s15, 8")
e("v_lshlrev_b32 v5, 6, v1")
e("v_add_u32 v5, v5, v3")
e("v_add_u32 v5, s36, v5")
e("v_mul_u32_u24 v6, 1152, v5")
e("v_lshlrev_b32 v7, 4, v4")
e("v_add_u32 v6, v6, v7")
e("v_add_u32 v7, %d, v6" % (16*1152))
e("v_add_u32 v8, %d, v6" % (32*1152))
e("v_add_u32 v9, %d, v6" % (48*1152))
e("s_lshl_b32 s37, s14, 8")
e("v_mul_u32_u24 v10, %d, v4" % (8*18432))
e("v_lshlrev_b32 v11, 4, v3")
e("v_add_u32 v10, v10, v11")
e("v_add_u32 v10, s37, v10")
e("s_lshl_b32 s38, s14, 7")
e("v_lshlrev_b32 v11, 3, v3")
e("v_add_u32 v11, s38, v11")
e("v_mul_u32_u24 v12, 9216, v5")
e("v_lshlrev_b32 v13, 5, v4")
e("v_add_u32 v12, v12, v13")
e("v_add_u32 v12, s38, v12")
ACC = 128
for r in range(64): e("v_mov_b32 v%d, 0" % (ACC + r))
e("s_mov_b32 s40, 0")
e("s_mov_b32 s41, 0")
e("s_mov_b32 s42, 0")
e("s_mov_b32 s43, 0")
lab("L_k")
X = 16
Q = 32
S = 64
SF = 68
W = 80
e("buffer_load_dwordx2 v[%d:%d], v11, s[24:27], s42 offen" % (S, S+1))
e("buffer_load_dwordx2 v[%d:%d], v11, s[28:31], s42 offen" % (S+2, S+3))
for j in range(8):
    e("s_add_u32 s44, s41, %d" % (j*18432))
    e("buffer_load_dwordx4 v[%d:%d], v10, s[20:23], s44 offen" % (Q+4*j, Q+4*j+3))
for mb in range(4):
    e("buffer_load_dwordx4 v[%d:%d], v%d, s[16:19], s40 offen" % (X+4*mb, X+4*mb+3, 6+mb))
e("s_waitcnt vmcnt(12)")
e("v_lshlrev_b32 v%d, 16, v%d" % (SF, S))
e("v_and_b32 v%d, 0xffff0000, v%d" % (SF+1, S))
e("v_lshlrev_b32 v%d, 16, v%d" % (SF+2, S+1))
e("v_and_b32 v%d, 0xffff0000, v%d" % (SF+3, S+1))
e("v_lshlrev_b32 v%d, 16, v%d" % (SF+4, S+2))
e("v_and_b32 v%d, 0xffff0000, v%d" % (SF+5, S+2))
e("v_lshlrev_b32 v%d, 16, v%d" % (SF+6, S+3))
e("v_and_b32 v%d, 0xffff0000, v%d" % (SF+7, S+3))
for c in range(4):
    e("v_mul_f32 v%d, -v%d, v%d" % (SF+4+c, SF+4+c, SF+c))
e("s_waitcnt vmcnt(4)")
for j in range(8):
    for c in range(4):
        e("v_cvt_f32_i32 v%d, v%d" % (Q+4*j+c, Q+4*j+c))
for j in range(8):
    for c in range(4):
        e("v_fma_f32 v%d, v%d, v%d, v%d" % (Q+4*j+c, Q+4*j+c, SF+c, SF+4+c))
for c in range(4):
    for jj in range(4):
        e("v_cvt_pk_bf16_f32 v%d, v%d, v%d" % (W+4*c+jj, Q+4*(2*jj)+c, Q+4*(2*jj+1)+c))
e("s_waitcnt vmcnt(0)")
e("s_nop 1")
for mb in range(4):
    for c in range(4):
        a = ACC + (mb*4+c)*4
        e("v_mfma_f32_16x16x32_bf16 v[%d:%d], v[%d:%d], v[%d:%d], v[%d:%d]" % (a, a+3, W+4*c, W+4*c+3, X+4*mb, X+4*mb+3, a, a+3))
e("s_add_u32 s40, s40, 64")
e("s_add_u32 s41, s41, %d" % (32*18432))
e("s_add_u32 s42, s42, 9216")
e("s_add_u32 s43, s43, 1")
e("s_cmp_lt_u32 s43, 18")
e("s_cbranch_scc1 L_k")
e("s_nop 7")
e("s_nop 7")
for mb in range(4):
    P = 16 + mb*8
    for r in range(4):
        for cc in range(2):
            a0 = ACC + (mb*4 + 2*cc)*4 + r
            a1 = ACC + (mb*4 + 2*cc+1)*4 + r
            e("v_cvt_pk_bf16_f32 v%d, v%d, v%d" % (P + r*2 + cc, a0, a1))
    e("s_mov_b32 s44, %d" % (mb*16*9216))
    e("buffer_store_dwordx4 v[%d:%d], v12, s[32:35], s44 offen" % (P, P+3))
    e("buffer_store_dwordx4 v[%d:%d], v12, s[32:35], s44 offen offset:16" % (P+4, P+7))
lab("L_done")
e("s_endpgm")
out.append('.section .rodata,"a"')
out.append(".p2align 6")
out.append(".amdhsa_kernel %s_kernel" % NAME)
out.append("  .amdhsa_next_free_vgpr 192")
out.append("  .amdhsa_next_free_sgpr 64")
out.append("  .amdhsa_accum_offset 192")
out.append("  .amdhsa_group_segment_fixed_size 0")
out.append("  .amdhsa_kernarg_size 56")
out.append("  .amdhsa_user_sgpr_count 2")
out.append("  .amdhsa_user_sgpr_kernarg_segment_ptr 1")
out.append("  .amdhsa_system_sgpr_workgroup_id_x 1")
out.append(".end_amdhsa_kernel")
open(sys.argv[1], "w").write("\n".join(out) + "\n")
```

```python
NAME = "standalone__w4a16_gemm_dequant__prompt"
M, K, N = 2048, 576, 4608
class Asm:
    def __init__(self):
        self.out = []
    def e(self, s): self.out.append("    " + s)
    def lab(self, s): self.out.append(s + ":")
    def raw(self, s): self.out.append(s)
    def header(self, launches):
        hdr = open("cdna_kernels/%s.s.ref" % NAME).read().split("\n")
        head = [l for l in hdr if l.startswith(";") and "@launch" not in l and "Override" not in l and "grid=ceil" not in l]
        self.out += head
        for l in launches: self.out.append(l)
        self.raw('.amdgcn_target "amdgcn-amd-amdhsa--gfx950"')
        self.raw(".text")
    def kernel_start(self, name):
        self.raw(".globl %s" % name)
        self.raw(".p2align 8")
        self.raw(".type %s,@function" % name)
        self.lab(name)
    def descriptor(self, name, vgpr, sgpr, accum, extra=()):
        self.raw('.section .rodata,"a"')
        self.raw(".p2align 6")
        self.raw(".amdhsa_kernel %s" % name)
        self.raw("  .amdhsa_next_free_vgpr %d" % vgpr)
        self.raw("  .amdhsa_next_free_sgpr %d" % sgpr)
        self.raw("  .amdhsa_accum_offset %d" % accum)
        self.raw("  .amdhsa_group_segment_fixed_size 0")
        self.raw("  .amdhsa_kernarg_size 56")
        self.raw("  .amdhsa_user_sgpr_count 2")
        self.raw("  .amdhsa_user_sgpr_kernarg_segment_ptr 1")
        self.raw("  .amdhsa_system_sgpr_workgroup_id_x 1")
        for x in extra: self.raw("  " + x)
        self.raw(".end_amdhsa_kernel")
    def srd(self, d, b, nbytes):
        self.e("s_mov_b32 s%d, s%d" % (d, b))
        self.e("s_and_b32 s%d, s%d, 0xffff" % (d+1, b+1))
        self.e("s_mov_b32 s%d, %d" % (d+2, nbytes))
        self.e("s_mov_b32 s%d, 0x00020000" % (d+3))
    def write(self, path):
        open(path, "w").write("\n".join(self.out) + "\n")
    def stamp(self, i, base=70):
        self.e("s_memrealtime s[%d:%d]" % (base+2*i, base+2*i+1))
    def dump_stamps(self, n, ws_srd, base=70, vtmp=0, wg="s2"):
        e = self.e
        e("s_waitcnt lgkmcnt(0)")
        e("v_cmp_eq_u32 vcc, 0, v%d" % vtmp)
        e("s_and_saveexec_b64 s[96:97], vcc")
        e("s_cbranch_execz L_nostamp")
        e("s_lshl_b32 s98, %s, 7" % wg)
        e("s_add_u32 s98, s98, %d" % (255 << 20))
        e("v_mov_b32 v%d, 0" % (vtmp+1))
        for i in range(n):
            e("v_mov_b32 v%d, s%d" % (vtmp+2, base+2*i))
            e("v_mov_b32 v%d, s%d" % (vtmp+3, base+2*i+1))
            e("buffer_store_dwordx2 v[%d:%d], v%d, s[%d:%d], s98 offen offset:%d" % (vtmp+2, vtmp+3, vtmp+1, ws_srd, ws_srd+3, 8*i))
            e("s_nop 2")
        self.lab("L_nostamp")
        e("s_mov_b64 exec, s[96:97]")
```

```python
import sys
from asmlib import *

V_TID, V_Q, V_XD, V_OUT, V_WR, V_WA0, V_WA1, V_TAB = 0, 1, 2, 3, 4, 5, 6, 7
V_X = 8
V_T0, V_T1 = 14, 15
V_XF = 16
V_S, V_NZ, V_PK = 32, 36, 40
V_D, V_E, V_O = 48, 52, 56
V_A1 = 60
V_W = 112
S_X, S_Q, S_S, S_Z, S_O, S_WS = 16, 20, 24, 28, 32, 36
S_P = 40
S_BASE, S_END, S_SPAN, S_B1, S_B2, S_WL, S_W3L, S_NB, S_W = 50, 51, 52, 53, 54, 55, 56, 57, 58
S_T, S_U, S_D1, S_D2, S_QO = 59, 60, 61, 64, 65
S_M8, S_M8N, S_M4, S_M4N = 62, 66, 68, 94
S_INV = 49

class Prog:
    def __init__(self, a):
        self.a = a; self.vm = []; self.lg = []; self.vmdone = 0; self.lgdone = 0; self.n = 0
        self.lastmf = {}
    def e(self, s):
        self.a.e(s); self.n += 1
    def vmem(self, s, tag): self.e(s); self.vm.append(tag)
    def lds(self, s, tag): self.e(s); self.lg.append(tag)
    def _cnt(self, lst, done, pred):
        idx = -1
        for i in range(len(lst)-1, done-1, -1):
            if pred(lst[i]): idx = i; break
        return idx
    def wait(self, vm=None, lg=None, lg0=False):
        parts = []
        if vm is not None:
            idx = self._cnt(self.vm, self.vmdone, vm)
            if idx >= 0:
                n = len(self.vm)-1-idx
                parts.append("vmcnt(%d)" % min(n, 63)); self.vmdone = len(self.vm) - min(n, 63)
        if lg0:
            if self.lgdone < len(self.lg) or lg0 == 2:
                parts.append("lgkmcnt(0)"); self.lgdone = len(self.lg)
        elif lg is not None:
            idx = self._cnt(self.lg, self.lgdone, lg)
            if idx >= 0:
                n = len(self.lg)-1-idx
                parts.append("lgkmcnt(%d)" % min(n, 15)); self.lgdone = len(self.lg) - min(n, 15)
        if parts: self.e("s_waitcnt " + " ".join(parts))
    def mfma(self, d, x, w, first):
        c = "0" if first else "v[%d:%d]" % (d, d+3)
        self.e("v_mfma_f32_16x16x32_bf16 v[%d:%d], v[%d:%d], v[%d:%d], %s" % (d, d+3, x, x+3, w, w+3, c))
        self.lastmf[d] = self.n
    def need_mfma_done(self, d):
        if d in self.lastmf:
            gap = self.n - self.lastmf[d]
            if gap < 8: self.e("s_nop %d" % (8-gap-1))

def build(path, b1=8, D=3, spol="nt", stamps=0, krot=1, rrot=4, dq0=99, dq1=99, cap=9, early=2, st1=1, prio=0, pf=3):
    global S_M8, S_M8N, S_M4, S_M4N
    S_M8, S_M8N, S_M4, S_M4N = 90, 92, 94, 96
    a = Asm(); e = a.e
    KN = NAME + "_kernel"
    a.header(["; @launch grid=(256,1,1) block=(512,1,1) lds=%d" % (160*1024)])
    a.kernel_start(KN)
    if stamps: a.stamp(0)
    e("s_cmp_ge_u32 s2, 256"); e("s_cbranch_scc1 L_done")
    e("s_load_dwordx8 s[4:11], s[0:1], 0")
    e("s_load_dwordx2 s[12:13], s[0:1], 32")
    if stamps: e("s_load_dwordx2 s[14:15], s[0:1], 48")
    e("s_and_b32 s3, s2, 1"); e("s_lshl_b32 s3, s3, 5"); e("s_lshr_b32 s98, s2, 3"); e("s_add_u32 s3, s3, s98")
    e("s_cmp_eq_u32 s3, 63"); e("s_cbranch_scc1 L_done")
    e("v_lshrrev_b32 v1, 6, v0")
    e("s_mul_i32 s98, s3, 37"); e("s_lshr_b32 s98, s98, 8")
    e("v_readfirstlane_b32 s%d, v1" % S_W)
    e("s_mul_i32 s99, s98, 7"); e("s_sub_u32 s99, s3, s99")
    e("s_bfe_u32 s3, s2, 0x20001"); e("s_mul_i32 s3, s3, 9"); e("s_add_u32 s3, s3, s98")
    e("s_cmp_lt_u32 s99, 2"); e("s_cselect_b32 s%d, 19, 18" % S_NB)
    e("s_min_u32 s100, s99, 2"); e("s_mul_i32 s101, s99, 18"); e("s_add_u32 s100, s100, s101")
    e("s_add_u32 s101, s100, s%d" % S_NB); e("s_mul_i32 s%d, s101, 18432" % S_END)
    e("s_mul_i32 s%d, s%d, 18432" % (S_SPAN, S_NB))
    if rrot:
        e("s_sub_u32 s101, s98, 5"); e("s_cmp_ge_u32 s98, 5"); e("s_cselect_b32 s101, s101, s98"); e("s_mul_i32 s101, s101, %d" % rrot)
        e("s_add_u32 s100, s100, s101")
    e("s_mul_i32 s%d, s100, 18432" % S_BASE)
    if krot:
        e("s_lshl_b32 s101, s98, 1"); e("s_add_u32 s101, s101, s99")
        for _ in range(2):
            e("s_sub_u32 s100, s101, 9"); e("s_cmp_ge_u32 s101, 9"); e("s_cselect_b32 s101, s100, s101")
    else:
        e("s_mov_b32 s101, 0")
    for t in range(9):
        e("s_add_u32 s100, s101, %d" % t); e("s_cmp_ge_u32 s100, 9"); e("s_cselect_b32 s99, 9, 0"); e("s_sub_u32 s100, s100, s99")
        e("s_lshl_b32 s%d, s100, 7" % (S_P+t))
    L, I, G = 20, 21, 22
    e("v_and_b32 v%d, 63, v0" % L); e("v_and_b32 v%d, 15, v0" % I); e("v_bfe_u32 v%d, v0, 4, 2" % G)
    e("s_and_b32 s98, s%d, 1" % S_W)
    e("s_bfe_u32 s99, s%d, 0x10001" % S_W)
    e("s_lshr_b32 s100, s%d, 2" % S_W)
    e("s_lshl_b32 s%d, s100, 5" % S_T); e("s_lshl_b32 s%d, s99, 2" % S_U); e("s_add_u32 s%d, s%d, s%d" % (S_T, S_T, S_U)); e("s_mul_i32 s%d, s%d, 18432" % (S_T, S_T))
    e("s_lshl_b32 s%d, s3, 9" % S_U); e("s_add_u32 s%d, s%d, s%d" % (S_T, S_T, S_U)); e("s_lshl_b32 s%d, s98, 8" % S_U); e("s_add_u32 s%d, s%d, s%d" % (S_T, S_T, S_U))
    e("v_mul_u32_u24 v%d, %d, v%d" % (V_Q, 8*18432, G)); e("v_lshl_add_u32 v%d, v%d, 4, v%d" % (V_Q, I, V_Q)); e("v_add_u32 v%d, s%d, v%d" % (V_Q, S_T, V_Q))
    e("s_lshl_b32 s%d, s98, 2" % S_T); e("v_add_u32 v23, s%d, v%d" % (S_T, G)); e("v_and_b32 v24, 7, v%d" % L); e("v_xor_b32 v23, v23, v24")
    e("v_lshrrev_b32 v24, 3, v%d" % L); e("v_mul_u32_u24 v24, 1152, v24"); e("v_lshl_add_u32 v%d, v23, 4, v24" % V_XD)
    e("s_mul_i32 s%d, s98, 9216" % S_T); e("v_add_u32 v%d, s%d, v%d" % (V_XD, S_T, V_XD))
    e("s_lshr_b32 s%d, s%d, 1" % (S_T, S_W)); e("s_mul_i32 s%d, s%d, 18432" % (S_T, S_T)); e("s_add_u32 s%d, s%d, s%d" % (S_B1, S_BASE, S_T))
    e("s_mul_i32 s%d, s99, 18432" % S_T); e("s_add_u32 s%d, s%d, s%d" % (S_B2, S_BASE, S_T))
    e("s_lshl_b32 s%d, s%d, 10" % (S_WL, S_W)); e("s_and_b32 s%d, s%d, 0xc00" % (S_W3L, S_WL))
    e("v_lshrrev_b32 v23, 5, v0"); e("v_add_u32 v23, s101, v23"); e("v_subrev_u32 v24, 9, v23"); e("v_min_u32 v23, v23, v24")
    e("v_and_b32 v24, 1, v%d" % G); e("v_lshl_add_u32 v23, v23, 1, v24"); e("v_mul_u32_u24 v23, 9216, v23")
    e("v_lshl_add_u32 v23, v%d, 4, v23" % I); e("s_lshl_b32 s%d, s3, 8" % S_T); e("v_add_u32 v%d, s%d, v23" % (V_T0, S_T))
    e("s_waitcnt lgkmcnt(0)")
    a.srd(S_S, 8, 18*N*2); a.srd(S_Z, 10, 18*N*2); a.srd(S_Q, 6, K*N*4); a.srd(S_X, 4, M*K*2); a.srd(S_O, 12, M*N*2)
    if stamps:
        e("s_mov_b32 s36, s14"); e("s_and_b32 s37, s15, 0xffff"); e("s_mov_b32 s38, 0x10000000"); e("s_mov_b32 s39, 0x00020000")
    e("s_cmp_lg_u32 s100, 0"); e("s_cbranch_scc1 L_rh1")

    TAB = 0
    WS = [5*4096, 9*4096]
    g1 = (b1 + 1)//2
    X1G = [13 + s*g1 for s in range(D+1)]
    used = 13 + (D+1)*g1
    assert used <= 40
    nrem = 19 - b1
    nit = (nrem+1)//2
    half_last = (nrem % 2 == 1)
    free_at = {g: -99 for g in range(used, 40)}
    for g in range(0, 5): free_at[g] = 8
    for g in range(5, 9): free_at[g] = 9
    for g in range(9, 13): free_at[g] = 8
    for t in range(9-(D+1), 9):
        for g in range(g1): free_at[X1G[t % (D+1)] + g] = t+1
    x2 = {}
    pend = [(it, t) for it in range(nit) for t in range(9)]
    ep = 9 - D
    while pend:
        n = 0
        while pend and n < cap:
            cands = sorted(g for g in free_at if free_at[g] <= ep)
            if not cands: break
            g = cands[0]; it, t = pend.pop(0)
            x2[(it, t)] = (g, ep); free_at[g] = 10 + it; n += 1
        ep += 1
    guar = {it: (9 + it if it < early else 9 + it - 1) for it in range(nit)}
    for (it, t), (g, ep_) in x2.items(): assert ep_ < guar[it], (it, t, ep_, guar[it])
    if half_last: assert guar[nit-1] < 9 + nit-1
    if stamps: sys.stderr.write("x2 issue epochs: %s\n" % [sorted(set(x2[(it, t)][1] for t in range(9))) for it in range(nit)])

    def xaddr(off, e_):
        win = off >> 16
        return V_X + 2*win + e_, off & 0xffff

    for rh in range(2):
        p = Prog(a); pe = p.e
        if rh: a.lab("L_rh1")
        if prio and rh == 1: pe("s_setprio %d" % prio)
        myb = [i for i in range(b1) if i % 2 == rh]
        nk = [k for k in range(4) if any(((w >> 1) + 4*k) < b1 for w in range(4*rh, 4*rh+4))]
        def wrap(dst, src, add):
            pe("s_add_u32 s%d, s%d, %d" % (dst, src, add)); pe("s_cmp_ge_u32 s%d, s%d" % (dst, S_END))
            pe("s_cselect_b32 s%d, s%d, 0" % (S_U, S_SPAN)); pe("s_sub_u32 s%d, s%d, s%d" % (dst, dst, S_U))
        if rh == 0:
            p.vmem("buffer_load_dwordx4 v[24:27], v%d, s[%d:%d], 0 offen" % (V_T0, S_S, S_S+3), "tab")
            p.vmem("buffer_load_dwordx4 v[28:31], v%d, s[%d:%d], 0 offen" % (V_T0, S_Z, S_Z+3), "tab")
        else:
            pe("v_mov_b32 v%d, 0x7fffffff" % V_T1); pe("v_cmp_gt_u32 vcc, 288, v0"); pe("s_nop 1"); pe("v_cndmask_b32 v%d, v%d, v%d, vcc" % (V_T0, V_T1, V_T0))
            p.vmem("buffer_load_dwordx4 v[24:27], v%d, s[%d:%d], 0 offen" % (V_T0, S_S, S_S+3), "tab")
            p.vmem("buffer_load_dwordx4 v[28:31], v%d, s[%d:%d], 0 offen" % (V_T0, S_Z, S_Z+3), "tab")
        for k in nk:
            wrap(S_D1+k, S_B1, 4*k*18432)
            if any(((w >> 1) + 4*k) >= b1 for w in range(4*rh, 4*rh+4)):
                pe("s_lshr_b32 s%d, s%d, 1" % (S_T, S_W)); pe("s_cmp_ge_u32 s%d, %d" % (S_T, b1-4*k)); pe("s_cselect_b32 s%d, 0x40000000, s%d" % (S_D1+k, S_D1+k))
        def q_loads(t):
            ops = []
            for j in range(4):
                def f(j=j):
                    if j == 0: pe("s_mul_i32 s%d, s%d, 9216" % (S_QO, S_P+t))
                    else: pe("s_add_u32 s%d, s%d, 18432" % (S_QO, S_QO))
                    r = V_W + 16*t + 4*j
                    p.vmem("buffer_load_dwordx4 v[%d:%d], v%d, s[%d:%d], s%d offen" % (r, r+3, V_Q, S_Q, S_Q+3, S_QO), ("q", t))
                ops.append(f)
            return ops
        def x1_loads(t):
            ops = []
            for k in nk:
                def f(k=k):
                    pe("s_add_u32 m0, s%d, %d" % (S_WL, X1G[t % (D+1)]*4096 + k*8192))
                    pe("s_add_u32 s%d, s%d, s%d" % (S_T, S_D1+k, S_P+t))
                    p.vmem("buffer_load_dwordx4 v%d, s[%d:%d], s%d offen lds" % (V_XD, S_X, S_X+3, S_T), ("x1", t))
                ops.append(f)
            return ops
        cur2 = [None]
        def x2_loads(ep):
            ops = []
            lst = sorted(k for k in x2 if x2[k][1] == ep)
            for (it, t) in lst:
                if (it + t) % 2 != rh: continue
                def f(it=it, t=t):
                    if cur2[0] != it:
                        cur2[0] = it
                        wrap(S_D2, S_B2, (b1 + 2*it)*18432)
                        if it == nit-1:
                            pe("s_bfe_u32 s%d, s%d, 0x10001" % (S_T, S_W)); pe("s_add_u32 s%d, s%d, %d" % (S_T, S_T, b1+2*it))
                            pe("s_cmp_ge_u32 s%d, s%d" % (S_T, S_NB)); pe("s_cselect_b32 s%d, 0x40000000, s%d" % (S_D2, S_D2))
                    pe("s_add_u32 m0, s%d, %d" % (S_W3L, x2[(it, t)][0]*4096))
                    pe("s_add_u32 s%d, s%d, s%d" % (S_T, S_D2, S_P+t))
                    p.vmem("buffer_load_dwordx4 v%d, s[%d:%d], s%d offen lds" % (V_XD, S_X, S_X+3, S_T), ("x2", it))
                ops.append(f)
            return ops
        for t in range(D):
            for f in q_loads(t) + x1_loads(t): f()
        if stamps: a.stamp(1)
        L, I, G = 20, 21, 22
        pe("v_lshrrev_b32 v16, 2, v%d" % L); pe("v_mul_u32_u24 v16, 9216, v16"); pe("v_and_b32 v17, 3, v%d" % L); pe("v_lshl_add_u32 v16, v17, 4, v16")
        pe("s_lshr_b32 s%d, s%d, 4" % (S_T, S_W3L)); pe("s_lshl_b32 s%d, s3, 8" % S_U); pe("s_add_u32 s%d, s%d, s%d" % (S_T, S_T, S_U)); pe("v_add_u32 v%d, s%d, v16" % (V_OUT, S_T))
        pe("v_bfe_u32 v16, v%d, 2, 1" % I); pe("v_and_b32 v17, 3, v%d" % I); pe("v_lshlrev_b32 v17, 1, v17"); pe("v_lshrrev_b32 v18, 3, v%d" % I); pe("v_add_u32 v17, v17, v18")
        pe("s_lshl_b32 s%d, s98, 3" % S_T); pe("v_add_u32 v17, s%d, v17" % S_T); pe("v_lshlrev_b32 v18, 3, v16"); pe("v_xor_b32 v17, v17, v18")
        pe("v_lshlrev_b32 v17, 4, v17"); pe("v_lshl_add_u32 v17, v16, 11, v17"); pe("v_lshl_add_u32 v17, v%d, 8, v17" % G)
        pe("s_lshl_b32 s%d, s99, 12" % S_T); pe("v_add_u32 v%d, s%d, v17" % (V_WR, S_T))
        pe("s_lshl_b32 s%d, s98, 12" % S_T); pe("s_lshl_b32 s%d, s99, 3" % S_U); pe("s_add_u32 s%d, s%d, s%d" % (S_T, S_T, S_U)); pe("s_add_u32 s%d, s%d, %d" % (S_T, S_T, rh*8192))
        pe("v_lshlrev_b32 v16, 4, v%d" % L); pe("v_add_u32 v%d, s%d, v16" % (V_WA0, S_T)); pe("v_xor_b32 v%d, 128, v%d" % (V_WA1, V_WA0))
        pe("s_lshl_b32 s%d, s98, 8" % S_T); pe("s_add_u32 s%d, s%d, %d" % (S_T, S_T, rh*1024 + TAB)); pe("v_lshlrev_b32 v16, 4, v%d" % I); pe("v_add_u32 v%d, s%d, v16" % (V_TAB, S_T))
        pe("v_lshrrev_b32 v16, 1, v%d" % I); pe("v_xor_b32 v16, v16, v%d" % G); pe("v_lshlrev_b32 v16, 4, v16"); pe("v_lshl_add_u32 v%d, v%d, 7, v16" % (V_X, I))
        pe("v_xor_b32 v%d, 64, v%d" % (V_X+1, V_X))
        for w_ in (1, 2):
            pe("v_add_u32 v%d, %d, v%d" % (V_X+2*w_, w_ << 16, V_X)); pe("v_add_u32 v%d, %d, v%d" % (V_X+2*w_+1, w_ << 16, V_X+1))
        pe("v_lshrrev_b32 v16, 4, v0"); pe("v_lshlrev_b32 v16, 10, v16"); pe("v_lshl_add_u32 v%d, v%d, 5, v16" % (V_T1, I))
        pe("s_mov_b32 s%d, 0x00ff00ff" % S_M8); pe("s_mov_b32 s%d, 0x00ff00ff" % (S_M8+1)); pe("s_not_b64 s[%d:%d], s[%d:%d]" % (S_M8N, S_M8N+1, S_M8, S_M8+1))
        pe("s_mov_b32 s%d, 0x0f0f0f0f" % S_M4); pe("s_mov_b32 s%d, 0x0f0f0f0f" % (S_M4+1)); pe("s_not_b64 s[%d:%d], s[%d:%d]" % (S_M4N, S_M4N+1, S_M4, S_M4+1))
        if rh == 1:
            pe("s_cmp_lg_u32 s%d, 4" % S_W); pe("s_cbranch_scc1 L_notab")
            pe("s_mov_b32 exec_hi, 0")
        sv = (p.vmdone,)
        p.wait(vm=lambda x: x == "tab")
        for c in range(4):
            pe("v_lshlrev_b32 v%d, 16, v%d" % (32+2*c, 24+c)); pe("v_and_b32 v%d, 0xffff0000, v%d" % (33+2*c, 24+c))
            pe("v_lshlrev_b32 v%d, 16, v%d" % (40+2*c, 28+c)); pe("v_and_b32 v%d, 0xffff0000, v%d" % (41+2*c, 28+c))
        for c in range(8): pe("v_mul_f32 v%d, -v%d, v%d" % (40+c, 40+c, 32+c))
        pe("ds_write_b128 v%d, v[32:35] offset:%d" % (V_T1, TAB)); pe("ds_write_b128 v%d, v[36:39] offset:%d" % (V_T1, TAB+16))
        pe("ds_write_b128 v%d, v[40:43] offset:%d" % (V_T1, TAB+512)); pe("ds_write_b128 v%d, v[44:47] offset:%d" % (V_T1, TAB+528))
        pe("s_waitcnt lgkmcnt(0)")
        if rh == 1:
            pe("s_mov_b32 exec_hi, -1")
            a.lab("L_notab")
            p.vmdone = sv[0]
        pe("s_barrier")
        def tab_reads(t):
            p.lds("ds_read_b128 v[%d:%d], v%d offset:%d" % (V_S, V_S+3, V_TAB, t*2048), ("t", t))
            p.lds("ds_read_b128 v[%d:%d], v%d offset:%d" % (V_NZ, V_NZ+3, V_TAB, t*2048+512), ("t", t))
        def dequant(t):
            R = V_W + 16*t
            ops = []
            ops.append(lambda: p.wait(vm=lambda x: x == ("q", t)))
            for x in range(16): ops.append(lambda x=x: pe("v_cvt_f32_i32 v%d, v%d" % (R+x, R+x)))
            ops.append(lambda: p.wait(lg=lambda x: x == ("t", t)))
            for x in range(16): ops.append(lambda x=x: pe("v_fma_f32 v%d, v%d, v%d, v%d" % (R+x, R+x, V_S+(x & 3), V_NZ+(x & 3))))
            for c in range(4):
                ops.append(lambda c=c: pe("v_cvt_pk_bf16_f32 v%d, v%d, v%d" % (V_PK+2*c, R+c, R+4+c)))
                ops.append(lambda c=c: pe("v_cvt_pk_bf16_f32 v%d, v%d, v%d" % (V_PK+2*c+1, R+8+c, R+12+c)))
                ops.append(lambda c=c: p.lds("ds_write_b64 v%d, v[%d:%d] offset:%d" % (V_WA0 if c < 2 else V_WA1, V_PK+2*c, V_PK+2*c+1, WS[t % 2] + c*1024), ("w", t)))
            return ops
        def guarantees(ep):
            need = [("x1", ep)] + [("x2", it) for it in range(nit) if guar[it] == ep]
            p.wait(vm=lambda x: x in need, lg=lambda x: x == ("w", ep))
        tab_reads(0)
        for f in dequant(0): f()
        guarantees(0)
        fr_n = [0]
        def frag_read(off, e_, tag):
            b = V_XF + 4*(fr_n[0] % 4); fr_n[0] += 1
            r, o = xaddr(off, e_)
            p.lds("ds_read_b128 v[%d:%d], v%d offset:%d" % (b, b+3, r, o), tag)
            return b
        def run_stream(frags, fillers, pre_issued, nxt, start=0, per=2, tail=True, lead=None):
            allf = frags + nxt
            k = 0; m = 0
            lead = list(lead or [])
            for fi, (off, e_, tag, ms) in enumerate(frags):
                for fj in range(fi, min(fi+pf+1, len(allf))):
                    o2, e2, t2, _ = allf[fj]
                    if t2 not in pre_issued: pre_issued[t2] = frag_read(o2, e2, t2)
                for (acc, wreg, first, wtag) in ms:
                    p.wait(lg=lambda x: x == tag or x == wtag)
                    p.mfma(acc, pre_issued[tag], wreg, first)
                    m += 1
                    if lead and m % 2 == 0: lead.pop(0)()
                    if m > start:
                        for _ in range(per):
                            if k < len(fillers): fillers[k](); k += 1
            for f in lead: f()
            if tail:
                while k < len(fillers): fillers[k](); k += 1
            return fillers[k:]
        def epilogue(acc, idx):
            ops = []
            def first():
                p.need_mfma_done(acc); p.need_mfma_done(acc+4)
                pe("v_cvt_pk_bf16_f32 v%d, v%d, v%d" % (V_D, acc, acc+4))
            ops.append(first)
            for r in range(1, 4): ops.append(lambda r=r: pe("v_cvt_pk_bf16_f32 v%d, v%d, v%d" % (V_D+r, acc+r, acc+4+r)))
            def dpp(d, s0, s1, ror): pe("v_cndmask_b32_dpp v%d, v%d, v%d, vcc row_ror:%d row_mask:0xf bank_mask:0xf" % (d, s0, s1, ror))
            ops.append(lambda: (pe("s_mov_b64 vcc, s[%d:%d]" % (S_M8, S_M8+1)), pe("s_add_u32 s%d, s%d, %d" % (S_QO, S_BASE, idx*18432))))
            ops.append(lambda: dpp(V_E+0, V_D+2, V_D+0, 8))
            ops.append(lambda: dpp(V_E+1, V_D+3, V_D+1, 8))
            ops.append(lambda: (pe("s_mov_b64 vcc, s[%d:%d]" % (S_M8N, S_M8N+1)), pe("s_cmp_ge_u32 s%d, s%d" % (S_QO, S_END)), pe("s_cselect_b32 s%d, s%d, 0" % (S_INV, S_SPAN))))
            ops.append(lambda: dpp(V_E+2, V_D+0, V_D+2, 8))
            ops.append(lambda: dpp(V_E+3, V_D+1, V_D+3, 8))
            ops.append(lambda: (pe("s_mov_b64 vcc, s[%d:%d]" % (S_M4, S_M4+1)), pe("s_sub_u32 s%d, s%d, s%d" % (S_QO, S_QO, S_INV))))
            ops.append(lambda: dpp(V_O+0, V_E+1, V_E+0, 4))
            ops.append(lambda: dpp(V_O+2, V_E+3, V_E+2, 4))
            ops.append(lambda: (pe("s_mov_b64 vcc, s[%d:%d]" % (S_M4N, S_M4N+1)), pe("s_lshl_b32 s%d, s%d, 3" % (S_QO, S_QO))))
            ops.append(lambda: dpp(V_O+1, V_E+0, V_E+1, 12))
            ops.append(lambda: dpp(V_O+3, V_E+2, V_E+3, 12))
            ops.append(lambda: p.vmem("buffer_store_dwordx4 v[%d:%d], v%d, s[%d:%d], s%d offen %s" % (V_O, V_O+3, V_OUT, S_O, S_O+3, S_QO, spol), "st"))
            return ops
        def p2_frags(it):
            acc = V_S + 8*(it % 2)
            fr = []
            for t in range(9):
                for e_ in range(2):
                    W0 = V_W + 16*t + 8*e_
                    fr.append((x2[(it, t)][0]*4096 + rh*2048, e_, ("f2", it, t, e_), [(acc, W0, t == 0 and e_ == 0, None), (acc+4, W0+4, t == 0 and e_ == 0, None)]))
            return fr
        pre = {}
        for t in range(9):
            pe("s_barrier")
            if stamps and t == 0: a.stamp(2); pe("s_waitcnt lgkmcnt(0)")
            for ks in range(2):
                for c in range(2):
                    r = V_W + 16*t + 8*ks + 4*c
                    p.lds("ds_read_b128 v[%d:%d], v%d offset:%d" % (r, r+3, V_WR, WS[t % 2] + ks*8192 + c*1024), ("W", t, ks, c))
            frags = []
            for bi, blk in enumerate(myb):
                for e_ in range(2):
                    acc = V_A1 + 8*bi
                    W0 = V_W + 16*t + 8*e_
                    frags.append((X1G[t % (D+1)]*4096 + blk*2048, e_, ("f1", t, blk, e_), [(acc, W0, t == 0 and e_ == 0, ("W", t, e_, 0)), (acc+4, W0+4, t == 0 and e_ == 0, ("W", t, e_, 1))]))
            loads = []
            if t + D < 9: loads += q_loads(t+D) + x1_loads(t+D)
            loads += x2_loads(t)
            fill = []
            if t + 1 < 9:
                loads = [lambda t=t: tab_reads(t+1)] + loads
                fill = dequant(t+1)
            dq = dq0 if rh == 0 else dq1
            run_stream(frags, fill, pre, [], start=dq, per=2, lead=loads)
            guarantees(t+1)
        pend_ep = [(V_A1 + 8*bi, blk) for bi, blk in enumerate(myb)]
        for it in range(nit):
            last_half = (b1 + 2*it + 1 >= 19)
            opt = (b1 + 2*it + rh == 18)
            if last_half and rh == 1: break
            if not (last_half and guar[it] < 9 + it): pe("s_barrier")
            if stamps and it == 0: a.stamp(3); pe("s_waitcnt lgkmcnt(0)")
            loads = x2_loads(9 + it)
            eps = []
            if it > 0: eps.append((V_S + 8*((it-1) % 2), b1 + 2*(it-1) + rh))
            nxt = []
            nx_exists = (it+1 < nit) and not (b1 + 2*(it+1) + rh > 18)
            final = not nx_exists
            npend = len(pend_ep) if (final or (b1 + 2*(it+1) + rh == 18)) else min(st1, len(pend_ep))
            for _ in range(npend): eps.append(pend_ep.pop(0))
            if nx_exists and guar[it+1] <= 9 + it: nxt = p2_frags(it+1)
            fill = []
            for (acc, idx) in eps: fill += epilogue(acc, idx)
            if opt:
                pe("s_cmp_eq_u32 s%d, 18" % S_NB); pe("s_cbranch_scc1 L_skip%d" % rh)
                skip_eps = list(eps)
            run_stream(p2_frags(it), fill, pre, nxt, start=2, per=1, lead=loads)
            if not final:
                nl_half = (b1 + 2*(it+1) + 1 >= 19)
                if not (nl_half and guar[it+1] < 9 + it + 1): guarantees(9 + it + 1)
            else:
                for f in epilogue(V_S + 8*(it % 2), b1 + 2*it + rh): f()
                if opt:
                    pe("s_branch L_end%d" % rh)
                    a.lab("L_skip%d" % rh)
                    p.lastmf = {k: p.n for k in p.lastmf}
                    pe("s_waitcnt lgkmcnt(0)")
                    for (acc, idx) in skip_eps:
                        for f in epilogue(acc, idx): f()
                    a.lab("L_end%d" % rh)
        if stamps and rh == 0:
            a.stamp(4)
            pe("s_waitcnt vmcnt(0)")
            a.stamp(5)
            a.dump_stamps(6, 36, vtmp=0)
        pe("s_endpgm")
    a.lab("L_done")
    e("s_endpgm")
    a.descriptor(KN, 256, 102, 256)
    a.write(path)

if __name__ == "__main__":
    kw = dict(s.split("=") for s in sys.argv[2:])
    for k in kw:
        if k in ("spol",): kw[k] = kw[k].replace("+", " ").replace("plain", "")
        else: kw[k] = int(kw[k])
    build(sys.argv[1], **kw)
```

```python
NAME = "standalone__w4a16_gemm_dequant__prompt"
M, K, N = 2048, 576, 4608
class Asm:
    def __init__(self):
        self.out = []
    def e(self, s): self.out.append("    " + s)
    def lab(self, s): self.out.append(s + ":")
    def raw(self, s): self.out.append(s)
    def header(self, launches):
        hdr = open("cdna_kernels/%s.s.ref" % NAME).read().split("\n")
        head = [l for l in hdr if l.startswith(";") and "@launch" not in l and "Override" not in l and "grid=ceil" not in l]
        self.out += head
        for l in launches: self.out.append(l)
        self.raw('.amdgcn_target "amdgcn-amd-amdhsa--gfx950"')
        self.raw(".text")
    def kernel_start(self, name):
        self.raw(".globl %s" % name)
        self.raw(".p2align 8")
        self.raw(".type %s,@function" % name)
        self.lab(name)
    def descriptor(self, name, vgpr, sgpr, accum, extra=()):
        self.raw('.section .rodata,"a"')
        self.raw(".p2align 6")
        self.raw(".amdhsa_kernel %s" % name)
        self.raw("  .amdhsa_next_free_vgpr %d" % vgpr)
        self.raw("  .amdhsa_next_free_sgpr %d" % sgpr)
        self.raw("  .amdhsa_accum_offset %d" % accum)
        self.raw("  .amdhsa_group_segment_fixed_size 0")
        self.raw("  .amdhsa_kernarg_size 56")
        self.raw("  .amdhsa_user_sgpr_count 2")
        self.raw("  .amdhsa_user_sgpr_kernarg_segment_ptr 1")
        self.raw("  .amdhsa_system_sgpr_workgroup_id_x 1")
        for x in extra: self.raw("  " + x)
        self.raw(".end_amdhsa_kernel")
    def srd(self, d, b, nbytes):
        self.e("s_mov_b32 s%d, s%d" % (d, b))
        self.e("s_and_b32 s%d, s%d, 0xffff" % (d+1, b+1))
        self.e("s_mov_b32 s%d, %d" % (d+2, nbytes))
        self.e("s_mov_b32 s%d, 0x00020000" % (d+3))
    def write(self, path):
        open(path, "w").write("\n".join(self.out) + "\n")
    def stamp(self, i, base=70):
        self.e("s_memrealtime s[%d:%d]" % (base+2*i, base+2*i+1))
    def dump_stamps(self, n, ws_srd, base=70, vtmp=0, wg="s2"):
        e = self.e
        e("s_waitcnt lgkmcnt(0)")
        e("v_cmp_eq_u32 vcc, 0, v%d" % vtmp)
        e("s_and_saveexec_b64 s[96:97], vcc")
        e("s_cbranch_execz L_nostamp")
        e("s_lshl_b32 s98, %s, 7" % wg)
        e("s_add_u32 s98, s98, %d" % (255 << 20))
        e("v_mov_b32 v%d, 0" % (vtmp+1))
        for i in range(n):
            e("v_mov_b32 v%d, s%d" % (vtmp+2, base+2*i))
            e("v_mov_b32 v%d, s%d" % (vtmp+3, base+2*i+1))
            e("buffer_store_dwordx2 v[%d:%d], v%d, s[%d:%d], s98 offen offset:%d" % (vtmp+2, vtmp+3, vtmp+1, ws_srd, ws_srd+3, 8*i))
            e("s_nop 2")
        self.lab("L_nostamp")
        e("s_mov_b64 exec, s[96:97]")

    def dbg_stamps(self, n, srd, base=70):
        e = self.e
        e("s_waitcnt lgkmcnt(0)")
        e("v_cmp_eq_u32 vcc, 0, v0")
        e("s_and_saveexec_b64 s[96:97], vcc")
        e("s_cbranch_execz L_nostamp")
        e("v_mov_b32 v1, 0")
        e("s_not_b32 s98, s%d" % base)
        e("v_mov_b32 v2, s98")
        e("buffer_atomic_umax v2, v1, s[%d:%d], 0 offen offset:0" % (srd, srd+3))
        for i in range(n):
            e("v_mov_b32 v%d, s%d" % (4+2*i, base+2*i))
            e("buffer_atomic_umax v%d, v1, s[%d:%d], 0 offen offset:%d" % (4+2*i, srd, srd+3, 4*(1+i)))
            e("s_sub_u32 s98, s%d, s%d" % (base+2*i, base))
            e("v_mov_b32 v%d, s98" % (5+2*i))
            e("buffer_atomic_add v%d, v1, s[%d:%d], 0 offen offset:%d" % (5+2*i, srd, srd+3, 4*(8+i)))
        self.lab("L_nostamp")
        e("s_mov_b64 exec, s[96:97]")
```

```python
import sys
from asmlib import *

V_TID, V_Q, V_XD, V_OUT, V_WR, V_WA0, V_WA1, V_TAB = 0, 1, 2, 3, 4, 5, 6, 7
V_X = 8
V_T0, V_T1 = 14, 15
V_XF = 16
V_S, V_NZ, V_PK = 32, 36, 40
V_D, V_E, V_O = 48, 52, 56
V_A1 = 60
V_W = 112
S_X, S_Q, S_S, S_Z, S_O, S_WS = 16, 20, 24, 28, 32, 36
S_P = 40
S_BASE, S_END, S_SPAN, S_B1, S_B2, S_WL, S_W3L, S_NB, S_W = 50, 51, 52, 53, 54, 55, 56, 57, 58
S_T, S_U, S_D1, S_D2, S_QO = 59, 60, 61, 64, 65
S_M8, S_M8N, S_M4, S_M4N = 62, 66, 68, 94
S_INV = 49

class Prog:
    def __init__(self, a):
        self.a = a; self.vm = []; self.lg = []; self.vmdone = 0; self.lgdone = 0; self.n = 0
        self.lastmf = {}
    def e(self, s):
        self.a.e(s); self.n += 1
    def vmem(self, s, tag): self.e(s); self.vm.append(tag)
    def lds(self, s, tag): self.e(s); self.lg.append(tag)
    def _cnt(self, lst, done, pred):
        idx = -1
        for i in range(len(lst)-1, done-1, -1):
            if pred(lst[i]): idx = i; break
        return idx
    def wait(self, vm=None, lg=None, lg0=False):
        parts = []
        if vm is not None:
            idx = self._cnt(self.vm, self.vmdone, vm)
            if idx >= 0:
                n = len(self.vm)-1-idx
                parts.append("vmcnt(%d)" % min(n, 63)); self.vmdone = len(self.vm) - min(n, 63)
        if lg0:
            if self.lgdone < len(self.lg) or lg0 == 2:
                parts.append("lgkmcnt(0)"); self.lgdone = len(self.lg)
        elif lg is not None:
            idx = self._cnt(self.lg, self.lgdone, lg)
            if idx >= 0:
                n = len(self.lg)-1-idx
                parts.append("lgkmcnt(%d)" % min(n, 15)); self.lgdone = len(self.lg) - min(n, 15)
        if parts: self.e("s_waitcnt " + " ".join(parts))
    def mfma(self, d, x, w, first):
        c = "0" if first else "v[%d:%d]" % (d, d+3)
        self.e("v_mfma_f32_16x16x32_bf16 v[%d:%d], v[%d:%d], v[%d:%d], %s" % (d, d+3, x, x+3, w, w+3, c))
        self.lastmf[d] = self.n
    def need_mfma_done(self, d):
        if d in self.lastmf:
            gap = self.n - self.lastmf[d]
            if gap < 8: self.e("s_nop %d" % (8-gap-1))

def build(path, b1=8, D=3, spol="nt", stamps=0, krot=1, rrot=4, dq0=99, dq1=99, cap=9, early=2, st1=1, prio=0, pf=3):
    global S_M8, S_M8N, S_M4, S_M4N
    S_M8, S_M8N, S_M4, S_M4N = 90, 92, 94, 96
    a = Asm(); e = a.e
    KN = NAME + "_kernel"
    a.header(["; @launch grid=(256,1,1) block=(512,1,1) lds=%d" % (160*1024)])
    a.kernel_start(KN)
    if stamps: a.stamp(0)
    e("s_cmp_ge_u32 s2, 256"); e("s_cbranch_scc1 L_done")
    e("s_load_dwordx8 s[4:11], s[0:1], 0")
    e("s_load_dwordx2 s[12:13], s[0:1], 32")
    if stamps: e("s_load_dwordx2 s[14:15], s[0:1], %d" % (40 if stamps == 2 else 48))
    e("s_and_b32 s3, s2, 1"); e("s_lshl_b32 s3, s3, 5"); e("s_lshr_b32 s98, s2, 3"); e("s_add_u32 s3, s3, s98")
    e("s_cmp_eq_u32 s3, 63"); e("s_cbranch_scc1 L_done")
    e("v_lshrrev_b32 v1, 6, v0")
    e("s_mul_i32 s98, s3, 37"); e("s_lshr_b32 s98, s98, 8")
    e("v_readfirstlane_b32 s%d, v1" % S_W)
    e("s_mul_i32 s99, s98, 7"); e("s_sub_u32 s99, s3, s99")
    e("s_bfe_u32 s3, s2, 0x20001"); e("s_mul_i32 s3, s3, 9"); e("s_add_u32 s3, s3, s98")
    e("s_cmp_lt_u32 s99, 2"); e("s_cselect_b32 s%d, 19, 18" % S_NB)
    e("s_min_u32 s100, s99, 2"); e("s_mul_i32 s101, s99, 18"); e("s_add_u32 s100, s100, s101")
    e("s_add_u32 s101, s100, s%d" % S_NB); e("s_mul_i32 s%d, s101, 18432" % S_END)
    e("s_mul_i32 s%d, s%d, 18432" % (S_SPAN, S_NB))
    if rrot:
        e("s_sub_u32 s101, s98, 5"); e("s_cmp_ge_u32 s98, 5"); e("s_cselect_b32 s101, s101, s98"); e("s_mul_i32 s101, s101, %d" % rrot)
        e("s_add_u32 s100, s100, s101")
    e("s_mul_i32 s%d, s100, 18432" % S_BASE)
    if krot:
        e("s_lshl_b32 s101, s98, 1"); e("s_add_u32 s101, s101, s99")
        for _ in range(2):
            e("s_sub_u32 s100, s101, 9"); e("s_cmp_ge_u32 s101, 9"); e("s_cselect_b32 s101, s100, s101")
    else:
        e("s_mov_b32 s101, 0")
    for t in range(9):
        e("s_add_u32 s100, s101, %d" % t); e("s_cmp_ge_u32 s100, 9"); e("s_cselect_b32 s99, 9, 0"); e("s_sub_u32 s100, s100, s99")
        e("s_lshl_b32 s%d, s100, 7" % (S_P+t))
    L, I, G = 20, 21, 22
    e("v_and_b32 v%d, 63, v0" % L); e("v_and_b32 v%d, 15, v0" % I); e("v_bfe_u32 v%d, v0, 4, 2" % G)
    e("s_and_b32 s98, s%d, 1" % S_W)
    e("s_bfe_u32 s99, s%d, 0x10001" % S_W)
    e("s_lshr_b32 s100, s%d, 2" % S_W)
    e("s_lshl_b32 s%d, s100, 5" % S_T); e("s_lshl_b32 s%d, s99, 2" % S_U); e("s_add_u32 s%d, s%d, s%d" % (S_T, S_T, S_U)); e("s_mul_i32 s%d, s%d, 18432" % (S_T, S_T))
    e("s_lshl_b32 s%d, s3, 9" % S_U); e("s_add_u32 s%d, s%d, s%d" % (S_T, S_T, S_U)); e("s_lshl_b32 s%d, s98, 8" % S_U); e("s_add_u32 s%d, s%d, s%d" % (S_T, S_T, S_U))
    e("v_mul_u32_u24 v%d, %d, v%d" % (V_Q, 8*18432, G)); e("v_lshl_add_u32 v%d, v%d, 4, v%d" % (V_Q, I, V_Q)); e("v_add_u32 v%d, s%d, v%d" % (V_Q, S_T, V_Q))
    e("s_lshl_b32 s%d, s98, 2" % S_T); e("v_add_u32 v23, s%d, v%d" % (S_T, G)); e("v_and_b32 v24, 7, v%d" % L); e("v_xor_b32 v23, v23, v24")
    e("v_lshrrev_b32 v24, 3, v%d" % L); e("v_mul_u32_u24 v24, 1152, v24"); e("v_lshl_add_u32 v%d, v23, 4, v24" % V_XD)
    e("s_mul_i32 s%d, s98, 9216" % S_T); e("v_add_u32 v%d, s%d, v%d" % (V_XD, S_T, V_XD))
    e("s_lshr_b32 s%d, s%d, 1" % (S_T, S_W)); e("s_mul_i32 s%d, s%d, 18432" % (S_T, S_T)); e("s_add_u32 s%d, s%d, s%d" % (S_B1, S_BASE, S_T))
    e("s_mul_i32 s%d, s99, 18432" % S_T); e("s_add_u32 s%d, s%d, s%d" % (S_B2, S_BASE, S_T))
    e("s_lshl_b32 s%d, s%d, 10" % (S_WL, S_W)); e("s_and_b32 s%d, s%d, 0xc00" % (S_W3L, S_WL))
    e("v_lshrrev_b32 v23, 5, v0"); e("v_add_u32 v23, s101, v23"); e("v_subrev_u32 v24, 9, v23"); e("v_min_u32 v23, v23, v24")
    e("v_and_b32 v24, 1, v%d" % G); e("v_lshl_add_u32 v23, v23, 1, v24"); e("v_mul_u32_u24 v23, 9216, v23")
    e("v_lshl_add_u32 v23, v%d, 4, v23" % I); e("s_lshl_b32 s%d, s3, 8" % S_T); e("v_add_u32 v%d, s%d, v23" % (V_T0, S_T))
    e("s_waitcnt lgkmcnt(0)")
    a.srd(S_S, 8, 18*N*2); a.srd(S_Z, 10, 18*N*2); a.srd(S_Q, 6, K*N*4); a.srd(S_X, 4, M*K*2); a.srd(S_O, 12, M*N*2)
    if stamps:
        e("s_mov_b32 s36, s14"); e("s_and_b32 s37, s15, 0xffff"); e("s_mov_b32 s38, %s" % ("256" if stamps == 2 else "0x10000000")); e("s_mov_b32 s39, 0x00020000")
    e("s_cmp_lg_u32 s100, 0"); e("s_cbranch_scc1 L_rh1")

    TAB = 0
    WS = [5*4096, 9*4096]
    g1 = (b1 + 1)//2
    X1G = [13 + s*g1 for s in range(D+1)]
    used = 13 + (D+1)*g1
    assert used <= 40
    nrem = 19 - b1
    nit = (nrem+1)//2
    half_last = (nrem % 2 == 1)
    free_at = {g: -99 for g in range(used, 40)}
    for g in range(0, 5): free_at[g] = 8
    for g in range(5, 9): free_at[g] = 9
    for g in range(9, 13): free_at[g] = 8
    for t in range(9-(D+1), 9):
        for g in range(g1): free_at[X1G[t % (D+1)] + g] = t+1
    x2 = {}
    pend = [(it, t) for it in range(nit) for t in range(9)]
    ep = 9 - D
    while pend:
        n = 0
        while pend and n < cap:
            cands = sorted(g for g in free_at if free_at[g] <= ep)
            if not cands: break
            g = cands[0]; it, t = pend.pop(0)
            x2[(it, t)] = (g, ep); free_at[g] = 10 + it; n += 1
        ep += 1
    guar = {it: (9 + it if it < early else 9 + it - 1) for it in range(nit)}
    for (it, t), (g, ep_) in x2.items(): assert ep_ < guar[it], (it, t, ep_, guar[it])
    if half_last: assert guar[nit-1] < 9 + nit-1
    if stamps: sys.stderr.write("x2 issue epochs: %s\n" % [sorted(set(x2[(it, t)][1] for t in range(9))) for it in range(nit)])

    def xaddr(off, e_):
        win = off >> 16
        return V_X + 2*win + e_, off & 0xffff

    for rh in range(2):
        p = Prog(a); pe = p.e
        if rh: a.lab("L_rh1")
        if prio and rh == 1: pe("s_setprio %d" % prio)
        myb = [i for i in range(b1) if i % 2 == rh]
        nk = [k for k in range(4) if any(((w >> 1) + 4*k) < b1 for w in range(4*rh, 4*rh+4))]
        def wrap(dst, src, add):
            pe("s_add_u32 s%d, s%d, %d" % (dst, src, add)); pe("s_cmp_ge_u32 s%d, s%d" % (dst, S_END))
            pe("s_cselect_b32 s%d, s%d, 0" % (S_U, S_SPAN)); pe("s_sub_u32 s%d, s%d, s%d" % (dst, dst, S_U))
        if rh == 0:
            p.vmem("buffer_load_dwordx4 v[24:27], v%d, s[%d:%d], 0 offen" % (V_T0, S_S, S_S+3), "tab")
            p.vmem("buffer_load_dwordx4 v[28:31], v%d, s[%d:%d], 0 offen" % (V_T0, S_Z, S_Z+3), "tab")
        else:
            pe("v_mov_b32 v%d, 0x7fffffff" % V_T1); pe("v_cmp_gt_u32 vcc, 288, v0"); pe("s_nop 1"); pe("v_cndmask_b32 v%d, v%d, v%d, vcc" % (V_T0, V_T1, V_T0))
            p.vmem("buffer_load_dwordx4 v[24:27], v%d, s[%d:%d], 0 offen" % (V_T0, S_S, S_S+3), "tab")
            p.vmem("buffer_load_dwordx4 v[28:31], v%d, s[%d:%d], 0 offen" % (V_T0, S_Z, S_Z+3), "tab")
        for k in nk:
            wrap(S_D1+k, S_B1, 4*k*18432)
            if any(((w >> 1) + 4*k) >= b1 for w in range(4*rh, 4*rh+4)):
                pe("s_lshr_b32 s%d, s%d, 1" % (S_T, S_W)); pe("s_cmp_ge_u32 s%d, %d" % (S_T, b1-4*k)); pe("s_cselect_b32 s%d, 0x40000000, s%d" % (S_D1+k, S_D1+k))
        def q_loads(t):
            ops = []
            for j in range(4):
                def f(j=j):
                    if j == 0: pe("s_mul_i32 s%d, s%d, 9216" % (S_QO, S_P+t))
                    else: pe("s_add_u32 s%d, s%d, 18432" % (S_QO, S_QO))
                    r = V_W + 16*t + 4*j
                    p.vmem("buffer_load_dwordx4 v[%d:%d], v%d, s[%d:%d], s%d offen" % (r, r+3, V_Q, S_Q, S_Q+3, S_QO), ("q", t))
                ops.append(f)
            return ops
        def x1_loads(t):
            ops = []
            for k in nk:
                def f(k=k):
                    pe("s_add_u32 m0, s%d, %d" % (S_WL, X1G[t % (D+1)]*4096 + k*8192))
                    pe("s_add_u32 s%d, s%d, s%d" % (S_T, S_D1+k, S_P+t))
                    p.vmem("buffer_load_dwordx4 v%d, s[%d:%d], s%d offen lds" % (V_XD, S_X, S_X+3, S_T), ("x1", t))
                ops.append(f)
            return ops
        cur2 = [None]
        def x2_loads(ep):
            ops = []
            lst = sorted(k for k in x2 if x2[k][1] == ep)
            for (it, t) in lst:
                if (it + t) % 2 != rh: continue
                def f(it=it, t=t):
                    if cur2[0] != it:
                        cur2[0] = it
                        wrap(S_D2, S_B2, (b1 + 2*it)*18432)
                        if it == nit-1:
                            pe("s_bfe_u32 s%d, s%d, 0x10001" % (S_T, S_W)); pe("s_add_u32 s%d, s%d, %d" % (S_T, S_T, b1+2*it))
                            pe("s_cmp_ge_u32 s%d, s%d" % (S_T, S_NB)); pe("s_cselect_b32 s%d, 0x40000000, s%d" % (S_D2, S_D2))
                    pe("s_add_u32 m0, s%d, %d" % (S_W3L, x2[(it, t)][0]*4096))
                    pe("s_add_u32 s%d, s%d, s%d" % (S_T, S_D2, S_P+t))
                    p.vmem("buffer_load_dwordx4 v%d, s[%d:%d], s%d offen lds" % (V_XD, S_X, S_X+3, S_T), ("x2", it))
                ops.append(f)
            return ops
        for t in range(D):
            for f in q_loads(t) + x1_loads(t): f()
        if stamps: a.stamp(1)
        L, I, G = 20, 21, 22
        pe("v_lshrrev_b32 v16, 2, v%d" % L); pe("v_mul_u32_u24 v16, 9216, v16"); pe("v_and_b32 v17, 3, v%d" % L); pe("v_lshl_add_u32 v16, v17, 4, v16")
        pe("s_lshr_b32 s%d, s%d, 4" % (S_T, S_W3L)); pe("s_lshl_b32 s%d, s3, 8" % S_U); pe("s_add_u32 s%d, s%d, s%d" % (S_T, S_T, S_U)); pe("v_add_u32 v%d, s%d, v16" % (V_OUT, S_T))
        pe("v_bfe_u32 v16, v%d, 2, 1" % I); pe("v_and_b32 v17, 3, v%d" % I); pe("v_lshlrev_b32 v17, 1, v17"); pe("v_lshrrev_b32 v18, 3, v%d" % I); pe("v_add_u32 v17, v17, v18")
        pe("s_lshl_b32 s%d, s98, 3" % S_T); pe("v_add_u32 v17, s%d, v17" % S_T); pe("v_lshlrev_b32 v18, 3, v16"); pe("v_xor_b32 v17, v17, v18")
        pe("v_lshlrev_b32 v17, 4, v17"); pe("v_lshl_add_u32 v17, v16, 11, v17"); pe("v_lshl_add_u32 v17, v%d, 8, v17" % G)
        pe("s_lshl_b32 s%d, s99, 12" % S_T); pe("v_add_u32 v%d, s%d, v17" % (V_WR, S_T))
        pe("s_lshl_b32 s%d, s98, 12" % S_T); pe("s_lshl_b32 s%d, s99, 3" % S_U); pe("s_add_u32 s%d, s%d, s%d" % (S_T, S_T, S_U)); pe("s_add_u32 s%d, s%d, %d" % (S_T, S_T, rh*8192))
        pe("v_lshlrev_b32 v16, 4, v%d" % L); pe("v_add_u32 v%d, s%d, v16" % (V_WA0, S_T)); pe("v_xor_b32 v%d, 128, v%d" % (V_WA1, V_WA0))
        pe("s_lshl_b32 s%d, s98, 8" % S_T); pe("s_add_u32 s%d, s%d, %d" % (S_T, S_T, rh*1024 + TAB)); pe("v_lshlrev_b32 v16, 4, v%d" % I); pe("v_add_u32 v%d, s%d, v16" % (V_TAB, S_T))
        pe("v_lshrrev_b32 v16, 1, v%d" % I); pe("v_xor_b32 v16, v16, v%d" % G); pe("v_lshlrev_b32 v16, 4, v16"); pe("v_lshl_add_u32 v%d, v%d, 7, v16" % (V_X, I))
        pe("v_xor_b32 v%d, 64, v%d" % (V_X+1, V_X))
        for w_ in (1, 2):
            pe("v_add_u32 v%d, %d, v%d" % (V_X+2*w_, w_ << 16, V_X)); pe("v_add_u32 v%d, %d, v%d" % (V_X+2*w_+1, w_ << 16, V_X+1))
        pe("v_lshrrev_b32 v16, 4, v0"); pe("v_lshlrev_b32 v16, 10, v16"); pe("v_lshl_add_u32 v%d, v%d, 5, v16" % (V_T1, I))
        pe("s_mov_b32 s%d, 0x00ff00ff" % S_M8); pe("s_mov_b32 s%d, 0x00ff00ff" % (S_M8+1)); pe("s_not_b64 s[%d:%d], s[%d:%d]" % (S_M8N, S_M8N+1, S_M8, S_M8+1))
        pe("s_mov_b32 s%d, 0x0f0f0f0f" % S_M4); pe("s_mov_b32 s%d, 0x0f0f0f0f" % (S_M4+1)); pe("s_not_b64 s[%d:%d], s[%d:%d]" % (S_M4N, S_M4N+1, S_M4, S_M4+1))
        if rh == 1:
            pe("s_cmp_lg_u32 s%d, 4" % S_W); pe("s_cbranch_scc1 L_notab")
            pe("s_mov_b32 exec_hi, 0")
        sv = (p.vmdone,)
        p.wait(vm=lambda x: x == "tab")
        for c in range(4):
            pe("v_lshlrev_b32 v%d, 16, v%d" % (32+2*c, 24+c)); pe("v_and_b32 v%d, 0xffff0000, v%d" % (33+2*c, 24+c))
            pe("v_lshlrev_b32 v%d, 16, v%d" % (40+2*c, 28+c)); pe("v_and_b32 v%d, 0xffff0000, v%d" % (41+2*c, 28+c))
        for c in range(8): pe("v_mul_f32 v%d, -v%d, v%d" % (40+c, 40+c, 32+c))
        pe("ds_write_b128 v%d, v[32:35] offset:%d" % (V_T1, TAB)); pe("ds_write_b128 v%d, v[36:39] offset:%d" % (V_T1, TAB+16))
        pe("ds_write_b128 v%d, v[40:43] offset:%d" % (V_T1, TAB+512)); pe("ds_write_b128 v%d, v[44:47] offset:%d" % (V_T1, TAB+528))
        pe("s_waitcnt lgkmcnt(0)")
        if rh == 1:
            pe("s_mov_b32 exec_hi, -1")
            a.lab("L_notab")
            p.vmdone = sv[0]
        pe("s_barrier")
        def tab_reads(t):
            p.lds("ds_read_b128 v[%d:%d], v%d offset:%d" % (V_S, V_S+3, V_TAB, t*2048), ("t", t))
            p.lds("ds_read_b128 v[%d:%d], v%d offset:%d" % (V_NZ, V_NZ+3, V_TAB, t*2048+512), ("t", t))
        def dequant(t):
            R = V_W + 16*t
            ops = []
            ops.append(lambda: p.wait(vm=lambda x: x == ("q", t)))
            for x in range(16): ops.append(lambda x=x: pe("v_cvt_f32_i32 v%d, v%d" % (R+x, R+x)))
            ops.append(lambda: p.wait(lg=lambda x: x == ("t", t)))
            for x in range(16): ops.append(lambda x=x: pe("v_fma_f32 v%d, v%d, v%d, v%d" % (R+x, R+x, V_S+(x & 3), V_NZ+(x & 3))))
            for c in range(4):
                ops.append(lambda c=c: pe("v_cvt_pk_bf16_f32 v%d, v%d, v%d" % (V_PK+2*c, R+c, R+4+c)))
                ops.append(lambda c=c: pe("v_cvt_pk_bf16_f32 v%d, v%d, v%d" % (V_PK+2*c+1, R+8+c, R+12+c)))
                ops.append(lambda c=c: p.lds("ds_write_b64 v%d, v[%d:%d] offset:%d" % (V_WA0 if c < 2 else V_WA1, V_PK+2*c, V_PK+2*c+1, WS[t % 2] + c*1024), ("w", t)))
            return ops
        def guarantees(ep):
            need = [("x1", ep)] + [("x2", it) for it in range(nit) if guar[it] == ep]
            p.wait(vm=lambda x: x in need, lg=lambda x: x == ("w", ep))
        tab_reads(0)
        for f in dequant(0): f()
        guarantees(0)
        fr_n = [0]
        def frag_read(off, e_, tag):
            b = V_XF + 4*(fr_n[0] % 4); fr_n[0] += 1
            r, o = xaddr(off, e_)
            p.lds("ds_read_b128 v[%d:%d], v%d offset:%d" % (b, b+3, r, o), tag)
            return b
        def run_stream(frags, fillers, pre_issued, nxt, start=0, per=2, tail=True, lead=None):
            allf = frags + nxt
            k = 0; m = 0
            lead = list(lead or [])
            for fi, (off, e_, tag, ms) in enumerate(frags):
                for fj in range(fi, min(fi+pf+1, len(allf))):
                    o2, e2, t2, _ = allf[fj]
                    if t2 not in pre_issued: pre_issued[t2] = frag_read(o2, e2, t2)
                for (acc, wreg, first, wtag) in ms:
                    p.wait(lg=lambda x: x == tag or x == wtag)
                    p.mfma(acc, pre_issued[tag], wreg, first)
                    m += 1
                    if lead and m % 2 == 0: lead.pop(0)()
                    if m > start:
                        for _ in range(per):
                            if k < len(fillers): fillers[k](); k += 1
            for f in lead: f()
            if tail:
                while k < len(fillers): fillers[k](); k += 1
            return fillers[k:]
        def epilogue(acc, idx):
            ops = []
            def first():
                p.need_mfma_done(acc); p.need_mfma_done(acc+4)
                pe("v_cvt_pk_bf16_f32 v%d, v%d, v%d" % (V_D, acc, acc+4))
            ops.append(first)
            for r in range(1, 4): ops.append(lambda r=r: pe("v_cvt_pk_bf16_f32 v%d, v%d, v%d" % (V_D+r, acc+r, acc+4+r)))
            def dpp(d, s0, s1, ror): pe("v_cndmask_b32_dpp v%d, v%d, v%d, vcc row_ror:%d row_mask:0xf bank_mask:0xf" % (d, s0, s1, ror))
            ops.append(lambda: (pe("s_mov_b64 vcc, s[%d:%d]" % (S_M8, S_M8+1)), pe("s_add_u32 s%d, s%d, %d" % (S_QO, S_BASE, idx*18432))))
            ops.append(lambda: dpp(V_E+0, V_D+2, V_D+0, 8))
            ops.append(lambda: dpp(V_E+1, V_D+3, V_D+1, 8))
            ops.append(lambda: (pe("s_mov_b64 vcc, s[%d:%d]" % (S_M8N, S_M8N+1)), pe("s_cmp_ge_u32 s%d, s%d" % (S_QO, S_END)), pe("s_cselect_b32 s%d, s%d, 0" % (S_INV, S_SPAN))))
            ops.append(lambda: dpp(V_E+2, V_D+0, V_D+2, 8))
            ops.append(lambda: dpp(V_E+3, V_D+1, V_D+3, 8))
            ops.append(lambda: (pe("s_mov_b64 vcc, s[%d:%d]" % (S_M4, S_M4+1)), pe("s_sub_u32 s%d, s%d, s%d" % (S_QO, S_QO, S_INV))))
            ops.append(lambda: dpp(V_O+0, V_E+1, V_E+0, 4))
            ops.append(lambda: dpp(V_O+2, V_E+3, V_E+2, 4))
            ops.append(lambda: (pe("s_mov_b64 vcc, s[%d:%d]" % (S_M4N, S_M4N+1)), pe("s_lshl_b32 s%d, s%d, 3" % (S_QO, S_QO))))
            ops.append(lambda: dpp(V_O+1, V_E+0, V_E+1, 12))
            ops.append(lambda: dpp(V_O+3, V_E+2, V_E+3, 12))
            ops.append(lambda: p.vmem("buffer_store_dwordx4 v[%d:%d], v%d, s[%d:%d], s%d offen %s" % (V_O, V_O+3, V_OUT, S_O, S_O+3, S_QO, spol), "st"))
            return ops
        def p2_frags(it):
            acc = V_S + 8*(it % 2)
            fr = []
            for t in range(9):
                for e_ in range(2):
                    W0 = V_W + 16*t + 8*e_
                    fr.append((x2[(it, t)][0]*4096 + rh*2048, e_, ("f2", it, t, e_), [(acc, W0, t == 0 and e_ == 0, None), (acc+4, W0+4, t == 0 and e_ == 0, None)]))
            return fr
        pre = {}
        for t in range(9):
            pe("s_barrier")
            if stamps and t == 0: a.stamp(2); pe("s_waitcnt lgkmcnt(0)")
            for ks in range(2):
                for c in range(2):
                    r = V_W + 16*t + 8*ks + 4*c
                    p.lds("ds_read_b128 v[%d:%d], v%d offset:%d" % (r, r+3, V_WR, WS[t % 2] + ks*8192 + c*1024), ("W", t, ks, c))
            frags = []
            for bi, blk in enumerate(myb):
                for e_ in range(2):
                    acc = V_A1 + 8*bi
                    W0 = V_W + 16*t + 8*e_
                    frags.append((X1G[t % (D+1)]*4096 + blk*2048, e_, ("f1", t, blk, e_), [(acc, W0, t == 0 and e_ == 0, ("W", t, e_, 0)), (acc+4, W0+4, t == 0 and e_ == 0, ("W", t, e_, 1))]))
            loads = []
            if t + D < 9: loads += q_loads(t+D) + x1_loads(t+D)
            loads += x2_loads(t)
            fill = []
            if t + 1 < 9:
                loads = [lambda t=t: tab_reads(t+1)] + loads
                fill = dequant(t+1)
            dq = dq0 if rh == 0 else dq1
            run_stream(frags, fill, pre, [], start=dq, per=2, lead=loads)
            guarantees(t+1)
        pend_ep = [(V_A1 + 8*bi, blk) for bi, blk in enumerate(myb)]
        for it in range(nit):
            last_half = (b1 + 2*it + 1 >= 19)
            opt = (b1 + 2*it + rh == 18)
            if last_half and rh == 1: break
            if not (last_half and guar[it] < 9 + it): pe("s_barrier")
            if stamps and it == 0: a.stamp(3); pe("s_waitcnt lgkmcnt(0)")
            loads = x2_loads(9 + it)
            eps = []
            if it > 0: eps.append((V_S + 8*((it-1) % 2), b1 + 2*(it-1) + rh))
            nxt = []
            nx_exists = (it+1 < nit) and not (b1 + 2*(it+1) + rh > 18)
            final = not nx_exists
            npend = len(pend_ep) if (final or (b1 + 2*(it+1) + rh == 18)) else min(st1, len(pend_ep))
            for _ in range(npend): eps.append(pend_ep.pop(0))
            if nx_exists and guar[it+1] <= 9 + it: nxt = p2_frags(it+1)
            fill = []
            for (acc, idx) in eps: fill += epilogue(acc, idx)
            if opt:
                pe("s_cmp_eq_u32 s%d, 18" % S_NB); pe("s_cbranch_scc1 L_skip%d" % rh)
                skip_eps = list(eps)
            run_stream(p2_frags(it), fill, pre, nxt, start=2, per=1, lead=loads)
            if not final:
                nl_half = (b1 + 2*(it+1) + 1 >= 19)
                if not (nl_half and guar[it+1] < 9 + it + 1): guarantees(9 + it + 1)
            else:
                for f in epilogue(V_S + 8*(it % 2), b1 + 2*it + rh): f()
                if opt:
                    pe("s_branch L_end%d" % rh)
                    a.lab("L_skip%d" % rh)
                    p.lastmf = {k: p.n for k in p.lastmf}
                    pe("s_waitcnt lgkmcnt(0)")
                    for (acc, idx) in skip_eps:
                        for f in epilogue(acc, idx): f()
                    a.lab("L_end%d" % rh)
        if stamps and rh == 0:
            a.stamp(4)
            pe("s_waitcnt vmcnt(0)")
            a.stamp(5)
            if stamps == 2: a.dbg_stamps(6, 36)
            else: a.dump_stamps(6, 36, vtmp=0)
        pe("s_endpgm")
    a.lab("L_done")
    e("s_endpgm")
    a.descriptor(KN, 256, 102, 256)
    a.write(path)

if __name__ == "__main__":
    kw = dict(s.split("=") for s in sys.argv[2:])
    for k in kw:
        if k in ("spol",): kw[k] = kw[k].replace("+", " ").replace("plain", "")
        else: kw[k] = int(kw[k])
    build(sys.argv[1], **kw)
```

```python
NAME = "standalone__w4a16_gemm_dequant__prompt"
M, K, N = 2048, 576, 4608
class Asm:
    def __init__(self):
        self.out = []
    def e(self, s): self.out.append("    " + s)
    def lab(self, s): self.out.append(s + ":")
    def raw(self, s): self.out.append(s)
    def header(self, launches):
        hdr = open("cdna_kernels/%s.s.ref" % NAME).read().split("\n")
        head = [l for l in hdr if l.startswith(";") and "@launch" not in l and "Override" not in l and "grid=ceil" not in l]
        self.out += head
        for l in launches: self.out.append(l)
        self.raw('.amdgcn_target "amdgcn-amd-amdhsa--gfx950"')
        self.raw(".text")
    def kernel_start(self, name):
        self.raw(".globl %s" % name)
        self.raw(".p2align 8")
        self.raw(".type %s,@function" % name)
        self.lab(name)
    def descriptor(self, name, vgpr, sgpr, accum, extra=()):
        self.raw('.section .rodata,"a"')
        self.raw(".p2align 6")
        self.raw(".amdhsa_kernel %s" % name)
        self.raw("  .amdhsa_next_free_vgpr %d" % vgpr)
        self.raw("  .amdhsa_next_free_sgpr %d" % sgpr)
        self.raw("  .amdhsa_accum_offset %d" % accum)
        self.raw("  .amdhsa_group_segment_fixed_size 0")
        self.raw("  .amdhsa_kernarg_size 56")
        self.raw("  .amdhsa_user_sgpr_count 2")
        self.raw("  .amdhsa_user_sgpr_kernarg_segment_ptr 1")
        self.raw("  .amdhsa_system_sgpr_workgroup_id_x 1")
        for x in extra: self.raw("  " + x)
        self.raw(".end_amdhsa_kernel")
    def srd(self, d, b, nbytes):
        self.e("s_mov_b32 s%d, s%d" % (d, b))
        self.e("s_and_b32 s%d, s%d, 0xffff" % (d+1, b+1))
        self.e("s_mov_b32 s%d, %d" % (d+2, nbytes))
        self.e("s_mov_b32 s%d, 0x00020000" % (d+3))
    def write(self, path):
        open(path, "w").write("\n".join(self.out) + "\n")
    def stamp(self, i, base=70):
        self.e("s_memrealtime s[%d:%d]" % (base+2*i, base+2*i+1))
    def cstamp(self, i, regs):
        self.e("s_memtime s[%d:%d]" % (regs[i], regs[i]+1))
    def dump_regs(self, regs, ws_srd, tid):
        e = self.e
        e("s_waitcnt lgkmcnt(0)")
        e("v_cmp_eq_u32 vcc, %d, v0" % tid if tid <= 64 else "v_cmp_eq_u32 vcc, 0x%x, v0" % tid)
        e("s_and_saveexec_b64 s[96:97], vcc")
        e("s_cbranch_execz L_nostamp")
        e("s_lshl_b32 s98, s2, 7")
        e("s_add_u32 s98, s98, %d" % (255 << 20))
        e("v_mov_b32 v1, 0")
        for i, r in enumerate(regs):
            e("v_mov_b32 v2, s%d" % r)
            e("v_mov_b32 v3, s%d" % (r+1))
            e("buffer_store_dwordx2 v[2:3], v1, s[%d:%d], s98 offen offset:%d" % (ws_srd, ws_srd+3, 8*i))
            e("s_nop 2")
        self.lab("L_nostamp")
        e("s_mov_b64 exec, s[96:97]")
    def dump_stamps(self, n, ws_srd, base=70, vtmp=0, wg="s2"):
        e = self.e
        e("s_waitcnt lgkmcnt(0)")
        e("v_cmp_eq_u32 vcc, 0, v%d" % vtmp)
        e("s_and_saveexec_b64 s[96:97], vcc")
        e("s_cbranch_execz L_nostamp")
        e("s_lshl_b32 s98, %s, 7" % wg)
        e("s_add_u32 s98, s98, %d" % (255 << 20))
        e("v_mov_b32 v%d, 0" % (vtmp+1))
        for i in range(n):
            e("v_mov_b32 v%d, s%d" % (vtmp+2, base+2*i))
            e("v_mov_b32 v%d, s%d" % (vtmp+3, base+2*i+1))
            e("buffer_store_dwordx2 v[%d:%d], v%d, s[%d:%d], s98 offen offset:%d" % (vtmp+2, vtmp+3, vtmp+1, ws_srd, ws_srd+3, 8*i))
            e("s_nop 2")
        self.lab("L_nostamp")
        e("s_mov_b64 exec, s[96:97]")

    def dbg_stamps(self, n, srd, base=70):
        e = self.e
        e("s_waitcnt lgkmcnt(0)")
        e("v_cmp_eq_u32 vcc, 0, v0")
        e("s_and_saveexec_b64 s[96:97], vcc")
        e("s_cbranch_execz L_nostamp")
        e("v_mov_b32 v1, 0")
        e("s_not_b32 s98, s%d" % base)
        e("v_mov_b32 v2, s98")
        e("buffer_atomic_umax v2, v1, s[%d:%d], 0 offen offset:0" % (srd, srd+3))
        for i in range(n):
            e("v_mov_b32 v%d, s%d" % (4+2*i, base+2*i))
            e("buffer_atomic_umax v%d, v1, s[%d:%d], 0 offen offset:%d" % (4+2*i, srd, srd+3, 4*(1+i)))
            e("s_sub_u32 s98, s%d, s%d" % (base+2*i, base))
            e("v_mov_b32 v%d, s98" % (5+2*i))
            e("buffer_atomic_add v%d, v1, s[%d:%d], 0 offen offset:%d" % (5+2*i, srd, srd+3, 4*(8+i)))
        self.lab("L_nostamp")
        e("s_mov_b64 exec, s[96:97]")
```

```python
import sys
from asmlib import *

V_Q, V_XD, V_OUT, V_WR, V_WA0, V_WA1, V_TAB = 1, 2, 3, 4, 5, 6, 7
V_X = 8
V_T0, V_T1 = 14, 15
V_QJ = [1, 109, 110, 111]
V_S, V_NZ, V_PK = 32, 36, 40
V_D, V_E, V_O = 48, 52, 56
V_A1 = 60
V_W = 112
S_X, S_Q, S_S, S_Z, S_O, S_WS = 16, 20, 24, 28, 32, 36
S_P = 40
S_INV = 49
S_BASE, S_END, S_SPAN, S_B2, S_W3L, S_NB, S_W = 50, 51, 52, 53, 54, 55, 56
S_T, S_U, S_QO, S_EO = 57, 58, 59, 14
S_DJ = 60
S_M8, S_M8N, S_M4, S_M4N = 90, 92, 94, 96
S_PAN, S_CH, S_JH, S_RH, S_ROT = 3, 98, 99, 100, 101

class Prog:
    def __init__(self, a):
        self.a = a; self.vm = []; self.lg = []; self.vmdone = 0; self.lgdone = 0; self.n = 0
        self.lastmf = {}
    def e(self, s):
        self.a.e(s); self.n += 1
    def vmem(self, s, tag): self.e(s); self.vm.append(tag)
    def lds(self, s, tag): self.e(s); self.lg.append(tag)
    def _cnt(self, lst, done, pred):
        for i in range(len(lst)-1, done-1, -1):
            if pred(lst[i]): return i
        return -1
    def wait(self, vm=None, lg=None):
        parts = []
        if vm is not None:
            idx = self._cnt(self.vm, self.vmdone, vm)
            if idx >= 0:
                n = min(len(self.vm)-1-idx, 63)
                parts.append("vmcnt(%d)" % n); self.vmdone = len(self.vm) - n
        if lg is not None:
            idx = self._cnt(self.lg, self.lgdone, lg)
            if idx >= 0:
                n = min(len(self.lg)-1-idx, 15)
                parts.append("lgkmcnt(%d)" % n); self.lgdone = len(self.lg) - n
        if parts: self.e("s_waitcnt " + " ".join(parts))
    def lg_all(self):
        self.e("s_waitcnt lgkmcnt(0)"); self.lgdone = len(self.lg)
    def mfma(self, d, x, w, first):
        c = "0" if first else "v[%d:%d]" % (d, d+3)
        self.e("v_mfma_f32_16x16x32_bf16 v[%d:%d], v[%d:%d], v[%d:%d], %s" % (d, d+3, x, x+3, w, w+3, c))
        self.lastmf[d] = self.n
    def need_mfma_done(self, d):
        if d in self.lastmf:
            gap = self.n - self.lastmf[d]
            if gap < 8: self.e("s_nop %d" % (8-gap-1))

def build(path, b1=12, D=3, n0=1, spol="nt", stamps=0, krot=1, rrot=4, dq0=0, dq1=0, per1=2, per2=2, cap=12, prio=0, pf=3,
          ld0=0, ldm=2, n1=2, epd=4, smid=4, qpol="", xpol="", abl=0, trace=-1, trh=0, tstep=4):
    a = Asm(); e = a.e
    KN = NAME + "_kernel"
    P1 = b1 // 2
    assert b1 % 2 == 0 and P1 <= 6
    assert pf <= 3
    XF = [16, 20, 24, 28][:pf+1]
    a.header(["; @launch grid=(256,1,1) block=(512,1,1) lds=%d" % (160*1024)])
    a.kernel_start(KN)
    TR = [70, 72, 74, 76, 78, 80, 82, 84, 86, 88, 4, 6, 8, 10, 12]
    if trace >= 0: stamps = 3
    if stamps and stamps < 3: a.stamp(0)
    e("s_cmp_ge_u32 s2, 256"); e("s_cbranch_scc1 L_done")
    e("s_load_dwordx2 s[%d:%d], s[0:1], 16" % (S_S, S_S+1))
    e("s_load_dwordx2 s[%d:%d], s[0:1], 24" % (S_Z, S_Z+1))
    e("s_load_dwordx2 s[%d:%d], s[0:1], 8" % (S_Q, S_Q+1))
    e("s_load_dwordx2 s[%d:%d], s[0:1], 0" % (S_X, S_X+1))
    e("s_load_dwordx2 s[%d:%d], s[0:1], 32" % (S_O, S_O+1))
    if stamps: e("s_load_dwordx2 s[36:37], s[0:1], %d" % (40 if stamps == 2 else 48))
    e("s_and_b32 s3, s2, 1"); e("s_lshl_b32 s3, s3, 5"); e("s_lshr_b32 s98, s2, 3"); e("s_add_u32 s3, s3, s98")
    e("s_cmp_eq_u32 s3, 63"); e("s_cbranch_scc1 L_done")
    e("v_lshrrev_b32 v1, 6, v0")
    e("s_mul_i32 s98, s3, 37"); e("s_lshr_b32 s98, s98, 8")
    e("v_readfirstlane_b32 s%d, v1" % S_W)
    e("s_mul_i32 s99, s98, 7"); e("s_sub_u32 s99, s3, s99")
    e("s_bfe_u32 s3, s2, 0x20001"); e("s_mul_i32 s3, s3, 9"); e("s_add_u32 s3, s3, s98")
    e("s_cmp_lt_u32 s99, 2"); e("s_cselect_b32 s%d, 19, 18" % S_NB)
    e("s_min_u32 s100, s99, 2"); e("s_mul_i32 s101, s99, 18"); e("s_add_u32 s100, s100, s101")
    e("s_add_u32 s101, s100, s%d" % S_NB); e("s_mul_i32 s%d, s101, 18432" % S_END)
    e("s_mul_i32 s%d, s%d, 18432" % (S_SPAN, S_NB))
    if rrot:
        e("s_sub_u32 s101, s98, 5"); e("s_cmp_ge_u32 s98, 5"); e("s_cselect_b32 s101, s101, s98"); e("s_mul_i32 s101, s101, %d" % rrot)
        e("s_add_u32 s100, s100, s101")
    e("s_mul_i32 s%d, s100, 18432" % S_BASE)
    if krot:
        e("s_lshl_b32 s101, s98, 1"); e("s_add_u32 s101, s101, s99")
        for _ in range(2):
            e("s_sub_u32 s100, s101, 9"); e("s_cmp_ge_u32 s101, 9"); e("s_cselect_b32 s101, s100, s101")
    else:
        e("s_mov_b32 s101, 0")
    e("s_lshl_b32 s%d, s101, 7" % S_P)
    for t in range(1, 9):
        e("s_add_u32 s%d, s%d, 128" % (S_P+t, S_P+t-1)); e("s_cmp_eq_u32 s%d, 1152" % (S_P+t)); e("s_cselect_b32 s%d, 0, s%d" % (S_P+t, S_P+t))
    for (sr, nb_) in ((S_S, 18*N*2), (S_Z, 18*N*2), (S_Q, K*N*4), (S_X, M*K*2), (S_O, M*N*2)):
        e("s_mov_b32 s%d, %d" % (sr+2, nb_)); e("s_mov_b32 s%d, 0x00020000" % (sr+3))
    if stamps:
        e("s_mov_b32 s38, %s" % ("256" if stamps == 2 else "0x10000000")); e("s_mov_b32 s39, 0x00020000")
    L, I, G = 20, 21, 22
    e("v_and_b32 v%d, 63, v0" % L); e("v_and_b32 v%d, 15, v0" % I); e("v_bfe_u32 v%d, v0, 4, 2" % G)
    e("s_and_b32 s98, s%d, 1" % S_W)
    e("s_bfe_u32 s99, s%d, 0x10001" % S_W)
    e("s_lshr_b32 s100, s%d, 2" % S_W)
    e("v_lshrrev_b32 v23, 5, v0"); e("v_add_u32 v23, s101, v23"); e("v_subrev_u32 v24, 9, v23"); e("v_min_u32 v23, v23, v24")
    e("v_and_b32 v24, 1, v%d" % G); e("v_lshl_add_u32 v23, v23, 1, v24"); e("v_mul_u32_u24 v23, 9216, v23")
    e("v_lshl_add_u32 v23, v%d, 4, v23" % I); e("s_lshl_b32 s%d, s3, 8" % S_T); e("v_add_u32 v%d, s%d, v23" % (V_T0, S_T))
    e("s_mul_i32 s%d, s100, %d" % (S_T, 32*18432)); e("s_lshl_b32 s%d, s3, 9" % S_U); e("s_add_u32 s%d, s%d, s%d" % (S_T, S_T, S_U))
    e("s_and_b32 s%d, s%d, 3" % (S_U, S_W)); e("s_lshl_b32 s%d, s%d, 7" % (S_U, S_U)); e("s_add_u32 s%d, s%d, s%d" % (S_T, S_T, S_U))
    e("v_lshrrev_b32 v23, 3, v%d" % L); e("v_mul_u32_u24 v23, %d, v23" % (4*18432)); e("v_and_b32 v24, 7, v%d" % L)
    e("v_lshl_add_u32 v23, v24, 4, v23"); e("v_add_u32 v%d, s%d, v23" % (V_QJ[0], S_T))
    for j in range(1, 4): e("v_add_u32 v%d, %d, v%d" % (V_QJ[j], 18432*j, V_QJ[0]))
    e("s_lshl_b32 s%d, s98, 2" % S_T); e("v_add_u32 v23, s%d, v%d" % (S_T, G)); e("v_and_b32 v24, 7, v%d" % L); e("v_xor_b32 v23, v23, v24")
    e("v_lshrrev_b32 v24, 3, v%d" % L); e("v_mul_u32_u24 v24, 1152, v24"); e("v_lshl_add_u32 v%d, v23, 4, v24" % V_XD)
    e("s_mul_i32 s%d, s98, 9216" % S_T); e("v_add_u32 v%d, s%d, v%d" % (V_XD, S_T, V_XD))
    e("s_mul_i32 s%d, s99, 18432" % S_T); e("s_add_u32 s%d, s%d, s%d" % (S_B2, S_BASE, S_T))
    e("s_lshl_b32 s%d, s%d, 10" % (S_W3L, S_W)); e("s_and_b32 s%d, s%d, 0xc00" % (S_W3L, S_W3L))
    e("s_cmp_lg_u32 s100, 0"); e("s_cbranch_scc1 L_rh1")

    TAB = 0
    WS = [5*4096, 9*4096]
    frag_list = [(j, t, e_) for t in range(9) for j in range(P1) for e_ in range(2)] + [(j, t, e_) for j in range(P1, 10) for t in range(9) for e_ in range(2)]
    fidx = {k: i for i, k in enumerate(frag_list)}
    NE = 9 + (10 - P1)
    first = [fidx[(0, t, 0)] for t in range(9)] + [fidx[(j, 0, 0)] for j in range(P1, 10)]
    bpos = [0] + [first[ep] - pf for ep in range(1, NE)]
    def ep_of(f): return max(ep for ep in range(NE) if bpos[ep] <= f)
    need = {(j, t): (t if j < P1 else 9 + j - P1) for j in range(10) for t in range(9)}
    free_at = {g: -99 for g in range(13, 40)}
    for g in range(0, 5): free_at[g] = 8
    for g in range(5, 9): free_at[g] = 9
    for g in range(9, 13): free_at[g] = 8
    order = []
    for t in range(9):
        order.append(("q", t)); order += [("x", j, t) for j in range(P1)]
    order += [("x", j, t) for j in range(P1, 10) for t in range(9)]
    issue = {}; gran = {}
    pend = list(order)
    for ep in [-2, -1] + list(range(NE)):
        n = 0
        while pend:
            it = pend[0]
            step = it[-1] if (it[0] == "q" or it[1] < P1) else 99
            lim = n0 if ep == -2 else (n1 if ep == -1 else min(ep + D + 1, n1 + 2*(ep+1)))
            if step < 99 and step >= lim: break
            if step == 99 and (lim < 9 or n >= cap): break
            if it[0] == "x":
                cands = sorted(g for g in free_at if free_at[g] <= ep)
                if not cands: break
                g = cands[0]; gran[it[1:]] = g
                free_at[g] = ep_of(fidx[(it[1], it[2], 1)]) + 1
                assert ep < need[it[1:]], (it, ep)
                n += 1
            else:
                assert ep < it[1] - 1 or it[1] == 0 or (it[1] == 1 and ep <= -1), (it, ep)
            issue[it] = ep; pend.pop(0)
    assert not pend
    if stamps or 1:
        sys.stderr.write("issue: " + " ".join("%d:[%s]" % (ep, ",".join(("q%d" % k[1] if k[0] == "q" else "%d.%d" % k[1:]) for k in order if issue[k] == ep)) for ep in [-2, -1] + list(range(NE))) + "\n")

    def xaddr(off, e_):
        return V_X + 2*(off >> 16) + e_, off & 0xffff

    for rh in range(2):
        p = Prog(a); pe = p.e
        if rh: a.lab("L_rh1")
        if prio and rh == 1: pe("s_setprio %d" % prio)
        dj_done = set()
        def mk_dj(j):
            if j in dj_done: return
            dj_done.add(j)
            d = S_DJ + j
            pe("s_add_u32 s%d, s%d, %d" % (d, S_B2, 2*j*18432)); pe("s_cmp_ge_u32 s%d, s%d" % (d, S_END))
            pe("s_cselect_b32 s%d, s%d, 0" % (S_U, S_SPAN)); pe("s_sub_u32 s%d, s%d, s%d" % (d, d, S_U))
            if j == 9:
                pe("s_add_u32 s%d, s%d, 18" % (S_U, S_JH)); pe("s_cmp_ge_u32 s%d, s%d" % (S_U, S_NB)); pe("s_cselect_b32 s%d, 0x40000000, s%d" % (d, d))
        def load_ops(ep):
            ops = []
            for it in order:
                if issue[it] != ep: continue
                if it[0] == "q":
                    t = it[1]
                    if (abl & 4) and t >= 1: continue
                    for j in range(4):
                        def f(j=j, t=t):
                            if j == 0: pe("s_mul_i32 s%d, s%d, 9216" % (S_QO, S_P+t))
                            r = V_W + 16*t + 4*j
                            p.vmem("buffer_load_dwordx4 v[%d:%d], v%d, s[%d:%d], s%d offen %s" % (r, r+3, V_QJ[j], S_Q, S_Q+3, S_QO, qpol), ("q", t, j))
                        ops.append(f)
                else:
                    j, t = it[1:]
                    if (j + t) % 2 != rh: continue
                    if (abl & 8) and t >= 1 and j < P1: continue
                    def f(j=j, t=t):
                        mk_dj(j)
                        pe("s_add_u32 m0, s%d, %d" % (S_W3L, gran[(j, t)]*4096))
                        pe("s_add_u32 s%d, s%d, s%d" % (S_T, S_DJ+j, S_P+t))
                        p.vmem("buffer_load_dwordx4 v%d, s[%d:%d], s%d offen lds %s" % (V_XD, S_X, S_X+3, S_T, xpol), ("x", need[(j, t)]))
                    ops.append(f)
            return ops
        for it in order:
            if issue[it] == -2 and it[0] == "x" and (it[1] + it[2]) % 2 == rh: mk_dj(it[1])
        if rh == 1:
            pe("v_mov_b32 v%d, 0x7fffffff" % V_T1); pe("v_cmp_gt_u32 vcc, 288, v0"); pe("s_nop 1"); pe("v_cndmask_b32 v%d, v%d, v%d, vcc" % (V_T0, V_T1, V_T0))
        pe("s_waitcnt lgkmcnt(0)")
        p.vmem("buffer_load_dwordx4 v[24:27], v%d, s[%d:%d], 0 offen" % (V_T0, S_S, S_S+3), "tab")
        p.vmem("buffer_load_dwordx4 v[28:31], v%d, s[%d:%d], 0 offen" % (V_T0, S_Z, S_Z+3), "tab")
        for f in load_ops(-2): f()
        if stamps and stamps < 3: a.stamp(1)
        pe("v_lshrrev_b32 v16, 2, v%d" % L); pe("v_mul_u32_u24 v16, 9216, v16"); pe("v_and_b32 v17, 3, v%d" % L); pe("v_lshl_add_u32 v16, v17, 4, v16")
        pe("s_lshr_b32 s%d, s%d, 4" % (S_T, S_W3L)); pe("s_lshl_b32 s%d, s3, 8" % S_U); pe("s_add_u32 s%d, s%d, s%d" % (S_T, S_T, S_U)); pe("v_add_u32 v%d, s%d, v16" % (V_OUT, S_T))
        pe("v_bfe_u32 v16, v%d, 2, 1" % I); pe("v_and_b32 v17, 3, v%d" % I); pe("v_lshlrev_b32 v17, 1, v17"); pe("v_lshrrev_b32 v18, 3, v%d" % I); pe("v_add_u32 v17, v17, v18")
        pe("v_lshlrev_b32 v17, 4, v17"); pe("v_lshl_add_u32 v17, v16, 10, v17"); pe("v_lshl_add_u32 v17, v%d, 7, v17" % G)
        pe("s_lshl_b32 s%d, s%d, 1" % (S_T, S_W3L)); pe("v_add_u32 v%d, s%d, v17" % (V_WR, S_T))
        pe("v_and_b32 v16, 7, v%d" % I); pe("v_lshlrev_b32 v16, 4, v16"); pe("v_lshl_add_u32 v17, v18, 3, v16"); pe("v_lshl_add_u32 v17, v%d, 7, v17" % G)
        pe("s_add_u32 s%d, s%d, %d" % (S_T, S_T, rh*8192)); pe("v_add_u32 v%d, s%d, v17" % (V_WA0, S_T))
        pe("s_lshr_b32 s%d, s%d, 3" % (S_T, S_W3L)); pe("s_add_u32 s%d, s%d, %d" % (S_T, S_T, rh*1024 + TAB)); pe("v_add_u32 v%d, s%d, v16" % (V_TAB, S_T))
        pe("v_lshrrev_b32 v16, 1, v%d" % I); pe("v_xor_b32 v16, v16, v%d" % G); pe("v_lshlrev_b32 v16, 4, v16"); pe("v_lshl_add_u32 v%d, v%d, 7, v16" % (V_X, I))
        if rh: pe("v_add_u32 v%d, 2048, v%d" % (V_X, V_X))
        pe("v_xor_b32 v%d, 64, v%d" % (V_X+1, V_X))
        for w_ in (1, 2):
            pe("v_add_u32 v%d, %d, v%d" % (V_X+2*w_, w_ << 16, V_X)); pe("v_add_u32 v%d, %d, v%d" % (V_X+2*w_+1, w_ << 16, V_X+1))
        pe("v_lshrrev_b32 v16, 4, v0"); pe("v_lshlrev_b32 v16, 10, v16"); pe("v_lshl_add_u32 v%d, v%d, 5, v16" % (V_T1, I))
        pe("s_mov_b32 s%d, 0x00ff00ff" % S_M8); pe("s_mov_b32 s%d, 0x00ff00ff" % (S_M8+1)); pe("s_not_b64 s[%d:%d], s[%d:%d]" % (S_M8N, S_M8N+1, S_M8, S_M8+1))
        pe("s_mov_b32 s%d, 0x0f0f0f0f" % S_M4); pe("s_mov_b32 s%d, 0x0f0f0f0f" % (S_M4+1)); pe("s_not_b64 s[%d:%d], s[%d:%d]" % (S_M4N, S_M4N+1, S_M4, S_M4+1))
        if rh == 1:
            pe("s_cmp_lg_u32 s%d, 4" % S_W); pe("s_cbranch_scc1 L_notab")
            pe("s_mov_b32 exec_hi, 0")
        sv = p.vmdone
        p.wait(vm=lambda x: x == "tab")
        for c in range(4):
            pe("v_lshlrev_b32 v%d, 16, v%d" % (32+2*c, 24+c)); pe("v_and_b32 v%d, 0xffff0000, v%d" % (33+2*c, 24+c))
            pe("v_lshlrev_b32 v%d, 16, v%d" % (40+2*c, 28+c)); pe("v_and_b32 v%d, 0xffff0000, v%d" % (41+2*c, 28+c))
        pe("ds_write_b128 v%d, v[32:35] offset:%d" % (V_T1, TAB)); pe("ds_write_b128 v%d, v[36:39] offset:%d" % (V_T1, TAB+16))
        for c in range(8): pe("v_mul_f32 v%d, -v%d, v%d" % (40+c, 40+c, 32+c))
        pe("ds_write_b128 v%d, v[40:43] offset:%d" % (V_T1, TAB+512)); pe("ds_write_b128 v%d, v[44:47] offset:%d" % (V_T1, TAB+528))
        pe("s_waitcnt lgkmcnt(0)")
        if rh == 1:
            pe("s_mov_b32 exec_hi, -1")
            a.lab("L_notab")
            p.vmdone = sv
        pe("s_barrier")
        def tab_reads(t):
            p.lds("ds_read_b128 v[%d:%d], v%d offset:%d" % (V_S, V_S+3, V_TAB, t*2048), ("t", t))
            p.lds("ds_read_b128 v[%d:%d], v%d offset:%d" % (V_NZ, V_NZ+3, V_TAB, t*2048+512), ("t", t))
        def dequant(t):
            R = V_W + 16*t
            ops = []
            for j in range(4):
                ops.append((0, lambda j=j: p.wait(vm=lambda x: x == ("q", t, j))))
                if not (abl & 129):
                    for c in range(4): ops.append((1, lambda x=4*j+c: pe("v_cvt_f32_i32 v%d, v%d" % (R+x, R+x))))
            ops.append((0, lambda: p.wait(lg=lambda x: x == ("t", t))))
            for c in range(4):
                if abl & 1:
                    if not (abl & 2): ops.append((0, lambda c=c: p.lds("ds_write_b64 v%d, v[%d:%d] offset:%d" % (V_WA0, V_PK+2*c, V_PK+2*c+1, WS[t % 2] + c*512), ("w", t))))
                    continue
                for j in range(4): ops.append((1, lambda x=4*j+c: pe("v_fma_f32 v%d, v%d, v%d, v%d" % (R+x, R+x, V_S+(x & 3), V_NZ+(x & 3)))))
                ops.append((1, lambda c=c: pe("v_cvt_pk_bf16_f32 v%d, v%d, v%d" % (V_PK+2*c, R+c, R+4+c))))
                ops.append((1, lambda c=c: pe("v_cvt_pk_bf16_f32 v%d, v%d, v%d" % (V_PK+2*c+1, R+8+c, R+12+c))))
                if not (abl & 2): ops.append((0, lambda c=c: p.lds("ds_write_b64 v%d, v[%d:%d] offset:%d" % (V_WA0, V_PK+2*c, V_PK+2*c+1, WS[t % 2] + c*512), ("w", t))))
            return ops
        def epilogue(acc, idx):
            ops = []
            def firstop():
                p.need_mfma_done(acc); p.need_mfma_done(acc+4)
                pe("v_cvt_pk_bf16_f32 v%d, v%d, v%d" % (V_D, acc, acc+4))
            ops.append((1, firstop))
            for r in range(1, 4): ops.append((1, lambda r=r: pe("v_cvt_pk_bf16_f32 v%d, v%d, v%d" % (V_D+r, acc+r, acc+4+r))))
            def dpp(d, s0, s1, ror): pe("v_cndmask_b32_dpp v%d, v%d, v%d, vcc row_ror:%d row_mask:0xf bank_mask:0xf" % (d, s0, s1, ror))
            ops.append((0, lambda: (pe("s_mov_b64 vcc, s[%d:%d]" % (S_M8, S_M8+1)), pe("s_add_u32 s%d, s%d, %d" % (S_EO, S_BASE, idx*18432)))))
            ops.append((1, lambda: dpp(V_E+0, V_D+2, V_D+0, 8)))
            ops.append((1, lambda: dpp(V_E+1, V_D+3, V_D+1, 8)))
            ops.append((0, lambda: (pe("s_mov_b64 vcc, s[%d:%d]" % (S_M8N, S_M8N+1)), pe("s_cmp_ge_u32 s%d, s%d" % (S_EO, S_END)), pe("s_cselect_b32 s%d, s%d, 0" % (S_INV, S_SPAN)))))
            ops.append((1, lambda: dpp(V_E+2, V_D+0, V_D+2, 8)))
            ops.append((1, lambda: dpp(V_E+3, V_D+1, V_D+3, 8)))
            ops.append((0, lambda: (pe("s_mov_b64 vcc, s[%d:%d]" % (S_M4, S_M4+1)), pe("s_sub_u32 s%d, s%d, s%d" % (S_EO, S_EO, S_INV)))))
            ops.append((1, lambda: dpp(V_O+0, V_E+1, V_E+0, 4)))
            ops.append((1, lambda: dpp(V_O+2, V_E+3, V_E+2, 4)))
            ops.append((0, lambda: (pe("s_mov_b64 vcc, s[%d:%d]" % (S_M4N, S_M4N+1)), pe("s_lshl_b32 s%d, s%d, 3" % (S_EO, S_EO)))))
            ops.append((1, lambda: dpp(V_O+1, V_E+0, V_E+1, 12)))
            ops.append((1, lambda: dpp(V_O+3, V_E+2, V_E+3, 12)))
            ops.append((0, lambda: p.vmem("buffer_store_dwordx4 v[%d:%d], v%d, s[%d:%d], s%d offen %s" % (V_O, V_O+3, V_OUT, S_O, S_O+3, S_EO, spol), "st")))
            return ops
        def guarantees(ep):
            p.wait(vm=lambda x: x[0] == "x" and x[1] <= ep, lg=lambda x: x == ("w", ep))
        tab_reads(0)
        lds_ = load_ops(-1)
        dq = dequant(0)
        k = 0
        for i, (c, f) in enumerate(dq):
            f()
            if c and i % 3 == 2 and k < len(lds_): lds_[k](); k += 1
        while k < len(lds_): lds_[k](); k += 1
        nF = len(frag_list) - (18 if rh else 0)
        def acc_of(j): return V_A1 + 8*j if j < P1 else V_S + 8*((j - P1) % 2)
        freg = {}
        def frag_read(f):
            j, t, e_ = frag_list[f]
            b = XF[f % len(XF)]
            r, o = xaddr(gran[(j, t)]*4096, e_)
            if not ((abl & 32) and f > 4): p.lds("ds_read_b128 v[%d:%d], v%d offset:%d" % (b, b+3, r, o), ("f", f))
            freg[f] = b
        dqq = []; dq_at = 0
        epq = []
        ldq = []; ld_at = 0
        m = 0; ntr = 0; cur_ep = -1; m_tr = 0
        def run_fill(budget):
            while dqq and m >= dq_at and (budget > 0 or dqq[0][0] == 0):
                c, f = dqq.pop(0); f(); budget -= c
            return budget
        def run_ep(budget):
            while epq and m >= epq[0][0] and (budget > 0 or epq[0][2][0][0] == 0):
                c, f = epq[0][2].pop(0); f(); budget -= c
                if not epq[0][2]: epq.pop(0)
        def flush_ep(upto_acc=None):
            while epq and (upto_acc is None or any(x[1] == upto_acc for x in epq)):
                c, f = epq[0][2].pop(0); f()
                if not epq[0][2]: epq.pop(0)
        for f in range(nF):
            j, t, e_ = frag_list[f]
            if f in bpos:
                ep = bpos.index(f)
                while ldq: ldq.pop(0)()
                while dqq: dqq.pop(0)[1]()
                if rh == trh and ep == trace + 1 and trace >= 0: a.cstamp(ntr, TR); ntr += 1
                guarantees(ep)
                if rh == trh and ep == trace + 1 and trace >= 0: a.cstamp(ntr, TR); ntr += 1
                if not ((abl & 64) and 1 <= ep <= 8): pe("s_barrier")
                if rh == trh and ep in (trace, trace + 1) and trace >= 0: a.cstamp(ntr, TR); ntr += 1; m_tr = m
                cur_ep = ep
                if stamps and stamps < 3 and ep in (0, smid, 9):
                    a.stamp({0: 2, smid: 3, 9: 4}[ep]); p.lg_all()
                if ep <= 8 and not ((abl & 16) and ep >= 1):
                    for ks in range(2):
                        for c in range(2):
                            r = V_W + 16*ep + 8*ks + 4*c
                            p.lds("ds_read_b128 v[%d:%d], v%d offset:%d" % (r, r+3, V_WR, WS[ep % 2] + ks*8192 + c*512), ("W", ep, ks, c))
                if ep == 0:
                    for f2 in range(pf): frag_read(f2)
                if ep + 1 <= 8:
                    if not (abl & 16): tab_reads(ep+1)
                    dqq = dequant(ep+1); dq_at = m + (dq1 if rh else dq0)
                ldq = load_ops(ep)
                nM = 2*((bpos[ep+1] if ep+1 < NE else nF) - f)
                n_ = len(ldq)
                ldpos = [m + ld0 + int((i + 0.5*rh + 0.25) * (nM - ld0 - ldm) / max(n_, 1)) for i in range(n_)]
            if rh == 0 and f == fidx[(9, 0, 0)]:
                pe("s_cmp_eq_u32 s%d, 18" % S_NB); pe("s_cbranch_scc1 L_skip")
                skip_state = ([(x[1], x[3]) for x in epq], [len(x[2]) for x in epq], dict(p.lastmf), p.n)
            if f + pf < nF: frag_read(f + pf)
            acc = acc_of(j)
            if j >= P1 and t == 0 and e_ == 0: flush_ep(acc)
            for c in range(2):
                W0 = V_W + 16*t + 8*e_ + 4*c
                p.wait(lg=lambda x: x == ("f", f) or x == ("W", t, e_, c))
                p.mfma(acc + 4*c, freg[f], W0, t == 0 and e_ == 0)
                m += 1
                while ldq and m >= ldpos[0]: ldq.pop(0)(); ldpos.pop(0)
                if rh == trh and cur_ep == trace and (m - m_tr) % tstep == 0 and ntr < len(TR) - 3: a.cstamp(ntr, TR); ntr += 1
                b = run_fill(per1)
                if not dqq: run_ep(min(b, per2))
            if t == 8 and e_ == 1:
                epq.append([m + epd, acc, epilogue(acc, 2*j + rh), 2*j + rh])
        assert not ldq and not dqq
        flush_ep()
        if rh == 0:
            pe("s_branch L_end")
            a.lab("L_skip")
            lst, lens, lm, n_ = skip_state
            p.lastmf = {k: p.n - (n_ - v) for k, v in lm.items()}
            for (acc, idx), ln in zip(lst, lens):
                ops = epilogue(acc, idx)
                for c, f in ops[len(ops)-ln:]: f()
            a.lab("L_end")
        if stamps == 3 and rh == trh:
            sys.stderr.write("trace stamps: %d\n" % ntr)
            a.dump_regs(TR[:ntr], 36, 256*trh)
        if stamps and stamps < 3 and rh == 0:
            a.stamp(5)
            pe("s_waitcnt vmcnt(0)")
            a.stamp(6)
            if stamps == 2: a.dbg_stamps(7, 36)
            else: a.dump_stamps(7, 36, vtmp=0)
        pe("s_endpgm")
    a.lab("L_done")
    e("s_endpgm")
    a.descriptor(KN, 256, 102, 256)
    a.write(path)

if __name__ == "__main__":
    kw = dict(s.split("=") for s in sys.argv[2:])
    for k in kw:
        if k in ("spol", "qpol", "xpol"): kw[k] = kw[k].replace("+", " ").replace("plain", "")
        else: kw[k] = int(kw[k])
    build(sys.argv[1], **kw)
```

```python
import sys
from asmlib import *

V_Q, V_XD, V_OUT, V_WR, V_WA0, V_WA1, V_TAB = 1, 2, 3, 4, 5, 6, 7
V_X = 8
V_T0, V_T1 = 14, 15
V_QJ = [1, 109, 110, 111]
V_S, V_NZ, V_PK = 32, 36, 40
V_D, V_E, V_O = 48, 52, 56
V_A1 = 60
V_W = 112
S_X, S_Q, S_S, S_Z, S_O, S_WS = 16, 20, 24, 28, 32, 36
S_P = 40
S_INV = 49
S_BASE, S_END, S_SPAN, S_B2, S_W3L, S_NB, S_W = 50, 51, 52, 53, 54, 55, 56
S_T, S_U, S_QO, S_EO = 57, 58, 59, 14
S_DJ = 60
S_M8, S_M8N, S_M4, S_M4N = 90, 92, 94, 96
S_PAN, S_CH, S_JH, S_RH, S_ROT = 3, 98, 99, 100, 101

class Prog:
    def __init__(self, a):
        self.a = a; self.vm = []; self.lg = []; self.vmdone = 0; self.lgdone = 0; self.n = 0
        self.lastmf = {}
    def e(self, s):
        self.a.e(s); self.n += 1
    def vmem(self, s, tag): self.e(s); self.vm.append(tag)
    def lds(self, s, tag): self.e(s); self.lg.append(tag)
    def _cnt(self, lst, done, pred):
        for i in range(len(lst)-1, done-1, -1):
            if pred(lst[i]): return i
        return -1
    def wait(self, vm=None, lg=None):
        parts = []
        if vm is not None:
            idx = self._cnt(self.vm, self.vmdone, vm)
            if idx >= 0:
                n = min(len(self.vm)-1-idx, 63)
                parts.append("vmcnt(%d)" % n); self.vmdone = len(self.vm) - n
        if lg is not None:
            idx = self._cnt(self.lg, self.lgdone, lg)
            if idx >= 0:
                n = min(len(self.lg)-1-idx, 15)
                parts.append("lgkmcnt(%d)" % n); self.lgdone = len(self.lg) - n
        if parts: self.e("s_waitcnt " + " ".join(parts))
    def lg_all(self):
        self.e("s_waitcnt lgkmcnt(0)"); self.lgdone = len(self.lg)
    def mfma(self, d, x, w, first):
        c = "0" if first else "v[%d:%d]" % (d, d+3)
        self.e("v_mfma_f32_16x16x32_bf16 v[%d:%d], v[%d:%d], v[%d:%d], %s" % (d, d+3, x, x+3, w, w+3, c))
        self.lastmf[d] = self.n
    def need_mfma_done(self, d):
        if d in self.lastmf:
            gap = self.n - self.lastmf[d]
            if gap < 8: self.e("s_nop %d" % (8-gap-1))

def build(path, b1=12, D=3, n0=1, spol="nt", stamps=0, krot=1, rrot=4, dq0=0, dq1=0, per1=2, per2=2, cap=12, prio=0, pf=3,
          ld0=0, ldm=2, n1=2, epd=4, smid=4, qpol="", xpol="", abl=0, trace=-1, trh=0, tstep=4, early=0, qa=0, fseg=0, r9=0, hw=0, hw1=-1, tabe=0, xs=0, xs2=0, wst=1):
    a = Asm(); e = a.e
    KN = NAME + "_kernel"
    P1 = b1 // 2
    assert b1 % 2 == 0 and P1 <= 6
    assert pf <= 3
    XF = [16, 20, 24, 28][:pf+1]
    a.header(["; @launch grid=(256,1,1) block=(512,1,1) lds=%d" % (160*1024)])
    a.kernel_start(KN)
    TR = [70, 72, 74, 76, 78, 80, 82, 84, 86, 88, 4, 6, 8, 10, 12]
    if trace >= 0: stamps = 3
    if stamps and stamps < 3: a.stamp(0)
    e("s_cmp_ge_u32 s2, 256"); e("s_cbranch_scc1 L_done")
    e("s_load_dwordx2 s[%d:%d], s[0:1], 16" % (S_S, S_S+1))
    e("s_load_dwordx2 s[%d:%d], s[0:1], 24" % (S_Z, S_Z+1))
    e("s_load_dwordx2 s[%d:%d], s[0:1], 8" % (S_Q, S_Q+1))
    e("s_load_dwordx2 s[%d:%d], s[0:1], 0" % (S_X, S_X+1))
    e("s_load_dwordx2 s[%d:%d], s[0:1], 32" % (S_O, S_O+1))
    if stamps: e("s_load_dwordx2 s[36:37], s[0:1], %d" % (40 if stamps == 2 else 48))
    e("s_and_b32 s3, s2, 1"); e("s_lshl_b32 s3, s3, 5"); e("s_lshr_b32 s98, s2, 3"); e("s_add_u32 s3, s3, s98")
    e("s_cmp_eq_u32 s3, 63"); e("s_cbranch_scc1 L_done")
    e("v_lshrrev_b32 v1, 6, v0")
    e("s_mul_i32 s98, s3, 37"); e("s_lshr_b32 s98, s98, 8")
    e("v_readfirstlane_b32 s%d, v1" % S_W)
    e("s_mul_i32 s99, s98, 7"); e("s_sub_u32 s99, s3, s99")
    e("s_bfe_u32 s3, s2, 0x20001"); e("s_mul_i32 s3, s3, 9"); e("s_add_u32 s3, s3, s98")
    e("s_cmp_lt_u32 s99, 2"); e("s_cselect_b32 s%d, 19, 18" % S_NB)
    e("s_min_u32 s100, s99, 2"); e("s_mul_i32 s101, s99, 18"); e("s_add_u32 s100, s100, s101")
    e("s_add_u32 s101, s100, s%d" % S_NB); e("s_mul_i32 s%d, s101, 18432" % S_END)
    e("s_mul_i32 s%d, s%d, 18432" % (S_SPAN, S_NB))
    if rrot:
        e("s_sub_u32 s101, s98, 5"); e("s_cmp_ge_u32 s98, 5"); e("s_cselect_b32 s101, s101, s98"); e("s_mul_i32 s101, s101, %d" % rrot)
        e("s_add_u32 s100, s100, s101")
    e("s_mul_i32 s%d, s100, 18432" % S_BASE)
    if early:
        e("s_add_u32 s101, s99, s3"); e("s_mul_i32 s100, s101, 37"); e("s_lshr_b32 s100, s100, 8"); e("s_mul_i32 s100, s100, 7")
        e("s_sub_u32 s101, s101, s100"); e("s_add_u32 s101, s101, 2")
        e("s_mov_b32 s%d, 0" % S_P); e("s_movk_i32 s%d, 128" % (S_P+1))
        for t in range(2, 8):
            e("s_cmp_le_u32 s101, %d" % t); e("s_cselect_b32 s%d, %d, %d" % (S_P+t, 64*(t+1), 64*t) if 0 else "s_cselect_b32 s%d, 128, 0" % (S_P+t)); e("s_add_u32 s%d, s%d, %d" % (S_P+t, S_P+t, 128*t))
        e("s_lshl_b32 s%d, s101, 7" % (S_P+8))
    else:
      if krot:
        e("s_lshl_b32 s101, s98, 1"); e("s_add_u32 s101, s101, s99")
        if r9:
            e("s_cmp_ge_u32 s99, 4"); e("s_addc_u32 s101, s101, 0")
        for _ in range(2):
            e("s_sub_u32 s100, s101, 9"); e("s_cmp_ge_u32 s101, 9"); e("s_cselect_b32 s101, s100, s101")
      else:
        e("s_mov_b32 s101, 0")
      e("s_lshl_b32 s%d, s101, 7" % S_P)
      for t in range(1, 9):
        e("s_add_u32 s%d, s%d, 128" % (S_P+t, S_P+t-1)); e("s_cmp_eq_u32 s%d, 1152" % (S_P+t)); e("s_cselect_b32 s%d, 0, s%d" % (S_P+t, S_P+t))
    for (sr, nb_) in ((S_S, 18*N*2), (S_Z, 18*N*2), (S_Q, K*N*4), (S_X, M*K*2), (S_O, M*N*2)):
        e("s_mov_b32 s%d, %d" % (sr+2, nb_)); e("s_mov_b32 s%d, 0x00020000" % (sr+3))
    if stamps:
        e("s_mov_b32 s38, %s" % ("256" if stamps == 2 else "0x10000000")); e("s_mov_b32 s39, 0x00020000")
    L, I, G = 20, 21, 22
    e("v_and_b32 v%d, 63, v0" % L); e("v_and_b32 v%d, 15, v0" % I); e("v_bfe_u32 v%d, v0, 4, 2" % G)
    e("s_and_b32 s98, s%d, 1" % S_W)
    e("s_bfe_u32 s99, s%d, 0x10001" % S_W)
    e("s_lshr_b32 s100, s%d, 2" % S_W)
    if early:
        e("v_lshrrev_b32 v23, 5, v0"); e("v_mov_b32 v25, s101"); e("v_cmp_le_u32 vcc, s101, v23"); e("v_add_u32 v24, 1, v23"); e("s_nop 0")
        e("v_cndmask_b32 v24, v23, v24, vcc"); e("v_cmp_eq_u32 vcc, 8, v23"); e("s_nop 1"); e("v_cndmask_b32 v23, v24, v25, vcc")
    else:
        e("v_lshrrev_b32 v23, 5, v0"); e("v_add_u32 v23, s101, v23"); e("v_subrev_u32 v24, 9, v23"); e("v_min_u32 v23, v23, v24")
    e("v_and_b32 v24, 1, v%d" % G); e("v_lshl_add_u32 v23, v23, 1, v24"); e("v_mul_u32_u24 v23, 9216, v23")
    e("v_lshl_add_u32 v23, v%d, 4, v23" % I); e("s_lshl_b32 s%d, s3, 8" % S_T); e("v_add_u32 v%d, s%d, v23" % (V_T0, S_T))
    e("s_mul_i32 s%d, s100, %d" % (S_T, 32*18432)); e("s_lshl_b32 s%d, s3, 9" % S_U); e("s_add_u32 s%d, s%d, s%d" % (S_T, S_T, S_U))
    e("s_and_b32 s%d, s%d, 3" % (S_U, S_W)); e("s_lshl_b32 s%d, s%d, 7" % (S_U, S_U)); e("s_add_u32 s%d, s%d, s%d" % (S_T, S_T, S_U))
    e("v_lshrrev_b32 v23, 3, v%d" % L); e("v_mul_u32_u24 v23, %d, v23" % (4*18432)); e("v_and_b32 v24, 7, v%d" % L)
    e("v_lshl_add_u32 v23, v24, 4, v23"); e("v_add_u32 v%d, s%d, v23" % (V_QJ[0], S_T))
    for j in range(1, 4): e("v_add_u32 v%d, %d, v%d" % (V_QJ[j], 18432*j, V_QJ[0]))
    e("s_lshl_b32 s%d, s98, 2" % S_T); e("v_add_u32 v23, s%d, v%d" % (S_T, G)); e("v_and_b32 v24, 7, v%d" % L); e("v_xor_b32 v23, v23, v24")
    e("v_lshrrev_b32 v24, 3, v%d" % L); e("v_mul_u32_u24 v24, 1152, v24"); e("v_lshl_add_u32 v%d, v23, 4, v24" % V_XD)
    e("s_mul_i32 s%d, s98, 9216" % S_T); e("v_add_u32 v%d, s%d, v%d" % (V_XD, S_T, V_XD))
    e("s_mul_i32 s%d, s99, 18432" % S_T); e("s_add_u32 s%d, s%d, s%d" % (S_B2, S_BASE, S_T))
    e("s_lshl_b32 s%d, s%d, 10" % (S_W3L, S_W)); e("s_and_b32 s%d, s%d, 0xc00" % (S_W3L, S_W3L))
    e("s_cmp_lg_u32 s100, 0"); e("s_cbranch_scc1 L_rh1")

    TAB = 0
    WS = [5*4096, 9*4096]
    frag_list = [(j, t, e_) for t in range(9) for j in range(P1) for e_ in range(2)] + [(j, t, e_) for j in range(P1, 10) for t in range(9) for e_ in range(2)]
    fidx = {k: i for i, k in enumerate(frag_list)}
    NE = 9 + (10 - P1)
    first = [fidx[(0, t, 0)] for t in range(9)] + [fidx[(j, 0, 0)] for j in range(P1, 10)]
    bpos = [0] + [first[ep] - pf for ep in range(1, NE)]
    def ep_of(f): return max(ep for ep in range(NE) if bpos[ep] <= f)
    need = {(j, t): (t if j < P1 else 9 + j - P1) for j in range(10) for t in range(9)}
    free_at = {g: -99 for g in range(13, 40)}
    for g in range(0, 5): free_at[g] = 8
    for g in range(5, 9): free_at[g] = 9
    for g in range(9, 13): free_at[g] = 8
    order = []
    for t in range(9 + qa if qa else 0):
        if t - qa >= 0: order += [("x", j, t - qa) for j in range(P1)]
        if t < 9: order.append(("q", t))
    if qa:
        order.remove(("q", 0)); order.insert(0, ("q", 0))
        i0 = [("x", j, 0) for j in range(P1)]
        for it in i0: order.remove(it)
        order[1:1] = i0
    for t in range(0 if qa else 9):
        if t == 2 and early:
            order.append(("q", 8))
            if early >= 2: order += [("x", j, 8) for j in range(P1)]
        if not (early and t == 8): order.append(("q", t))
        if not (early >= 2 and t == 8): order += [("x", j, t) for j in range(P1)]
    order += [("x", j, t) for j in range(P1, 10) for t in range(9)]
    def pos_of(it):
        t = it[-1]
        if qa: return t if it[0] == "x" else (0 if t == 0 else max(t - qa, 1 if n0 == 1 else 0))
        if not early: return t
        if t == 8 and (it[0] == "q" or early >= 2): return 2
        return t if t < 2 else t + 1
    issue = {}; gran = {}
    pend = list(order)
    for ep in [-2, -1] + list(range(NE)):
        n = 0
        while pend:
            it = pend[0]
            step = pos_of(it) if (it[0] == "q" or it[1] < P1) else 99
            lim = n0 if ep == -2 else (n1 if ep == -1 else min(ep + D + 1 + (1 if early else 0), n1 + 2*(ep+1)))
            if step < 99 and step >= lim: break
            if step == 99 and (lim < 9 or n >= cap): break
            if it[0] == "x":
                cands = sorted(g for g in free_at if free_at[g] <= ep)
                if not cands: break
                g = cands[0]; gran[it[1:]] = g
                free_at[g] = ep_of(fidx[(it[1], it[2], 1)]) + 1
                assert ep < need[it[1:]], (it, ep)
                n += 1
            else:
                assert ep < it[1] - 1 or it[1] == 0 or (it[1] == 1 and ep <= -1), (it, ep)
            issue[it] = ep; pend.pop(0)
    assert not pend
    if stamps or 1:
        sys.stderr.write("issue: " + " ".join("%d:[%s]" % (ep, ",".join(("q%d" % k[1] if k[0] == "q" else "%d.%d" % k[1:]) for k in order if issue[k] == ep)) for ep in [-2, -1] + list(range(NE))) + "\n")

    def xowner(j, t):
        ep = issue[("x", j, t)]
        if ep < 0: return (j + t) % 2
        lst = [it for it in order if it[0] == "x" and issue[it] == ep]
        i = lst.index(("x", j, t)); n = len(lst)
        x_ = xs if ep < 9 else xs2
        if x_ == 0: return (j + t) % 2
        return 0 if ((i+1)*x_)//6 != (i*x_)//6 else 1
    def xaddr(off, e_):
        return V_X + 2*(off >> 16) + e_, off & 0xffff

    for rh in range(2):
        p = Prog(a); pe = p.e
        if rh: a.lab("L_rh1")
        if prio and rh == 1: pe("s_setprio %d" % prio)
        dj_done = set()
        def mk_dj(j):
            if j in dj_done: return
            dj_done.add(j)
            d = S_DJ + j
            pe("s_add_u32 s%d, s%d, %d" % (d, S_B2, 2*j*18432)); pe("s_cmp_ge_u32 s%d, s%d" % (d, S_END))
            pe("s_cselect_b32 s%d, s%d, 0" % (S_U, S_SPAN)); pe("s_sub_u32 s%d, s%d, s%d" % (d, d, S_U))
            if j == 9:
                pe("s_add_u32 s%d, s%d, 18" % (S_U, S_JH)); pe("s_cmp_ge_u32 s%d, s%d" % (S_U, S_NB)); pe("s_cselect_b32 s%d, 0x40000000, s%d" % (d, d))
        def load_ops(ep):
            ops = []
            for it in order:
                if issue[it] != ep: continue
                if it[0] == "q":
                    t = it[1]
                    if (abl & 4) and t >= 1: continue
                    for j in range(4):
                        def f(j=j, t=t):
                            if j == 0: pe("s_mul_i32 s%d, s%d, 9216" % (S_QO, S_P+t))
                            r = V_W + 16*t + 4*j
                            p.vmem("buffer_load_dwordx4 v[%d:%d], v%d, s[%d:%d], s%d offen %s" % (r, r+3, V_QJ[j], S_Q, S_Q+3, S_QO, qpol), ("q", t, j))
                        ops.append(f)
                else:
                    j, t = it[1:]
                    if xowner(j, t) != rh: continue
                    if (abl & 8) and t >= 1 and j < P1: continue
                    def f(j=j, t=t):
                        mk_dj(j)
                        pe("s_add_u32 m0, s%d, %d" % (S_W3L, gran[(j, t)]*4096))
                        pe("s_add_u32 s%d, s%d, s%d" % (S_T, S_DJ+j, S_P+t))
                        p.vmem("buffer_load_dwordx4 v%d, s[%d:%d], s%d offen lds %s" % (V_XD, S_X, S_X+3, S_T, xpol), ("x", need[(j, t)]))
                    ops.append(f)
            return ops
        for it in order:
            if issue[it] == -2 and it[0] == "x" and xowner(it[1], it[2]) == rh: mk_dj(it[1])
        if rh == 1:
            pe("v_mov_b32 v%d, 0x7fffffff" % V_T1); pe("v_cmp_gt_u32 vcc, 288, v0"); pe("s_nop 1"); pe("v_cndmask_b32 v%d, v%d, v%d, vcc" % (V_T0, V_T1, V_T0))
        pe("s_waitcnt lgkmcnt(0)")
        p.vmem("buffer_load_dwordx4 v[24:27], v%d, s[%d:%d], 0 offen" % (V_T0, S_S, S_S+3), "tab")
        p.vmem("buffer_load_dwordx4 v[28:31], v%d, s[%d:%d], 0 offen" % (V_T0, S_Z, S_Z+3), "tab")
        for f in load_ops(-2): f()
        if stamps and stamps < 3: a.stamp(1)
        pe("v_lshrrev_b32 v16, 2, v%d" % L); pe("v_mul_u32_u24 v16, 9216, v16"); pe("v_and_b32 v17, 3, v%d" % L); pe("v_lshl_add_u32 v16, v17, 4, v16")
        pe("s_lshr_b32 s%d, s%d, 4" % (S_T, S_W3L)); pe("s_lshl_b32 s%d, s3, 8" % S_U); pe("s_add_u32 s%d, s%d, s%d" % (S_T, S_T, S_U)); pe("v_add_u32 v%d, s%d, v16" % (V_OUT, S_T))
        if fseg == 128:
            pe("v_lshrrev_b32 v16, 3, v%d" % L); pe("v_mul_u32_u24 v16, 9216, v16"); pe("v_and_b32 v17, 7, v%d" % L); pe("v_lshl_add_u32 v16, v17, 4, v16")
            pe("s_and_b32 s%d, s%d, 1" % (S_T, S_W)); pe("s_lshl_b32 s%d, s%d, 7" % (S_T, S_T)); pe("s_add_u32 s%d, s%d, s%d" % (S_U, S_T, S_U))
            pe("s_bfe_u32 s%d, s%d, 0x10001" % (S_T, S_W)); pe("s_mul_i32 s%d, s%d, %d" % (S_T, S_T, 8*9216)); pe("s_add_u32 s%d, s%d, s%d" % (S_T, S_T, S_U)); pe("v_add_u32 v%d, s%d, v16" % (V_OUT, S_T))
        if fseg == 256:
            pe("v_lshrrev_b32 v16, 4, v%d" % L); pe("v_mul_u32_u24 v16, 9216, v16"); pe("v_and_b32 v17, 15, v%d" % L); pe("v_lshl_add_u32 v16, v17, 4, v16")
            pe("s_and_b32 s%d, s%d, 3" % (S_T, S_W)); pe("s_mul_i32 s%d, s%d, %d" % (S_T, S_T, 4*9216)); pe("s_add_u32 s%d, s%d, s%d" % (S_T, S_T, S_U)); pe("v_add_u32 v%d, s%d, v16" % (V_OUT, S_T))
        pe("v_bfe_u32 v16, v%d, 2, 1" % I); pe("v_and_b32 v17, 3, v%d" % I); pe("v_lshlrev_b32 v17, 1, v17"); pe("v_lshrrev_b32 v18, 3, v%d" % I); pe("v_add_u32 v17, v17, v18")
        pe("v_lshlrev_b32 v17, 4, v17"); pe("v_lshl_add_u32 v17, v16, 10, v17"); pe("v_lshl_add_u32 v17, v%d, 7, v17" % G)
        pe("s_lshl_b32 s%d, s%d, 1" % (S_T, S_W3L)); pe("v_add_u32 v%d, s%d, v17" % (V_WR, S_T))
        pe("v_and_b32 v16, 7, v%d" % I); pe("v_lshlrev_b32 v16, 4, v16"); pe("v_lshl_add_u32 v17, v18, 3, v16"); pe("v_lshl_add_u32 v17, v%d, 7, v17" % G)
        pe("s_add_u32 s%d, s%d, %d" % (S_T, S_T, rh*8192)); pe("v_add_u32 v%d, s%d, v17" % (V_WA0, S_T))
        pe("s_lshr_b32 s%d, s%d, 3" % (S_T, S_W3L)); pe("s_add_u32 s%d, s%d, %d" % (S_T, S_T, rh*1024 + TAB)); pe("v_add_u32 v%d, s%d, v16" % (V_TAB, S_T))
        pe("v_lshrrev_b32 v16, 1, v%d" % I); pe("v_xor_b32 v16, v16, v%d" % G); pe("v_lshlrev_b32 v16, 4, v16"); pe("v_lshl_add_u32 v%d, v%d, 7, v16" % (V_X, I))
        if rh: pe("v_add_u32 v%d, 2048, v%d" % (V_X, V_X))
        pe("v_xor_b32 v%d, 64, v%d" % (V_X+1, V_X))
        for w_ in (1, 2):
            pe("v_add_u32 v%d, %d, v%d" % (V_X+2*w_, w_ << 16, V_X)); pe("v_add_u32 v%d, %d, v%d" % (V_X+2*w_+1, w_ << 16, V_X+1))
        pe("v_lshrrev_b32 v16, 4, v0"); pe("v_lshlrev_b32 v16, 10, v16"); pe("v_lshl_add_u32 v%d, v%d, 5, v16" % (V_T1, I))
        pe("s_mov_b32 s%d, 0x00ff00ff" % S_M8); pe("s_mov_b32 s%d, 0x00ff00ff" % (S_M8+1)); pe("s_not_b64 s[%d:%d], s[%d:%d]" % (S_M8N, S_M8N+1, S_M8, S_M8+1))
        pe("s_mov_b32 s%d, 0x0f0f0f0f" % S_M4); pe("s_mov_b32 s%d, 0x0f0f0f0f" % (S_M4+1)); pe("s_not_b64 s[%d:%d], s[%d:%d]" % (S_M4N, S_M4N+1, S_M4, S_M4+1))
        if rh == 1:
            pe("s_cmp_lg_u32 s%d, 4" % S_W); pe("s_cbranch_scc1 L_notab")
            pe("s_mov_b32 exec_hi, 0")
        sv = p.vmdone
        p.wait(vm=lambda x: x == "tab")
        for c in range(4):
            pe("v_lshlrev_b32 v%d, 16, v%d" % (32+2*c, 24+c)); pe("v_and_b32 v%d, 0xffff0000, v%d" % (33+2*c, 24+c))
            pe("v_lshlrev_b32 v%d, 16, v%d" % (40+2*c, 28+c)); pe("v_and_b32 v%d, 0xffff0000, v%d" % (41+2*c, 28+c))
        pe("ds_write_b128 v%d, v[32:35] offset:%d" % (V_T1, TAB)); pe("ds_write_b128 v%d, v[36:39] offset:%d" % (V_T1, TAB+16))
        for c in range(8): pe("v_mul_f32 v%d, -v%d, v%d" % (40+c, 40+c, 32+c))
        pe("ds_write_b128 v%d, v[40:43] offset:%d" % (V_T1, TAB+512)); pe("ds_write_b128 v%d, v[44:47] offset:%d" % (V_T1, TAB+528))
        pe("s_waitcnt lgkmcnt(0)")
        if rh == 1:
            pe("s_mov_b32 exec_hi, -1")
            a.lab("L_notab")
            p.vmdone = sv
        pe("s_barrier")
        def tab_reads(t):
            p.lds("ds_read_b128 v[%d:%d], v%d offset:%d" % (V_S, V_S+3, V_TAB, t*2048), ("t", t))
            p.lds("ds_read_b128 v[%d:%d], v%d offset:%d" % (V_NZ, V_NZ+3, V_TAB, t*2048+512), ("t", t))
        def dequant(t):
            R = V_W + 16*t
            ops = []
            for j in range(4):
                ops.append((0, lambda j=j: p.wait(vm=lambda x: x == ("q", t, j))))
                if not (abl & 129):
                    for c in range(4): ops.append((1, lambda x=4*j+c: pe("v_cvt_f32_i32 v%d, v%d" % (R+x, R+x))))
            ops.append((0, lambda: p.wait(lg=lambda x: x == ("t", t))))
            for c in range(4):
                if abl & 1:
                    if not (abl & 2): ops.append((0, lambda c=c: p.lds("ds_write_b64 v%d, v[%d:%d] offset:%d" % (V_WA0, V_PK+2*c, V_PK+2*c+1, WS[t % 2] + c*512), ("w", t))))
                    continue
                for j in range(4): ops.append((1, lambda x=4*j+c: pe("v_fma_f32 v%d, v%d, v%d, v%d" % (R+x, R+x, V_S+(x & 3), V_NZ+(x & 3)))))
                ops.append((1, lambda c=c: pe("v_cvt_pk_bf16_f32 v%d, v%d, v%d" % (V_PK+2*c, R+c, R+4+c))))
                ops.append((1, lambda c=c: pe("v_cvt_pk_bf16_f32 v%d, v%d, v%d" % (V_PK+2*c+1, R+8+c, R+12+c))))
                if not (abl & 2): ops.append((0, lambda c=c: p.lds("ds_write_b64 v%d, v[%d:%d] offset:%d" % (V_WA0, V_PK+2*c, V_PK+2*c+1, WS[t % 2] + c*512), ("w", t))))
            return ops
        def epilogue(acc, idx):
            ops = []
            def firstop():
                p.need_mfma_done(acc); p.need_mfma_done(acc+4)
                pe("v_cvt_pk_bf16_f32 v%d, v%d, v%d" % (V_D, acc, acc+4))
            ops.append((1, firstop))
            for r in range(1, 4): ops.append((1, lambda r=r: pe("v_cvt_pk_bf16_f32 v%d, v%d, v%d" % (V_D+r, acc+r, acc+4+r))))
            def dpp(d, s0, s1, ror): pe("v_cndmask_b32_dpp v%d, v%d, v%d, vcc row_ror:%d row_mask:0xf bank_mask:0xf" % (d, s0, s1, ror))
            ops.append((0, lambda: (pe("s_mov_b64 vcc, s[%d:%d]" % (S_M8, S_M8+1)), pe("s_add_u32 s%d, s%d, %d" % (S_EO, S_BASE, idx*18432)))))
            ops.append((1, lambda: dpp(V_E+0, V_D+2, V_D+0, 8)))
            ops.append((1, lambda: dpp(V_E+1, V_D+3, V_D+1, 8)))
            ops.append((0, lambda: (pe("s_mov_b64 vcc, s[%d:%d]" % (S_M8N, S_M8N+1)), pe("s_cmp_ge_u32 s%d, s%d" % (S_EO, S_END)), pe("s_cselect_b32 s%d, s%d, 0" % (S_INV, S_SPAN)))))
            ops.append((1, lambda: dpp(V_E+2, V_D+0, V_D+2, 8)))
            ops.append((1, lambda: dpp(V_E+3, V_D+1, V_D+3, 8)))
            ops.append((0, lambda: (pe("s_mov_b64 vcc, s[%d:%d]" % (S_M4, S_M4+1)), pe("s_sub_u32 s%d, s%d, s%d" % (S_EO, S_EO, S_INV)))))
            ops.append((1, lambda: dpp(V_O+0, V_E+1, V_E+0, 4)))
            ops.append((1, lambda: dpp(V_O+2, V_E+3, V_E+2, 4)))
            ops.append((0, lambda: (pe("s_mov_b64 vcc, s[%d:%d]" % (S_M4N, S_M4N+1)), pe("s_lshl_b32 s%d, s%d, 3" % (S_EO, S_EO)))))
            ops.append((1, lambda: dpp(V_O+1, V_E+0, V_E+1, 12)))
            ops.append((1, lambda: dpp(V_O+3, V_E+2, V_E+3, 12)))
            if not (abl & 256) or ((abl & 512) and idx >= 12): ops.append((0, lambda: p.vmem("buffer_store_dwordx4 v[%d:%d], v%d, s[%d:%d], s%d offen %s" % (V_O, V_O+3, V_OUT, S_O, S_O+3, S_EO, spol), "st")))
            return ops
        def guarantees(ep):
            p.wait(vm=lambda x: x[0] == "x" and x[1] <= ep, lg=lambda x: x == ("w", ep))
        tab_reads(0)
        lds_ = load_ops(-1)
        dq = dequant(0)
        k = 0
        for i, (c, f) in enumerate(dq):
            f()
            if c and i % 3 == 2 and k < len(lds_): lds_[k](); k += 1
        while k < len(lds_): lds_[k](); k += 1
        nF = len(frag_list) - (18 if rh else 0)
        def acc_of(j): return V_A1 + 8*j if j < P1 else V_S + 8*((j - P1) % 2)
        freg = {}
        def frag_read(f):
            j, t, e_ = frag_list[f]
            b = XF[f % len(XF)]
            r, o = xaddr(gran[(j, t)]*4096, e_)
            if not ((abl & 32) and f > 4): p.lds("ds_read_b128 v[%d:%d], v%d offset:%d" % (b, b+3, r, o), ("f", f))
            freg[f] = b
        dqq = []; dq_at = 0
        epq = []
        ldq = []; ld_at = 0
        m = 0; ntr = 0; cur_ep = -1; m_tr = 0; hq = []
        def run_fill(budget):
            while dqq and m >= dq_at and (budget > 0 or dqq[0][0] == 0):
                c, f = dqq.pop(0); f(); budget -= c
            return budget
        def run_ep(budget):
            while epq and m >= epq[0][0] and (budget > 0 or epq[0][2][0][0] == 0):
                c, f = epq[0][2].pop(0); f(); budget -= c
                if not epq[0][2]: epq.pop(0)
        def flush_ep(upto_acc=None):
            while epq and (upto_acc is None or any(x[1] == upto_acc for x in epq)):
                c, f = epq[0][2].pop(0); f()
                if not epq[0][2]: epq.pop(0)
        for f in range(nF):
            j, t, e_ = frag_list[f]
            if f in bpos:
                ep = bpos.index(f)
                while ldq: ldq.pop(0)()
                while dqq: dqq.pop(0)[1]()
                if rh == trh and ep == trace + 1 and trace >= 0: a.cstamp(ntr, TR); ntr += 1
                guarantees(ep)
                if rh == trh and ep == trace + 1 and trace >= 0: a.cstamp(ntr, TR); ntr += 1
                if not ((abl & 64) and 1 <= ep <= 8): pe("s_barrier")
                if rh == trh and ep in (trace, trace + 1) and trace >= 0: a.cstamp(ntr, TR); ntr += 1; m_tr = m
                cur_ep = ep
                if stamps and stamps < 3 and ep in (0, smid, 9):
                    a.stamp({0: 2, smid: 3, 9: 4}[ep]); p.lg_all()
                hq = []
                h_ = hw if (rh == 0 or hw1 < 0) else hw1
                if ep <= 8 and not ((abl & 16) and ep >= 1):
                    for ks in range(2):
                        for c in range(2):
                            def wr(ks=ks, c=c, ep=ep):
                                r = V_W + 16*ep + 8*ks + 4*c
                                p.lds("ds_read_b128 v[%d:%d], v%d offset:%d" % (r, r+3, V_WR, WS[ep % 2] + ks*8192 + c*512), ("W", ep, ks, c))
                            if h_ and ep >= 1: hq.append([m + h_ + wst*(2*ks + c), wr])
                            else: wr()
                if ep == 0:
                    for f2 in range(pf): frag_read(f2)
                if ep + 1 <= 8:
                    if not (abl & 16) and not (tabe == 1 and ep >= 1):
                        if tabe == 2 and ep >= 1: hq.append([m + h_ + 4*wst, lambda ep=ep: tab_reads(ep+1)])
                        else: tab_reads(ep+1)
                    dqq = dequant(ep+1); dq_at = m + (dq1 if rh else dq0)
                    if tabe == 1 and ep + 2 <= 8:
                        k_ = max(i for i, (c_, f_) in enumerate(dqq) if c_) - 2
                        dqq.insert(k_ + 1, (0, lambda ep=ep: tab_reads(ep+2)))
                ldq = load_ops(ep)
                nM = 2*((bpos[ep+1] if ep+1 < NE else nF) - f)
                n_ = len(ldq)
                ldpos = [m + ld0 + int((i + 0.5*rh + 0.25) * (nM - ld0 - ldm) / max(n_, 1)) for i in range(n_)]
            if rh == 0 and f == fidx[(9, 0, 0)]:
                pe("s_cmp_eq_u32 s%d, 18" % S_NB); pe("s_cbranch_scc1 L_skip")
                skip_state = ([(x[1], x[3]) for x in epq], [len(x[2]) for x in epq], dict(p.lastmf), p.n)
            late = (hw and f in bpos and f > 0)
            if f + pf < nF and not late: frag_read(f + pf)
            acc = acc_of(j)
            if j >= P1 and t == 0 and e_ == 0: flush_ep(acc)
            for c in range(2):
                W0 = V_W + 16*t + 8*e_ + 4*c
                if j < P1 and not (abl & 16): assert ("W", t, e_, c) in p.lg
                p.wait(lg=lambda x: x == ("f", f) or x == ("W", t, e_, c))
                p.mfma(acc + 4*c, freg[f], W0, t == 0 and e_ == 0)
                m += 1
                if late and c == 0 and f + pf < nF: frag_read(f + pf)
                while hq and m >= hq[0][0]: hq.pop(0)[1]()
                while ldq and m >= ldpos[0]: ldq.pop(0)(); ldpos.pop(0)
                if rh == trh and cur_ep == trace and (m - m_tr) % tstep == 0 and ntr < len(TR) - 3: a.cstamp(ntr, TR); ntr += 1
                b = run_fill(per1)
                if not dqq: run_ep(min(b, per2))
            if t == 8 and e_ == 1:
                epq.append([m + epd, acc, epilogue(acc, 2*j + rh), 2*j + rh])
        assert not ldq and not dqq
        flush_ep()
        if rh == 0:
            pe("s_branch L_end")
            a.lab("L_skip")
            lst, lens, lm, n_ = skip_state
            p.lastmf = {k: p.n - (n_ - v) for k, v in lm.items()}
            for (acc, idx), ln in zip(lst, lens):
                ops = epilogue(acc, idx)
                for c, f in ops[len(ops)-ln:]: f()
            a.lab("L_end")
        if stamps == 3 and rh == trh:
            sys.stderr.write("trace stamps: %d\n" % ntr)
            a.dump_regs(TR[:ntr], 36, 256*trh)
        if stamps and stamps < 3 and rh == 0:
            a.stamp(5)
            pe("s_waitcnt vmcnt(0)")
            a.stamp(6)
            if stamps == 2: a.dbg_stamps(7, 36)
            else: a.dump_stamps(7, 36, vtmp=0)
        pe("s_endpgm")
    a.lab("L_done")
    e("s_endpgm")
    a.descriptor(KN, 256, 102, 256)
    a.write(path)

if __name__ == "__main__":
    kw = dict(s.split("=") for s in sys.argv[2:])
    for k in kw:
        if k in ("spol", "qpol", "xpol"): kw[k] = kw[k].replace("+", " ").replace("plain", "")
        else: kw[k] = int(kw[k])
    build(sys.argv[1], **kw)
```

```python
import sys
from asmlib import *

V_Q, V_XD, V_OUT, V_WR, V_WA0, V_WA1, V_TAB = 1, 2, 3, 4, 5, 6, 7
V_X = 8
V_T0, V_T1 = 14, 15
V_QJ = [1, 109, 110, 111]
V_S, V_NZ, V_PK = 32, 36, 40
V_D, V_E, V_O = 48, 52, 56
V_A1 = 60
V_W = 112
S_X, S_Q, S_S, S_Z, S_O, S_WS = 16, 20, 24, 28, 32, 36
S_P = 40
S_INV = 49
S_BASE, S_END, S_SPAN, S_B2, S_W3L, S_NB, S_W = 50, 51, 52, 53, 54, 55, 56
S_T, S_U, S_QO, S_EO = 57, 58, 59, 14
S_DJ = 60
S_M8, S_M8N, S_M4, S_M4N = 90, 92, 94, 96
S_PAN, S_CH, S_JH, S_RH, S_ROT = 3, 98, 99, 100, 101

class Prog:
    def __init__(self, a):
        self.a = a; self.vm = []; self.lg = []; self.vmdone = 0; self.lgdone = 0; self.n = 0
        self.lastmf = {}
    def e(self, s):
        self.a.e(s); self.n += 1
    def vmem(self, s, tag): self.e(s); self.vm.append(tag)
    def lds(self, s, tag): self.e(s); self.lg.append(tag)
    def _cnt(self, lst, done, pred):
        for i in range(len(lst)-1, done-1, -1):
            if pred(lst[i]): return i
        return -1
    def wait(self, vm=None, lg=None):
        parts = []
        if vm is not None:
            idx = self._cnt(self.vm, self.vmdone, vm)
            if idx >= 0:
                n = min(len(self.vm)-1-idx, 63)
                parts.append("vmcnt(%d)" % n); self.vmdone = len(self.vm) - n
        if lg is not None:
            idx = self._cnt(self.lg, self.lgdone, lg)
            if idx >= 0:
                n = min(len(self.lg)-1-idx, 15)
                parts.append("lgkmcnt(%d)" % n); self.lgdone = len(self.lg) - n
        if parts: self.e("s_waitcnt " + " ".join(parts))
    def lg_all(self):
        self.e("s_waitcnt lgkmcnt(0)"); self.lgdone = len(self.lg)
    def mfma(self, d, x, w, first):
        c = "0" if first else "v[%d:%d]" % (d, d+3)
        self.e("v_mfma_f32_16x16x32_bf16 v[%d:%d], v[%d:%d], v[%d:%d], %s" % (d, d+3, x, x+3, w, w+3, c))
        self.lastmf[d] = self.n
    def need_mfma_done(self, d):
        if d in self.lastmf:
            gap = self.n - self.lastmf[d]
            if gap < 8: self.e("s_nop %d" % (8-gap-1))

def build(path, b1=12, D=3, n0=1, spol="nt", stamps=0, krot=1, rrot=4, dq0=0, dq1=0, per1=2, per2=2, cap=12, prio=0, pf=3,
          ld0=0, ldm=2, n1=2, epd=4, smid=4, qpol="", xpol="", abl=0, trace=-1, trh=0, tstep=4, early=0, qa=0, fseg=0, r9=0, hw=0, hw1=-1, tabe=0, xs=0, xs2=0, wst=1, cyc=0, sl="", p2s=0, wdel=0, epi=0, stc=1, pt1=0, pt2=0, pth=1, sk12=0, od=0, od2=-1, ipe=0):
    a = Asm(); e = a.e
    SL = [int(x) for x in sl.split("_")] if sl else []
    if cyc: a.stamp = lambda i, base=70: a.e("s_memtime s[%d:%d]" % (base+2*i, base+2*i+1))
    KN = NAME + "_kernel"
    P1 = b1 // 2
    assert b1 % 2 == 0 and P1 <= 6
    assert pf <= 3 or (ipe and pf <= 6)
    if od2 < 0: od2 = od
    assert (od > 0) == (od2 > 0) and (not od or pf % 2 == 1)
    XF = [16, 20, 24, 28, 48, 52, 56][:pf+1]
    a.header(["; @launch grid=(256,1,1) block=(512,1,1) lds=%d" % (160*1024)])
    a.kernel_start(KN)
    TR = [70, 72, 74, 76, 78, 80, 82, 84, 86, 88, 4, 6, 8, 10, 12]
    if trace >= 0: stamps = 3
    if stamps and stamps < 3: a.stamp(0)
    e("s_cmp_ge_u32 s2, 256"); e("s_cbranch_scc1 L_done")
    e("s_load_dwordx2 s[%d:%d], s[0:1], 16" % (S_S, S_S+1))
    e("s_load_dwordx2 s[%d:%d], s[0:1], 24" % (S_Z, S_Z+1))
    e("s_load_dwordx2 s[%d:%d], s[0:1], 8" % (S_Q, S_Q+1))
    e("s_load_dwordx2 s[%d:%d], s[0:1], 0" % (S_X, S_X+1))
    e("s_load_dwordx2 s[%d:%d], s[0:1], 32" % (S_O, S_O+1))
    if stamps: e("s_load_dwordx2 s[36:37], s[0:1], %d" % (40 if stamps == 2 else 48))
    e("s_and_b32 s3, s2, 1"); e("s_lshl_b32 s3, s3, 5"); e("s_lshr_b32 s98, s2, 3"); e("s_add_u32 s3, s3, s98")
    e("s_cmp_eq_u32 s3, 63"); e("s_cbranch_scc1 L_done")
    e("v_lshrrev_b32 v1, 6, v0")
    e("s_mul_i32 s98, s3, 37"); e("s_lshr_b32 s98, s98, 8")
    e("v_readfirstlane_b32 s%d, v1" % S_W)
    e("s_mul_i32 s99, s98, 7"); e("s_sub_u32 s99, s3, s99")
    e("s_bfe_u32 s3, s2, 0x20001"); e("s_mul_i32 s3, s3, 9"); e("s_add_u32 s3, s3, s98")
    e("s_cmp_lt_u32 s99, 2"); e("s_cselect_b32 s%d, 19, 18" % S_NB)
    e("s_min_u32 s100, s99, 2"); e("s_mul_i32 s101, s99, 18"); e("s_add_u32 s100, s100, s101")
    e("s_add_u32 s101, s100, s%d" % S_NB); e("s_mul_i32 s%d, s101, 18432" % S_END)
    e("s_mul_i32 s%d, s%d, 18432" % (S_SPAN, S_NB))
    if rrot:
        e("s_sub_u32 s101, s98, 5"); e("s_cmp_ge_u32 s98, 5"); e("s_cselect_b32 s101, s101, s98"); e("s_mul_i32 s101, s101, %d" % rrot)
        e("s_add_u32 s100, s100, s101")
    e("s_mul_i32 s%d, s100, 18432" % S_BASE)
    if early:
        e("s_add_u32 s101, s99, s3"); e("s_mul_i32 s100, s101, 37"); e("s_lshr_b32 s100, s100, 8"); e("s_mul_i32 s100, s100, 7")
        e("s_sub_u32 s101, s101, s100"); e("s_add_u32 s101, s101, 2")
        e("s_mov_b32 s%d, 0" % S_P); e("s_movk_i32 s%d, 128" % (S_P+1))
        for t in range(2, 8):
            e("s_cmp_le_u32 s101, %d" % t); e("s_cselect_b32 s%d, %d, %d" % (S_P+t, 64*(t+1), 64*t) if 0 else "s_cselect_b32 s%d, 128, 0" % (S_P+t)); e("s_add_u32 s%d, s%d, %d" % (S_P+t, S_P+t, 128*t))
        e("s_lshl_b32 s%d, s101, 7" % (S_P+8))
    else:
      if krot:
        e("s_lshl_b32 s101, s98, 1"); e("s_add_u32 s101, s101, s99")
        if r9:
            e("s_cmp_ge_u32 s99, 4"); e("s_addc_u32 s101, s101, 0")
        for _ in range(2):
            e("s_sub_u32 s100, s101, 9"); e("s_cmp_ge_u32 s101, 9"); e("s_cselect_b32 s101, s100, s101")
      else:
        e("s_mov_b32 s101, 0")
      e("s_lshl_b32 s%d, s101, 7" % S_P)
      for t in range(1, 9):
        e("s_add_u32 s%d, s%d, 128" % (S_P+t, S_P+t-1)); e("s_cmp_eq_u32 s%d, 1152" % (S_P+t)); e("s_cselect_b32 s%d, 0, s%d" % (S_P+t, S_P+t))
    for (sr, nb_) in ((S_S, 18*N*2), (S_Z, 18*N*2), (S_Q, K*N*4), (S_X, M*K*2), (S_O, M*N*2)):
        e("s_mov_b32 s%d, %d" % (sr+2, nb_)); e("s_mov_b32 s%d, 0x00020000" % (sr+3))
    if stamps:
        e("s_mov_b32 s38, %s" % ("256" if stamps == 2 else "0x10000000")); e("s_mov_b32 s39, 0x00020000")
    L, I, G = 20, 21, 22
    e("v_and_b32 v%d, 63, v0" % L); e("v_and_b32 v%d, 15, v0" % I); e("v_bfe_u32 v%d, v0, 4, 2" % G)
    e("s_and_b32 s98, s%d, 1" % S_W)
    e("s_bfe_u32 s99, s%d, 0x10001" % S_W)
    e("s_lshr_b32 s100, s%d, 2" % S_W)
    if early:
        e("v_lshrrev_b32 v23, 5, v0"); e("v_mov_b32 v25, s101"); e("v_cmp_le_u32 vcc, s101, v23"); e("v_add_u32 v24, 1, v23"); e("s_nop 0")
        e("v_cndmask_b32 v24, v23, v24, vcc"); e("v_cmp_eq_u32 vcc, 8, v23"); e("s_nop 1"); e("v_cndmask_b32 v23, v24, v25, vcc")
    else:
        e("v_lshrrev_b32 v23, 5, v0"); e("v_add_u32 v23, s101, v23"); e("v_subrev_u32 v24, 9, v23"); e("v_min_u32 v23, v23, v24")
    e("v_and_b32 v24, 1, v%d" % G); e("v_lshl_add_u32 v23, v23, 1, v24"); e("v_mul_u32_u24 v23, 9216, v23")
    e("v_lshl_add_u32 v23, v%d, 4, v23" % I); e("s_lshl_b32 s%d, s3, 8" % S_T); e("v_add_u32 v%d, s%d, v23" % (V_T0, S_T))
    e("s_mul_i32 s%d, s100, %d" % (S_T, 32*18432)); e("s_lshl_b32 s%d, s3, 9" % S_U); e("s_add_u32 s%d, s%d, s%d" % (S_T, S_T, S_U))
    e("s_and_b32 s%d, s%d, 3" % (S_U, S_W)); e("s_lshl_b32 s%d, s%d, 7" % (S_U, S_U)); e("s_add_u32 s%d, s%d, s%d" % (S_T, S_T, S_U))
    e("v_lshrrev_b32 v23, 3, v%d" % L); e("v_mul_u32_u24 v23, %d, v23" % (4*18432)); e("v_and_b32 v24, 7, v%d" % L)
    e("v_lshl_add_u32 v23, v24, 4, v23"); e("v_add_u32 v%d, s%d, v23" % (V_QJ[0], S_T))
    for j in range(1, 4): e("v_add_u32 v%d, %d, v%d" % (V_QJ[j], 18432*j, V_QJ[0]))
    e("s_lshl_b32 s%d, s98, 2" % S_T); e("v_add_u32 v23, s%d, v%d" % (S_T, G)); e("v_and_b32 v24, 7, v%d" % L); e("v_xor_b32 v23, v23, v24")
    e("v_lshrrev_b32 v24, 3, v%d" % L); e("v_mul_u32_u24 v24, 1152, v24"); e("v_lshl_add_u32 v%d, v23, 4, v24" % V_XD)
    e("s_mul_i32 s%d, s98, 9216" % S_T); e("v_add_u32 v%d, s%d, v%d" % (V_XD, S_T, V_XD))
    e("s_mul_i32 s%d, s99, 18432" % S_T); e("s_add_u32 s%d, s%d, s%d" % (S_B2, S_BASE, S_T))
    e("s_lshl_b32 s%d, s%d, 10" % (S_W3L, S_W)); e("s_and_b32 s%d, s%d, 0xc00" % (S_W3L, S_W3L))
    e("s_cmp_lg_u32 s100, 0"); e("s_cbranch_scc1 L_rh1")

    TAB = 0
    WS = [5*4096, 9*4096]
    frag_list = [(j, t, e_) for t in range(9) for j in range(P1) for e_ in range(2)] + [(j, t, e_) for j in range(P1, 10) for t in range(9) for e_ in range(2)]
    fidx = {k: i for i, k in enumerate(frag_list)}
    NE = 9 + (10 - P1)
    first = [fidx[(0, t, 0)] for t in range(9)] + [fidx[(j, 0, 0)] for j in range(P1, 10)]
    bpos = [0] + [first[ep] - pf for ep in range(1, NE)]
    def ep_of(f): return max(ep for ep in range(NE) if bpos[ep] <= f)
    need = {(j, t): (t if j < P1 else 9 + j - P1) for j in range(10) for t in range(9)}
    free_at = {g: -99 for g in range(13, 40)}
    for g in range(0, 5): free_at[g] = 8
    for g in range(5, 9): free_at[g] = 9
    for g in range(9, 13): free_at[g] = 8
    order = []
    for t in range(9 + qa if qa else 0):
        if t - qa >= 0: order += [("x", j, t - qa) for j in range(P1)]
        if t < 9: order.append(("q", t))
    if qa:
        order.remove(("q", 0)); order.insert(0, ("q", 0))
        i0 = [("x", j, 0) for j in range(P1)]
        for it in i0: order.remove(it)
        order[1:1] = i0
    for t in range(0 if qa else 9):
        if t == 2 and early:
            order.append(("q", 8))
            if early >= 2: order += [("x", j, 8) for j in range(P1)]
        if not (early and t == 8): order.append(("q", t))
        if not (early >= 2 and t == 8): order += [("x", j, t) for j in range(P1)]
    order += [("x", j, t) for j in range(P1, 10) for t in range(9)]
    def pos_of(it):
        t = it[-1]
        if qa: return t if it[0] == "x" else (0 if t == 0 else max(t - qa, 1 if n0 == 1 else 0))
        if not early: return t
        if t == 8 and (it[0] == "q" or early >= 2): return 2
        return t if t < 2 else t + 1
    issue = {}; gran = {}
    pend = list(order)
    for ep in [-2, -1] + list(range(NE)):
        n = 0
        while pend:
            it = pend[0]
            step = pos_of(it) if (it[0] == "q" or it[1] < P1) else 99
            lim = n0 if ep == -2 else (n1 if ep == -1 else min(ep + D + 1 + (1 if early else 0), n1 + 2*(ep+1)))
            if step < 99 and step >= lim: break
            if step == 99 and (lim < 9 or n >= cap or ep < p2s): break
            if it[0] == "x":
                cands = sorted(g for g in free_at if free_at[g] <= ep)
                if not cands: break
                g = cands[0]; gran[it[1:]] = g
                free_at[g] = ep_of(fidx[(it[1], it[2], 1)]) + 1
                assert ep < need[it[1:]], (it, ep)
                n += 1
            else:
                assert ep < it[1] - 1 or it[1] == 0 or (it[1] == 1 and ep <= -1), (it, ep)
            issue[it] = ep; pend.pop(0)
    assert not pend
    if stamps or 1:
        sys.stderr.write("issue: " + " ".join("%d:[%s]" % (ep, ",".join(("q%d" % k[1] if k[0] == "q" else "%d.%d" % k[1:]) for k in order if issue[k] == ep)) for ep in [-2, -1] + list(range(NE))) + "\n")

    def xowner(j, t):
        ep = issue[("x", j, t)]
        if ep < 0: return (j + t) % 2
        lst = [it for it in order if it[0] == "x" and issue[it] == ep]
        i = lst.index(("x", j, t)); n = len(lst)
        x_ = xs if ep < 9 else xs2
        if x_ == 0: return (j + t) % 2
        return 0 if ((i+1)*x_)//6 != (i*x_)//6 else 1
    def xaddr(off, e_):
        return V_X + 2*(off >> 16) + e_, off & 0xffff

    for rh in range(2):
        p = Prog(a); pe = p.e
        if rh: a.lab("L_rh1")
        if prio and rh == 1: pe("s_setprio %d" % prio)
        dj_done = set()
        def mk_dj(j):
            if j in dj_done: return
            dj_done.add(j)
            d = S_DJ + j
            pe("s_add_u32 s%d, s%d, %d" % (d, S_B2, 2*j*18432)); pe("s_cmp_ge_u32 s%d, s%d" % (d, S_END))
            pe("s_cselect_b32 s%d, s%d, 0" % (S_U, S_SPAN)); pe("s_sub_u32 s%d, s%d, s%d" % (d, d, S_U))
            if j == 9:
                pe("s_add_u32 s%d, s%d, 18" % (S_U, S_JH)); pe("s_cmp_ge_u32 s%d, s%d" % (S_U, S_NB)); pe("s_cselect_b32 s%d, 0x40000000, s%d" % (d, d))
        def load_ops(ep):
            ops = []
            for it in order:
                if issue[it] != ep: continue
                if it[0] == "q":
                    t = it[1]
                    if (abl & 4) and t >= 1: continue
                    for j in range(4):
                        def f(j=j, t=t):
                            if j == 0: pe("s_mul_i32 s%d, s%d, 9216" % (S_QO, S_P+t))
                            r = V_W + 16*t + 4*j
                            p.vmem("buffer_load_dwordx4 v[%d:%d], v%d, s[%d:%d], s%d offen %s" % (r, r+3, V_QJ[j], S_Q, S_Q+3, S_QO, qpol), ("q", t, j))
                        ops.append(f)
                else:
                    j, t = it[1:]
                    if xowner(j, t) != rh: continue
                    if (abl & 8) and t >= 1 and j < P1: continue
                    if (abl & 2048) and j >= P1: continue
                    def f(j=j, t=t):
                        mk_dj(j)
                        pe("s_add_u32 m0, s%d, %d" % (S_W3L, gran[(j, t)]*4096))
                        pe("s_add_u32 s%d, s%d, s%d" % (S_T, S_DJ+j, S_P+t))
                        p.vmem("buffer_load_dwordx4 v%d, s[%d:%d], s%d offen lds %s" % (V_XD, S_X, S_X+3, S_T, xpol), ("x", need[(j, t)]))
                    ops.append(f)
            return ops
        for it in order:
            if issue[it] == -2 and it[0] == "x" and xowner(it[1], it[2]) == rh: mk_dj(it[1])
        if rh == 1:
            pe("v_mov_b32 v%d, 0x7fffffff" % V_T1); pe("v_cmp_gt_u32 vcc, 288, v0"); pe("s_nop 1"); pe("v_cndmask_b32 v%d, v%d, v%d, vcc" % (V_T0, V_T1, V_T0))
        pe("s_waitcnt lgkmcnt(0)")
        p.vmem("buffer_load_dwordx4 v[24:27], v%d, s[%d:%d], 0 offen" % (V_T0, S_S, S_S+3), "tab")
        p.vmem("buffer_load_dwordx4 v[28:31], v%d, s[%d:%d], 0 offen" % (V_T0, S_Z, S_Z+3), "tab")
        for f in load_ops(-2): f()
        if stamps and stamps < 3 and not SL: a.stamp(1)
        pe("v_lshrrev_b32 v16, 2, v%d" % L); pe("v_mul_u32_u24 v16, 9216, v16"); pe("v_and_b32 v17, 3, v%d" % L); pe("v_lshl_add_u32 v16, v17, 4, v16")
        pe("s_lshr_b32 s%d, s%d, 4" % (S_T, S_W3L)); pe("s_lshl_b32 s%d, s3, 8" % S_U); pe("s_add_u32 s%d, s%d, s%d" % (S_T, S_T, S_U)); pe("v_add_u32 v%d, s%d, v16" % (V_OUT, S_T))
        if epi == 1:
            pe("v_and_b32 v16, 3, v%d" % I); pe("v_lshlrev_b32 v16, 4, v16"); pe("v_lshrrev_b32 v17, 3, v%d" % I); pe("v_lshl_add_u32 v16, v17, 3, v16")
            pe("v_bfe_u32 v17, v%d, 2, 1" % I); pe("v_lshl_add_u32 v16, v17, 2, v16"); pe("v_mul_u32_u24 v17, %d, v%d" % (4*9216, G)); pe("v_add_u32 v16, v16, v17")
            pe("v_add_u32 v%d, s%d, v16" % (V_E, S_T))
            for r in range(1, 4): pe("v_add_u32 v%d, %d, v%d" % (V_E+r, 9216*r, V_E))
        if fseg == 128:
            pe("v_lshrrev_b32 v16, 3, v%d" % L); pe("v_mul_u32_u24 v16, 9216, v16"); pe("v_and_b32 v17, 7, v%d" % L); pe("v_lshl_add_u32 v16, v17, 4, v16")
            pe("s_and_b32 s%d, s%d, 1" % (S_T, S_W)); pe("s_lshl_b32 s%d, s%d, 7" % (S_T, S_T)); pe("s_add_u32 s%d, s%d, s%d" % (S_U, S_T, S_U))
            pe("s_bfe_u32 s%d, s%d, 0x10001" % (S_T, S_W)); pe("s_mul_i32 s%d, s%d, %d" % (S_T, S_T, 8*9216)); pe("s_add_u32 s%d, s%d, s%d" % (S_T, S_T, S_U)); pe("v_add_u32 v%d, s%d, v16" % (V_OUT, S_T))
        if fseg == 256:
            pe("v_lshrrev_b32 v16, 4, v%d" % L); pe("v_mul_u32_u24 v16, 9216, v16"); pe("v_and_b32 v17, 15, v%d" % L); pe("v_lshl_add_u32 v16, v17, 4, v16")
            pe("s_and_b32 s%d, s%d, 3" % (S_T, S_W)); pe("s_mul_i32 s%d, s%d, %d" % (S_T, S_T, 4*9216)); pe("s_add_u32 s%d, s%d, s%d" % (S_T, S_T, S_U)); pe("v_add_u32 v%d, s%d, v16" % (V_OUT, S_T))
        pe("v_bfe_u32 v16, v%d, 2, 1" % I); pe("v_and_b32 v17, 3, v%d" % I); pe("v_lshlrev_b32 v17, 1, v17"); pe("v_lshrrev_b32 v18, 3, v%d" % I); pe("v_add_u32 v17, v17, v18")
        pe("v_lshlrev_b32 v17, 4, v17"); pe("v_lshl_add_u32 v17, v16, 10, v17"); pe("v_lshl_add_u32 v17, v%d, 7, v17" % G)
        pe("s_lshl_b32 s%d, s%d, 1" % (S_T, S_W3L)); pe("v_add_u32 v%d, s%d, v17" % (V_WR, S_T))
        pe("v_and_b32 v16, 7, v%d" % I); pe("v_lshlrev_b32 v16, 4, v16"); pe("v_lshl_add_u32 v17, v18, 3, v16"); pe("v_lshl_add_u32 v17, v%d, 7, v17" % G)
        pe("s_add_u32 s%d, s%d, %d" % (S_T, S_T, rh*8192)); pe("v_add_u32 v%d, s%d, v17" % (V_WA0, S_T))
        pe("s_lshr_b32 s%d, s%d, 3" % (S_T, S_W3L)); pe("s_add_u32 s%d, s%d, %d" % (S_T, S_T, rh*1024 + TAB)); pe("v_add_u32 v%d, s%d, v16" % (V_TAB, S_T))
        pe("v_lshrrev_b32 v16, 1, v%d" % I); pe("v_xor_b32 v16, v16, v%d" % G); pe("v_lshlrev_b32 v16, 4, v16"); pe("v_lshl_add_u32 v%d, v%d, 7, v16" % (V_X, I))
        if rh: pe("v_add_u32 v%d, 2048, v%d" % (V_X, V_X))
        pe("v_xor_b32 v%d, 64, v%d" % (V_X+1, V_X))
        for w_ in (1, 2):
            pe("v_add_u32 v%d, %d, v%d" % (V_X+2*w_, w_ << 16, V_X)); pe("v_add_u32 v%d, %d, v%d" % (V_X+2*w_+1, w_ << 16, V_X+1))
        pe("v_lshrrev_b32 v16, 4, v0"); pe("v_lshlrev_b32 v16, 10, v16"); pe("v_lshl_add_u32 v%d, v%d, 5, v16" % (V_T1, I))
        pe("s_mov_b32 s%d, 0x00ff00ff" % S_M8); pe("s_mov_b32 s%d, 0x00ff00ff" % (S_M8+1)); pe("s_not_b64 s[%d:%d], s[%d:%d]" % (S_M8N, S_M8N+1, S_M8, S_M8+1))
        pe("s_mov_b32 s%d, 0x0f0f0f0f" % S_M4); pe("s_mov_b32 s%d, 0x0f0f0f0f" % (S_M4+1)); pe("s_not_b64 s[%d:%d], s[%d:%d]" % (S_M4N, S_M4N+1, S_M4, S_M4+1))
        if rh == 1:
            pe("s_cmp_lg_u32 s%d, 4" % S_W); pe("s_cbranch_scc1 L_notab")
            pe("s_mov_b32 exec_hi, 0")
        sv = p.vmdone
        p.wait(vm=lambda x: x == "tab")
        for c in range(4):
            pe("v_lshlrev_b32 v%d, 16, v%d" % (32+2*c, 24+c)); pe("v_and_b32 v%d, 0xffff0000, v%d" % (33+2*c, 24+c))
            pe("v_lshlrev_b32 v%d, 16, v%d" % (40+2*c, 28+c)); pe("v_and_b32 v%d, 0xffff0000, v%d" % (41+2*c, 28+c))
        pe("ds_write_b128 v%d, v[32:35] offset:%d" % (V_T1, TAB)); pe("ds_write_b128 v%d, v[36:39] offset:%d" % (V_T1, TAB+16))
        for c in range(8): pe("v_mul_f32 v%d, -v%d, v%d" % (40+c, 40+c, 32+c))
        pe("ds_write_b128 v%d, v[40:43] offset:%d" % (V_T1, TAB+512)); pe("ds_write_b128 v%d, v[44:47] offset:%d" % (V_T1, TAB+528))
        pe("s_waitcnt lgkmcnt(0)")
        if rh == 1:
            pe("s_mov_b32 exec_hi, -1")
            a.lab("L_notab")
            p.vmdone = sv
        pe("s_barrier")
        def tab_reads(t):
            p.lds("ds_read_b128 v[%d:%d], v%d offset:%d" % (V_S, V_S+3, V_TAB, t*2048), ("t", t))
            p.lds("ds_read_b128 v[%d:%d], v%d offset:%d" % (V_NZ, V_NZ+3, V_TAB, t*2048+512), ("t", t))
        def dequant(t):
            R = V_W + 16*t
            ops = []
            for j in range(4):
                ops.append((0, lambda j=j: p.wait(vm=lambda x: x == ("q", t, j))))
                if not (abl & 129):
                    for c in range(4): ops.append((1, lambda x=4*j+c: pe("v_cvt_f32_i32 v%d, v%d" % (R+x, R+x))))
            ops.append((0, lambda: p.wait(lg=lambda x: x == ("t", t))))
            for c in range(4):
                if abl & 1:
                    if not (abl & 2): ops.append((0, lambda c=c: p.lds("ds_write_b64 v%d, v[%d:%d] offset:%d" % (V_WA0, V_PK+2*c, V_PK+2*c+1, WS[t % 2] + c*512), ("w", t))))
                    continue
                for j in range(4): ops.append((1, lambda x=4*j+c: pe("v_fma_f32 v%d, v%d, v%d, v%d" % (R+x, R+x, V_S+(x & 3), V_NZ+(x & 3)))))
                ops.append((1, lambda c=c: pe("v_cvt_pk_bf16_f32 v%d, v%d, v%d" % (V_PK+2*c, R+c, R+4+c))))
                ops.append((1, lambda c=c: pe("v_cvt_pk_bf16_f32 v%d, v%d, v%d" % (V_PK+2*c+1, R+8+c, R+12+c))))
                if not (abl & 2): ops.append((0, lambda c=c: p.lds("ds_write_b64 v%d, v[%d:%d] offset:%d" % (V_WA0, V_PK+2*c, V_PK+2*c+1, WS[t % 2] + c*512), ("w", t)), "w"))
            if wdel:
                o2 = []; held = []
                for o in ops:
                    if len(o) == 3: held.append([wdel, o[:2]]); continue
                    o2.append(o)
                    if o[0]:
                        for h in held: h[0] -= 1
                        while held and held[0][0] <= 0: o2.append(held.pop(0)[1])
                o2 += [h[1] for h in held]
                ops = o2
            ops = [o[:2] for o in ops]
            return ops
        def epilogue(acc, idx):
            ops = []
            V_D, V_E, V_O = (acc, acc+4, acc) if ipe else (48, 52, 56)
            def firstop():
                p.need_mfma_done(acc); p.need_mfma_done(acc+4)
                pe("v_cvt_pk_bf16_f32 v%d, v%d, v%d" % (V_D, acc, acc+4))
            ops.append((1, firstop))
            for r in range(1, 4): ops.append((1, lambda r=r: pe("v_cvt_pk_bf16_f32 v%d, v%d, v%d" % (V_D+r, acc+r, acc+4+r))))
            if epi == 1:
                ops = []
                dd = V_D if idx % 4 < 2 else V_O
                def firstop():
                    p.need_mfma_done(acc); p.need_mfma_done(acc+4)
                    pe("s_add_u32 s%d, s%d, %d" % (S_EO, S_BASE, idx*18432)); pe("s_cmp_ge_u32 s%d, s%d" % (S_EO, S_END)); pe("s_cselect_b32 s%d, s%d, 0" % (S_INV, S_SPAN))
                    pe("v_cvt_pk_bf16_f32 v%d, v%d, v%d" % (dd, acc, acc+4))
                    pe("s_sub_u32 s%d, s%d, s%d" % (S_EO, S_EO, S_INV)); pe("s_lshl_b32 s%d, s%d, 3" % (S_EO, S_EO))
                ops.append((1, firstop))
                for r in range(1, 4): ops.append((1, lambda r=r: pe("v_cvt_pk_bf16_f32 v%d, v%d, v%d" % (dd+r, acc+r, acc+4+r))))
                for r in range(4): ops.append((stc, lambda r=r: p.vmem("buffer_store_dword v%d, v%d, s[%d:%d], s%d offen %s" % (dd+r, V_E+r, S_O, S_O+3, S_EO, spol), "st")))
                return ops
            def dpp(d, s0, s1, ror): pe("v_cndmask_b32_dpp v%d, v%d, v%d, vcc row_ror:%d row_mask:0xf bank_mask:0xf" % (d, s0, s1, ror))
            ops.append((0, lambda: (pe("s_mov_b64 vcc, s[%d:%d]" % (S_M8, S_M8+1)), pe("s_add_u32 s%d, s%d, %d" % (S_EO, S_BASE, idx*18432)))))
            ops.append((1, lambda: dpp(V_E+0, V_D+2, V_D+0, 8)))
            ops.append((1, lambda: dpp(V_E+1, V_D+3, V_D+1, 8)))
            ops.append((0, lambda: (pe("s_mov_b64 vcc, s[%d:%d]" % (S_M8N, S_M8N+1)), pe("s_cmp_ge_u32 s%d, s%d" % (S_EO, S_END)), pe("s_cselect_b32 s%d, s%d, 0" % (S_INV, S_SPAN)))))
            ops.append((1, lambda: dpp(V_E+2, V_D+0, V_D+2, 8)))
            ops.append((1, lambda: dpp(V_E+3, V_D+1, V_D+3, 8)))
            ops.append((0, lambda: (pe("s_mov_b64 vcc, s[%d:%d]" % (S_M4, S_M4+1)), pe("s_sub_u32 s%d, s%d, s%d" % (S_EO, S_EO, S_INV)))))
            ops.append((1, lambda: dpp(V_O+0, V_E+1, V_E+0, 4)))
            ops.append((1, lambda: dpp(V_O+2, V_E+3, V_E+2, 4)))
            ops.append((0, lambda: (pe("s_mov_b64 vcc, s[%d:%d]" % (S_M4N, S_M4N+1)), pe("s_lshl_b32 s%d, s%d, 3" % (S_EO, S_EO)))))
            ops.append((1, lambda: dpp(V_O+1, V_E+0, V_E+1, 12)))
            ops.append((1, lambda: dpp(V_O+3, V_E+2, V_E+3, 12)))
            if abl & 1024: ops = [(c_, (lambda: None) if c_ else f_) for c_, f_ in ops]
            if not (abl & 256) or ((abl & 512) and idx >= 12): ops.append((0, lambda: p.vmem("buffer_store_dwordx4 v[%d:%d], v%d, s[%d:%d], s%d offen %s" % (V_O, V_O+3, V_OUT, S_O, S_O+3, S_EO, spol), "st")))
            return ops
        def guarantees(ep):
            p.wait(vm=lambda x: x[0] == "x" and x[1] <= ep, lg=lambda x: x == ("w", ep))
        tab_reads(0)
        lds_ = load_ops(-1)
        dq = dequant(0)
        k = 0
        for i, (c, f) in enumerate(dq):
            f()
            if c and i % 3 == 2 and k < len(lds_): lds_[k](); k += 1
        while k < len(lds_): lds_[k](); k += 1
        nF = len(frag_list) - (18 if rh else 0)
        def acc_of(j): return V_A1 + 8*j if j < P1 else V_S + 8*((j - P1) % 2)
        freg = {}
        def frag_read(f, b=None):
            j, t, e_ = frag_list[f]
            if b is None: b = XF[f % len(XF)]
            r, o = xaddr(gran[(j, t)]*4096, e_)
            if not ((abl & 32) and f > 4): p.lds("ds_read_b128 v[%d:%d], v%d offset:%d" % (b, b+3, r, o), ("f", f))
            freg[f] = b
        dqq = []; dq_at = 0
        epq = []
        ldq = []; ld_at = 0
        m = 0; ntr = 0; cur_ep = -1; m_tr = 0; hq = []
        def run_fill(budget):
            while dqq and m >= dq_at and (budget > 0 or dqq[0][0] == 0):
                c, f = dqq.pop(0); f(); budget -= c
            return budget
        def run_ep(budget):
            while epq and m >= epq[0][0] and (budget > 0 or epq[0][2][0][0] == 0):
                c, f = epq[0][2].pop(0); f(); budget -= c
                if not epq[0][2]: epq.pop(0)
        def flush_ep(upto_acc=None):
            k_ = 0
            while epq and (upto_acc is None or any(x[1] == upto_acc for x in epq)):
                c, f = epq[0][2].pop(0); f(); k_ += 1
                if not epq[0][2]: epq.pop(0)
            if k_ and ipe and upto_acc is not None: pe("s_nop 1")
        def seq_of(f):
            o_ = od if frag_list[f][0] < P1 else od2
            if o_ == 0: return [(0, 0), (1, 0), (0, 1), (1, 1)]
            if o_ == 1: return [(0, 0), (0, 1), (1, 0), (1, 1)]
            if o_ == 3 or (f // 2) % 2 == 0: return [(0, 0), (0, 1), (1, 1), (1, 0)]
            return [(1, 0), (1, 1), (0, 1), (0, 0)]
        acc_used = set()
        for f in range(nF):
            j, t, e_ = frag_list[f]
            if f in bpos:
                ep = bpos.index(f)
                while ldq: ldq.pop(0)()
                while dqq: dqq.pop(0)[1]()
                if rh == trh and ep == trace + 1 and trace >= 0: a.cstamp(ntr, TR); ntr += 1
                guarantees(ep)
                if rh == trh and ep == trace + 1 and trace >= 0: a.cstamp(ntr, TR); ntr += 1
                if not ((abl & 64) and 1 <= ep <= 8): pe("s_barrier")
                if rh == trh and ep in (trace, trace + 1) and trace >= 0: a.cstamp(ntr, TR); ntr += 1; m_tr = m
                cur_ep = ep; m_ep = m
                if rh == 1 and (pt1 if ep < 9 else pt2): pe("s_setprio %d" % pth); cur_pr = pth
                elif rh == 1 and ep == 9 and pt1: pe("s_setprio %d" % prio)
                if SL and ep in SL and rh == 0:
                    a.stamp(1 + SL.index(ep)); p.lg_all()
                if stamps and stamps < 3 and ep in (0, smid, 9) and not SL:
                    a.stamp({0: 2, smid: 3, 9: 4}[ep]); p.lg_all()
                hq = []
                h_ = hw if (rh == 0 or hw1 < 0) else hw1
                if ep <= 8 and not ((abl & 16) and ep >= 1):
                    for i_, (c, ks) in enumerate(seq_of(first[ep])):
                        if 1:
                            def wr(ks=ks, c=c, ep=ep):
                                r = V_W + 16*ep + 8*ks + 4*c
                                p.lds("ds_read_b128 v[%d:%d], v%d offset:%d" % (r, r+3, V_WR, WS[ep % 2] + ks*8192 + c*512), ("W", ep, ks, c))
                            if h_ and ep >= 1: hq.append([m + h_ + wst*i_, wr])
                            else: wr()
                if ep == 0:
                    for f2 in range(pf + (1 if od else 0)): frag_read(f2)
                if ep + 1 <= 8:
                    if not (abl & 16) and not (tabe == 1 and ep >= 1):
                        if tabe == 2 and ep >= 1: hq.append([m + h_ + 4*wst, lambda ep=ep: tab_reads(ep+1)])
                        else: tab_reads(ep+1)
                    dqq = dequant(ep+1); dq_at = m + (dq1 if rh else dq0)
                    if tabe == 1 and ep + 2 <= 8:
                        k_ = max(i for i, (c_, f_) in enumerate(dqq) if c_) - 2
                        dqq.insert(k_ + 1, (0, lambda ep=ep: tab_reads(ep+2)))
                ldq = load_ops(ep)
                nM = 2*((bpos[ep+1] if ep+1 < NE else nF) - f)
                n_ = len(ldq)
                ldpos = [m + ld0 + int((i + 0.5*rh + 0.25) * (nM - ld0 - ldm) / max(n_, 1)) for i in range(n_)]
            if rh == 0 and f == fidx[(9, 0, 0)]:
                pe("s_cmp_eq_u32 s%d, 18" % S_NB); pe("s_cbranch_scc1 L_skip")
                skip_state = ([(x[1], x[3]) for x in epq], [len(x[2]) for x in epq], dict(p.lastmf), p.n)
            late = (hw and f in bpos and f > 0)
            if f + pf < nF and not late and not od: frag_read(f + pf)
            acc = acc_of(j)
            if j >= P1 and t == 0 and e_ == 0: flush_ep(acc)
            for i_, (c, e2) in enumerate(seq_of(f)[2*e_:2*e_+2]):
                ff = f - e_ + e2
                W0 = V_W + 16*t + 8*e2 + 4*c
                if j < P1 and not (abl & 16): assert ("W", t, e2, c) in p.lg
                p.wait(lg=lambda x: x == ("f", ff) or x == ("W", t, e2, c))
                p.mfma(acc + 4*c, freg[ff], W0, (j, c) not in acc_used)
                acc_used.add((j, c))
                m += 1
                pt_ = pt1 if cur_ep < 9 else pt2
                if rh == 1 and pt_ and (m - m_ep) % pt_ == 0: cur_pr = 1 - cur_pr; pe("s_setprio %d" % cur_pr)
                if od:
                    if e_ == 1 and f + pf + i_ < nF: frag_read(f + pf + i_, freg[ff])
                elif late and i_ == 0 and f + pf < nF: frag_read(f + pf)
                while hq and m >= hq[0][0]: hq.pop(0)[1]()
                while ldq and m >= ldpos[0]: ldq.pop(0)(); ldpos.pop(0)
                if rh == trh and cur_ep == trace and (m - m_tr) % tstep == 0 and ntr < len(TR) - 3: a.cstamp(ntr, TR); ntr += 1
                b = run_fill(per1)
                if not dqq: run_ep(min(b, per2))
            if t == 8 and e_ == 1:
                epq.append([m + epd, acc, epilogue(acc, 2*j + rh), 2*j + rh])
        assert not ldq and not dqq
        flush_ep()
        if rh == 0:
            pe("s_branch L_end")
            a.lab("L_skip")
            lst, lens, lm, n_ = skip_state
            p.lastmf = {k: p.n - (n_ - v) for k, v in lm.items()}
            for (acc, idx), ln in zip(lst, lens):
                ops = epilogue(acc, idx)
                for c, f in ops[len(ops)-ln:]: f()
            a.lab("L_end")
        if stamps == 3 and rh == trh:
            sys.stderr.write("trace stamps: %d\n" % ntr)
            a.dump_regs(TR[:ntr], 36, 256*trh)
        if SL and rh == 0:
            a.stamp(1 + len(SL))
            a.dump_stamps(2 + len(SL), 36, vtmp=0)
        elif stamps and stamps < 3 and rh == 0:
            a.stamp(5)
            pe("s_waitcnt vmcnt(0)")
            a.stamp(6)
            if stamps == 2: a.dbg_stamps(7, 36)
            else: a.dump_stamps(7, 36, vtmp=0)
        pe("s_endpgm")
    a.lab("L_done")
    e("s_endpgm")
    a.descriptor(KN, 256, 102, 256)
    a.write(path)

if __name__ == "__main__":
    kw = dict(s.split("=") for s in sys.argv[2:])
    for k in kw:
        if k == "sl": pass
        elif k in ("spol", "qpol", "xpol"): kw[k] = kw[k].replace("+", " ").replace("plain", "")
        else: kw[k] = int(kw[k])
    build(sys.argv[1], **kw)
```

```python
import sys
from asmlib import *

V_Q, V_XD, V_OUT, V_WR, V_WA0, V_WA1, V_TAB = 1, 2, 3, 4, 5, 6, 7
V_X = 8
V_T0, V_T1 = 14, 15
V_QJ = [1, 109, 110, 111]
V_S, V_NZ, V_PK = 32, 36, 40
V_D, V_E, V_O = 48, 52, 56
V_A1 = 60
V_W = 112
S_X, S_Q, S_S, S_Z, S_O, S_WS = 16, 20, 24, 28, 32, 36
S_P = 40
S_INV = 49
S_BASE, S_END, S_SPAN, S_B2, S_W3L, S_NB, S_W = 50, 51, 52, 53, 54, 55, 56
S_T, S_U, S_QO, S_EO = 57, 58, 59, 14
S_DJ = 60
S_M8, S_M8N, S_M4, S_M4N = 90, 92, 94, 96
S_PAN, S_CH, S_JH, S_RH, S_ROT = 3, 98, 99, 100, 101

class Prog:
    def __init__(self, a):
        self.a = a; self.vm = []; self.lg = []; self.vmdone = 0; self.lgdone = 0; self.n = 0
        self.lastmf = {}
    def e(self, s):
        self.a.e(s); self.n += 1
    def vmem(self, s, tag): self.e(s); self.vm.append(tag)
    def lds(self, s, tag): self.e(s); self.lg.append(tag)
    def _cnt(self, lst, done, pred):
        for i in range(len(lst)-1, done-1, -1):
            if pred(lst[i]): return i
        return -1
    def wait(self, vm=None, lg=None):
        parts = []
        if vm is not None:
            idx = self._cnt(self.vm, self.vmdone, vm)
            if idx >= 0:
                n = min(len(self.vm)-1-idx, 63)
                parts.append("vmcnt(%d)" % n); self.vmdone = len(self.vm) - n
        if lg is not None:
            idx = self._cnt(self.lg, self.lgdone, lg)
            if idx >= 0:
                n = min(len(self.lg)-1-idx, 15)
                parts.append("lgkmcnt(%d)" % n); self.lgdone = len(self.lg) - n
        if parts: self.e("s_waitcnt " + " ".join(parts))
    def lg_all(self):
        self.e("s_waitcnt lgkmcnt(0)"); self.lgdone = len(self.lg)
    def mfma(self, d, x, w, first):
        c = "0" if first else "v[%d:%d]" % (d, d+3)
        if self.sw: x, w = w, x
        self.e("v_mfma_f32_16x16x32_bf16 v[%d:%d], v[%d:%d], v[%d:%d], %s" % (d, d+3, x, x+3, w, w+3, c))
        self.lastmf[d] = self.n
    def need_mfma_done(self, d):
        if d in self.lastmf:
            gap = self.n - self.lastmf[d]
            if gap < 8: self.e("s_nop %d" % (8-gap-1))

def build(path, b1=12, D=3, n0=1, spol="nt", stamps=0, krot=1, rrot=4, dq0=0, dq1=0, per1=2, per2=2, cap=12, prio=0, pf=3,
          ld0=0, ldm=2, n1=2, epd=4, smid=4, qpol="", xpol="", abl=0, trace=-1, trh=0, tstep=4, early=0, qa=0, fseg=0, r9=0, hw=0, hw1=-1, tabe=0, xs=0, xs2=0, wst=1, cyc=0, sl="", p2s=0, wdel=0, epi=0, stc=1, pt1=0, pt2=0, pth=1, sk12=0, od=0, od2=-1, ipe=0, er=0, pk=0, sw=0, kst="", plm=1):
    a = Asm(); e = a.e
    SL = [int(x) for x in sl.split("_")] if sl else []
    if cyc: a.stamp = lambda i, base=70: a.e("s_memtime s[%d:%d]" % (base+2*i, base+2*i+1))
    KN = NAME + "_kernel"
    P1 = b1 // 2
    assert b1 % 2 == 0 and (P1 <= 6 or (P1 == 7 and ipe and pf <= 3))
    V_A1 = 48 if P1 == 7 else 60
    assert pf <= 3 or (ipe and pf <= 6)
    if od2 < 0: od2 = od
    assert (od > 0) == (od2 > 0) and (not od or pf % 2 == 1)
    XF = [16, 20, 24, 28, 48, 52, 56][:pf+1]
    a.header(["; @launch grid=(256,1,1) block=(512,1,1) lds=%d" % (160*1024)])
    a.kernel_start(KN)
    TR = [70, 72, 74, 76, 78, 80, 82, 84, 86, 88, 4, 6, 8, 10, 12]
    if trace >= 0: stamps = 3
    if stamps and stamps < 3: a.stamp(0)
    e("s_cmp_ge_u32 s2, 256"); e("s_cbranch_scc1 L_done")
    e("s_load_dwordx2 s[%d:%d], s[0:1], 16" % (S_S, S_S+1))
    e("s_load_dwordx2 s[%d:%d], s[0:1], 24" % (S_Z, S_Z+1))
    e("s_load_dwordx2 s[%d:%d], s[0:1], 8" % (S_Q, S_Q+1))
    e("s_load_dwordx2 s[%d:%d], s[0:1], 0" % (S_X, S_X+1))
    e("s_load_dwordx2 s[%d:%d], s[0:1], 32" % (S_O, S_O+1))
    if stamps: e("s_load_dwordx2 s[36:37], s[0:1], %d" % (40 if stamps == 2 else 48))
    e("s_and_b32 s3, s2, 1"); e("s_lshl_b32 s3, s3, 5"); e("s_lshr_b32 s98, s2, 3"); e("s_add_u32 s3, s3, s98")
    e("s_cmp_eq_u32 s3, 63"); e("s_cbranch_scc1 L_done")
    e("v_lshrrev_b32 v1, 6, v0")
    e("s_mul_i32 s98, s3, 37"); e("s_lshr_b32 s98, s98, 8")
    e("v_readfirstlane_b32 s%d, v1" % S_W)
    e("s_mul_i32 s99, s98, 7"); e("s_sub_u32 s99, s3, s99")
    e("s_bfe_u32 s3, s2, 0x20001"); e("s_mul_i32 s3, s3, 9"); e("s_add_u32 s3, s3, s98")
    e("s_cmp_lt_u32 s99, 2"); e("s_cselect_b32 s%d, 19, 18" % S_NB)
    e("s_min_u32 s100, s99, 2"); e("s_mul_i32 s101, s99, 18"); e("s_add_u32 s100, s100, s101")
    e("s_add_u32 s101, s100, s%d" % S_NB); e("s_mul_i32 s%d, s101, 18432" % S_END)
    e("s_mul_i32 s%d, s%d, 18432" % (S_SPAN, S_NB))
    if rrot:
        e("s_sub_u32 s101, s98, 5"); e("s_cmp_ge_u32 s98, 5"); e("s_cselect_b32 s101, s101, s98"); e("s_mul_i32 s101, s101, %d" % rrot)
        e("s_add_u32 s100, s100, s101")
    e("s_mul_i32 s%d, s100, 18432" % S_BASE)
    if early:
        e("s_add_u32 s101, s99, s3"); e("s_mul_i32 s100, s101, 37"); e("s_lshr_b32 s100, s100, 8"); e("s_mul_i32 s100, s100, 7")
        e("s_sub_u32 s101, s101, s100"); e("s_add_u32 s101, s101, 2")
        e("s_mov_b32 s%d, 0" % S_P); e("s_movk_i32 s%d, 128" % (S_P+1))
        for t in range(2, 8):
            e("s_cmp_le_u32 s101, %d" % t); e("s_cselect_b32 s%d, %d, %d" % (S_P+t, 64*(t+1), 64*t) if 0 else "s_cselect_b32 s%d, 128, 0" % (S_P+t)); e("s_add_u32 s%d, s%d, %d" % (S_P+t, S_P+t, 128*t))
        e("s_lshl_b32 s%d, s101, 7" % (S_P+8))
    else:
      if kst:
        cst = sum(int(ch) << (4*i) for i, ch in enumerate(kst))
        e("s_lshl_b32 s101, s99, 2"); e("s_lshr_b32 s101, 0x%x, s101" % cst); e("s_and_b32 s101, s101, 15")
        pc = sum(((plm*i) % 9) << (4*i) for i in range(8))
        e("s_lshl_b32 s100, s98, 2"); e("s_lshr_b32 s100, 0x%x, s100" % pc); e("s_and_b32 s100, s100, 15"); e("s_cmp_eq_u32 s98, 8"); e("s_cselect_b32 s100, %d, s100" % ((plm*8) % 9))
        e("s_add_u32 s101, s101, s100")
        e("s_sub_u32 s100, s101, 9"); e("s_cmp_ge_u32 s101, 9"); e("s_cselect_b32 s101, s100, s101")
      elif krot == 3:
        e("s_mul_i32 s101, s99, 11"); e("s_lshr_b32 s101, s101, 5"); e("s_mul_i32 s101, s101, 3"); e("s_sub_u32 s101, s99, s101"); e("s_mul_i32 s101, s101, 3"); e("s_add_u32 s101, s101, s98")
        e("s_sub_u32 s100, s101, 9"); e("s_cmp_ge_u32 s101, 9"); e("s_cselect_b32 s101, s100, s101")
      elif krot == 4:
        e("s_and_b32 s101, s99, 6"); e("s_add_u32 s101, s101, s98")
        e("s_sub_u32 s100, s101, 9"); e("s_cmp_ge_u32 s101, 9"); e("s_cselect_b32 s101, s100, s101")
      elif krot == 5:
        e("s_and_b32 s101, s99, 6"); e("s_cmp_eq_u32 s99, 5"); e("s_cselect_b32 s101, 6, s101"); e("s_cmp_eq_u32 s99, 6"); e("s_cselect_b32 s101, 8, s101"); e("s_add_u32 s101, s101, s98")
        e("s_sub_u32 s100, s101, 9"); e("s_cmp_ge_u32 s101, 9"); e("s_cselect_b32 s101, s100, s101")
      elif krot == 2:
        e("s_mov_b32 s101, s98")
      elif krot:
        e("s_lshl_b32 s101, s98, 1"); e("s_add_u32 s101, s101, s99")
        if r9:
            e("s_cmp_ge_u32 s99, 4"); e("s_addc_u32 s101, s101, 0")
        for _ in range(2):
            e("s_sub_u32 s100, s101, 9"); e("s_cmp_ge_u32 s101, 9"); e("s_cselect_b32 s101, s100, s101")
      else:
        e("s_mov_b32 s101, 0")
      e("s_lshl_b32 s%d, s101, 7" % S_P)
      for t in range(1, 9):
        e("s_add_u32 s%d, s%d, 128" % (S_P+t, S_P+t-1)); e("s_cmp_eq_u32 s%d, 1152" % (S_P+t)); e("s_cselect_b32 s%d, 0, s%d" % (S_P+t, S_P+t))
    for (sr, nb_) in ((S_S, 18*N*2), (S_Z, 18*N*2), (S_Q, K*N*4), (S_X, M*K*2), (S_O, M*N*2)):
        e("s_mov_b32 s%d, %d" % (sr+2, nb_)); e("s_mov_b32 s%d, 0x00020000" % (sr+3))
    if stamps:
        e("s_mov_b32 s38, %s" % ("256" if stamps == 2 else "0x10000000")); e("s_mov_b32 s39, 0x00020000")
    L, I, G = 20, 21, 22
    e("v_and_b32 v%d, 63, v0" % L); e("v_and_b32 v%d, 15, v0" % I); e("v_bfe_u32 v%d, v0, 4, 2" % G)
    e("s_and_b32 s98, s%d, 1" % S_W)
    e("s_bfe_u32 s99, s%d, 0x10001" % S_W)
    e("s_lshr_b32 s100, s%d, 2" % S_W)
    if early:
        e("v_lshrrev_b32 v23, 5, v0"); e("v_mov_b32 v25, s101"); e("v_cmp_le_u32 vcc, s101, v23"); e("v_add_u32 v24, 1, v23"); e("s_nop 0")
        e("v_cndmask_b32 v24, v23, v24, vcc"); e("v_cmp_eq_u32 vcc, 8, v23"); e("s_nop 1"); e("v_cndmask_b32 v23, v24, v25, vcc")
    else:
        e("v_lshrrev_b32 v23, 5, v0"); e("v_add_u32 v23, s101, v23"); e("v_subrev_u32 v24, 9, v23"); e("v_min_u32 v23, v23, v24")
    e("v_and_b32 v24, 1, v%d" % G); e("v_lshl_add_u32 v23, v23, 1, v24"); e("v_mul_u32_u24 v23, 9216, v23")
    e("v_lshl_add_u32 v23, v%d, 4, v23" % I); e("s_lshl_b32 s%d, s3, 8" % S_T); e("v_add_u32 v%d, s%d, v23" % (V_T0, S_T))
    e("s_mul_i32 s%d, s100, %d" % (S_T, 32*18432)); e("s_lshl_b32 s%d, s3, 9" % S_U); e("s_add_u32 s%d, s%d, s%d" % (S_T, S_T, S_U))
    e("s_and_b32 s%d, s%d, 3" % (S_U, S_W)); e("s_lshl_b32 s%d, s%d, 7" % (S_U, S_U)); e("s_add_u32 s%d, s%d, s%d" % (S_T, S_T, S_U))
    e("v_lshrrev_b32 v23, 3, v%d" % L); e("v_mul_u32_u24 v23, %d, v23" % (4*18432)); e("v_and_b32 v24, 7, v%d" % L)
    e("v_lshl_add_u32 v23, v24, 4, v23"); e("v_add_u32 v%d, s%d, v23" % (V_QJ[0], S_T))
    for j in range(1, 4): e("v_add_u32 v%d, %d, v%d" % (V_QJ[j], 18432*j, V_QJ[0]))
    e("s_lshl_b32 s%d, s98, 2" % S_T); e("v_add_u32 v23, s%d, v%d" % (S_T, G)); e("v_and_b32 v24, 7, v%d" % L); e("v_xor_b32 v23, v23, v24")
    e("v_lshrrev_b32 v24, 3, v%d" % L); e("v_mul_u32_u24 v24, 1152, v24"); e("v_lshl_add_u32 v%d, v23, 4, v24" % V_XD)
    e("s_mul_i32 s%d, s98, 9216" % S_T); e("v_add_u32 v%d, s%d, v%d" % (V_XD, S_T, V_XD))
    e("s_mul_i32 s%d, s99, 18432" % S_T); e("s_add_u32 s%d, s%d, s%d" % (S_B2, S_BASE, S_T))
    e("s_lshl_b32 s%d, s%d, 10" % (S_W3L, S_W)); e("s_and_b32 s%d, s%d, 0xc00" % (S_W3L, S_W3L))
    e("s_cmp_lg_u32 s100, 0"); e("s_cbranch_scc1 L_rh1")

    TAB = 0
    WS = [5*4096, 9*4096]
    frag_list = [(j, t, e_) for t in range(9) for j in range(P1) for e_ in range(2)] + [(j, t, e_) for j in range(P1, 10) for t in range(9) for e_ in range(2)]
    fidx = {k: i for i, k in enumerate(frag_list)}
    NE = 9 + (10 - P1)
    first = [fidx[(0, t, 0)] for t in range(9)] + [fidx[(j, 0, 0)] for j in range(P1, 10)]
    bpos = [0] + [first[ep] - pf for ep in range(1, NE)]
    def ep_of(f): return max(ep for ep in range(NE) if bpos[ep] <= f)
    need = {(j, t): (t if j < P1 else 9 + j - P1) for j in range(10) for t in range(9)}
    free_at = {g: -99 for g in range(13, 40)}
    for g in range(0, 5): free_at[g] = 8
    for g in range(5, 9): free_at[g] = 9
    for g in range(9, 13): free_at[g] = 8
    order = []
    for t in range(9 + qa if qa else 0):
        if t - qa >= 0: order += [("x", j, t - qa) for j in range(P1)]
        if t < 9: order.append(("q", t))
    if qa:
        order.remove(("q", 0)); order.insert(0, ("q", 0))
        i0 = [("x", j, 0) for j in range(P1)]
        for it in i0: order.remove(it)
        order[1:1] = i0
    for t in range(0 if qa else 9):
        if t == 2 and early:
            order.append(("q", 8))
            if early >= 2: order += [("x", j, 8) for j in range(P1)]
        if not (early and t == 8): order.append(("q", t))
        if not (early >= 2 and t == 8): order += [("x", j, t) for j in range(P1)]
    order += [("x", j, t) for j in range(P1, 10) for t in range(9)]
    def pos_of(it):
        t = it[-1]
        if qa: return t if it[0] == "x" else (0 if t == 0 else max(t - qa, 1 if n0 == 1 else 0))
        if not early: return t
        if t == 8 and (it[0] == "q" or early >= 2): return 2
        return t if t < 2 else t + 1
    issue = {}; gran = {}
    pend = list(order)
    for ep in [-2, -1] + list(range(NE)):
        n = 0
        while pend:
            it = pend[0]
            step = pos_of(it) if (it[0] == "q" or it[1] < P1) else 99
            lim = n0 if ep == -2 else (n1 if ep == -1 else min(ep + D + 1 + (1 if early else 0), n1 + 2*(ep+1)))
            if step < 99 and step >= lim: break
            if step == 99 and (lim < 9 or n >= cap or ep < p2s): break
            if it[0] == "x":
                cands = sorted(g for g in free_at if free_at[g] <= ep)
                if not cands: break
                g = cands[0]; gran[it[1:]] = g
                free_at[g] = ep_of(fidx[(it[1], it[2], 1)]) + 1
                assert ep < need[it[1:]], (it, ep)
                n += 1
            else:
                assert ep < it[1] - 1 or it[1] == 0 or (it[1] == 1 and ep <= -1), (it, ep)
            issue[it] = ep; pend.pop(0)
    assert not pend
    if stamps or 1:
        sys.stderr.write("issue: " + " ".join("%d:[%s]" % (ep, ",".join(("q%d" % k[1] if k[0] == "q" else "%d.%d" % k[1:]) for k in order if issue[k] == ep)) for ep in [-2, -1] + list(range(NE))) + "\n")

    def xowner(j, t):
        ep = issue[("x", j, t)]
        if ep < 0: return (j + t) % 2
        lst = [it for it in order if it[0] == "x" and issue[it] == ep]
        i = lst.index(("x", j, t)); n = len(lst)
        x_ = xs if ep < 9 else xs2
        if x_ == 0: return (j + t) % 2
        return 0 if ((i+1)*x_)//6 != (i*x_)//6 else 1
    def xaddr(off, e_):
        return V_X + 2*(off >> 16) + e_, off & 0xffff

    for rh in range(2):
        p = Prog(a); pe = p.e; p.sw = sw
        if rh: a.lab("L_rh1")
        if prio and rh == 1: pe("s_setprio %d" % prio)
        dj_done = set()
        def mk_dj(j):
            if j in dj_done: return
            dj_done.add(j)
            d = S_DJ + j
            pe("s_add_u32 s%d, s%d, %d" % (d, S_B2, 2*j*18432)); pe("s_cmp_ge_u32 s%d, s%d" % (d, S_END))
            pe("s_cselect_b32 s%d, s%d, 0" % (S_U, S_SPAN)); pe("s_sub_u32 s%d, s%d, s%d" % (d, d, S_U))
            if j == 9:
                pe("s_add_u32 s%d, s%d, 18" % (S_U, S_JH)); pe("s_cmp_ge_u32 s%d, s%d" % (S_U, S_NB)); pe("s_cselect_b32 s%d, 0x40000000, s%d" % (d, d))
        def load_ops(ep):
            ops = []
            for it in order:
                if issue[it] != ep: continue
                if it[0] == "q":
                    t = it[1]
                    if (abl & 4) and t >= 1: continue
                    for j in range(4):
                        def f(j=j, t=t):
                            if j == 0: pe("s_mul_i32 s%d, s%d, 9216" % (S_QO, S_P+t))
                            r = V_W + 16*t + 4*j
                            p.vmem("buffer_load_dwordx4 v[%d:%d], v%d, s[%d:%d], s%d offen %s" % (r, r+3, V_QJ[j], S_Q, S_Q+3, S_QO, qpol), ("q", t, j))
                        ops.append(f)
                else:
                    j, t = it[1:]
                    if xowner(j, t) != rh: continue
                    if (abl & 8) and t >= 1 and j < P1: continue
                    if (abl & 2048) and j >= P1: continue
                    def f(j=j, t=t):
                        mk_dj(j)
                        pe("s_add_u32 m0, s%d, %d" % (S_W3L, gran[(j, t)]*4096))
                        pe("s_add_u32 s%d, s%d, s%d" % (S_T, S_DJ+j, S_P+t))
                        p.vmem("buffer_load_dwordx4 v%d, s[%d:%d], s%d offen lds %s" % (V_XD, S_X, S_X+3, S_T, xpol), ("x", need[(j, t)]))
                    ops.append(f)
            return ops
        for it in order:
            if issue[it] == -2 and it[0] == "x" and xowner(it[1], it[2]) == rh: mk_dj(it[1])
        if rh == 1:
            pe("v_mov_b32 v%d, 0x7fffffff" % V_T1); pe("v_cmp_gt_u32 vcc, 288, v0"); pe("s_nop 1"); pe("v_cndmask_b32 v%d, v%d, v%d, vcc" % (V_T0, V_T1, V_T0))
        pe("s_waitcnt lgkmcnt(0)")
        p.vmem("buffer_load_dwordx4 v[24:27], v%d, s[%d:%d], 0 offen" % (V_T0, S_S, S_S+3), "tab")
        p.vmem("buffer_load_dwordx4 v[28:31], v%d, s[%d:%d], 0 offen" % (V_T0, S_Z, S_Z+3), "tab")
        for f in load_ops(-2): f()
        if stamps and stamps < 3 and not SL: a.stamp(1)
        pe("v_lshrrev_b32 v16, 2, v%d" % L); pe("v_mul_u32_u24 v16, 9216, v16"); pe("v_and_b32 v17, 3, v%d" % L); pe("v_lshl_add_u32 v16, v17, 4, v16")
        pe("s_lshr_b32 s%d, s%d, 4" % (S_T, S_W3L)); pe("s_lshl_b32 s%d, s3, 8" % S_U); pe("s_add_u32 s%d, s%d, s%d" % (S_T, S_T, S_U)); pe("v_add_u32 v%d, s%d, v16" % (V_OUT, S_T))
        if sw:
            pe("v_mul_u32_u24 v16, 9216, v%d" % I); pe("v_lshl_add_u32 v16, v%d, 4, v16" % G); pe("v_add_u32 v%d, s%d, v16" % (V_OUT, S_T))
        if epi == 1:
            pe("v_and_b32 v16, 3, v%d" % I); pe("v_lshlrev_b32 v16, 4, v16"); pe("v_lshrrev_b32 v17, 3, v%d" % I); pe("v_lshl_add_u32 v16, v17, 3, v16")
            pe("v_bfe_u32 v17, v%d, 2, 1" % I); pe("v_lshl_add_u32 v16, v17, 2, v16"); pe("v_mul_u32_u24 v17, %d, v%d" % (4*9216, G)); pe("v_add_u32 v16, v16, v17")
            pe("v_add_u32 v%d, s%d, v16" % (V_E, S_T))
            for r in range(1, 4): pe("v_add_u32 v%d, %d, v%d" % (V_E+r, 9216*r, V_E))
        if fseg == 128:
            pe("v_lshrrev_b32 v16, 3, v%d" % L); pe("v_mul_u32_u24 v16, 9216, v16"); pe("v_and_b32 v17, 7, v%d" % L); pe("v_lshl_add_u32 v16, v17, 4, v16")
            pe("s_and_b32 s%d, s%d, 1" % (S_T, S_W)); pe("s_lshl_b32 s%d, s%d, 7" % (S_T, S_T)); pe("s_add_u32 s%d, s%d, s%d" % (S_U, S_T, S_U))
            pe("s_bfe_u32 s%d, s%d, 0x10001" % (S_T, S_W)); pe("s_mul_i32 s%d, s%d, %d" % (S_T, S_T, 8*9216)); pe("s_add_u32 s%d, s%d, s%d" % (S_T, S_T, S_U)); pe("v_add_u32 v%d, s%d, v16" % (V_OUT, S_T))
        if fseg == 256:
            pe("v_lshrrev_b32 v16, 4, v%d" % L); pe("v_mul_u32_u24 v16, 9216, v16"); pe("v_and_b32 v17, 15, v%d" % L); pe("v_lshl_add_u32 v16, v17, 4, v16")
            pe("s_and_b32 s%d, s%d, 3" % (S_T, S_W)); pe("s_mul_i32 s%d, s%d, %d" % (S_T, S_T, 4*9216)); pe("s_add_u32 s%d, s%d, s%d" % (S_T, S_T, S_U)); pe("v_add_u32 v%d, s%d, v16" % (V_OUT, S_T))
        pe("v_bfe_u32 v16, v%d, 2, 1" % I); pe("v_and_b32 v17, 3, v%d" % I); pe("v_lshlrev_b32 v17, 1, v17"); pe("v_lshrrev_b32 v18, 3, v%d" % I); pe("v_add_u32 v17, v17, v18")
        if sw: pe("v_and_b32 v16, 1, v%d" % I); pe("v_lshrrev_b32 v17, 1, v%d" % I)
        pe("v_lshlrev_b32 v17, 4, v17"); pe("v_lshl_add_u32 v17, v16, 10, v17"); pe("v_lshl_add_u32 v17, v%d, 7, v17" % G)
        pe("s_lshl_b32 s%d, s%d, 1" % (S_T, S_W3L)); pe("v_add_u32 v%d, s%d, v17" % (V_WR, S_T))
        pe("v_and_b32 v16, 7, v%d" % I); pe("v_lshlrev_b32 v16, 4, v16"); pe("v_lshl_add_u32 v17, v18, 3, v16"); pe("v_lshl_add_u32 v17, v%d, 7, v17" % G)
        pe("s_add_u32 s%d, s%d, %d" % (S_T, S_T, rh*8192)); pe("v_add_u32 v%d, s%d, v17" % (V_WA0, S_T))
        pe("s_lshr_b32 s%d, s%d, 3" % (S_T, S_W3L)); pe("s_add_u32 s%d, s%d, %d" % (S_T, S_T, rh*1024 + TAB)); pe("v_add_u32 v%d, s%d, v16" % (V_TAB, S_T))
        pe("v_lshrrev_b32 v16, 1, v%d" % I); pe("v_xor_b32 v16, v16, v%d" % G); pe("v_lshlrev_b32 v16, 4, v16"); pe("v_lshl_add_u32 v%d, v%d, 7, v16" % (V_X, I))
        if rh: pe("v_add_u32 v%d, 2048, v%d" % (V_X, V_X))
        pe("v_xor_b32 v%d, 64, v%d" % (V_X+1, V_X))
        for w_ in (1, 2):
            pe("v_add_u32 v%d, %d, v%d" % (V_X+2*w_, w_ << 16, V_X)); pe("v_add_u32 v%d, %d, v%d" % (V_X+2*w_+1, w_ << 16, V_X+1))
        pe("v_lshrrev_b32 v16, 4, v0"); pe("v_lshlrev_b32 v16, 10, v16"); pe("v_lshl_add_u32 v%d, v%d, 5, v16" % (V_T1, I))
        pe("s_mov_b32 s%d, 0x00ff00ff" % S_M8); pe("s_mov_b32 s%d, 0x00ff00ff" % (S_M8+1)); pe("s_not_b64 s[%d:%d], s[%d:%d]" % (S_M8N, S_M8N+1, S_M8, S_M8+1))
        pe("s_mov_b32 s%d, 0x0f0f0f0f" % S_M4); pe("s_mov_b32 s%d, 0x0f0f0f0f" % (S_M4+1)); pe("s_not_b64 s[%d:%d], s[%d:%d]" % (S_M4N, S_M4N+1, S_M4, S_M4+1))
        if rh == 1:
            pe("s_cmp_lg_u32 s%d, 4" % S_W); pe("s_cbranch_scc1 L_notab")
            pe("s_mov_b32 exec_hi, 0")
        sv = p.vmdone
        p.wait(vm=lambda x: x == "tab")
        for c in range(4):
            pe("v_lshlrev_b32 v%d, 16, v%d" % (32+2*c, 24+c)); pe("v_and_b32 v%d, 0xffff0000, v%d" % (33+2*c, 24+c))
            pe("v_lshlrev_b32 v%d, 16, v%d" % (40+2*c, 28+c)); pe("v_and_b32 v%d, 0xffff0000, v%d" % (41+2*c, 28+c))
        pe("ds_write_b128 v%d, v[32:35] offset:%d" % (V_T1, TAB)); pe("ds_write_b128 v%d, v[36:39] offset:%d" % (V_T1, TAB+16))
        for c in range(8): pe("v_mul_f32 v%d, -v%d, v%d" % (40+c, 40+c, 32+c))
        pe("ds_write_b128 v%d, v[40:43] offset:%d" % (V_T1, TAB+512)); pe("ds_write_b128 v%d, v[44:47] offset:%d" % (V_T1, TAB+528))
        pe("s_waitcnt lgkmcnt(0)")
        if rh == 1:
            pe("s_mov_b32 exec_hi, -1")
            a.lab("L_notab")
            p.vmdone = sv
        pe("s_barrier")
        def tab_reads(t):
            p.lds("ds_read_b128 v[%d:%d], v%d offset:%d" % (V_S, V_S+3, V_TAB, t*2048), ("t", t))
            p.lds("ds_read_b128 v[%d:%d], v%d offset:%d" % (V_NZ, V_NZ+3, V_TAB, t*2048+512), ("t", t))
        def dequant(t):
            R = V_W + 16*t
            ops = []
            for j in range(4):
                ops.append((0, lambda j=j: p.wait(vm=lambda x: x == ("q", t, j))))
                if not (abl & 129):
                    for c in range(4): ops.append((1, lambda x=4*j+c: pe("v_cvt_f32_i32 v%d, v%d" % (R+x, R+x))))
            ops.append((0, lambda: p.wait(lg=lambda x: x == ("t", t))))
            for c in range(4):
                if abl & 1:
                    if not (abl & 2): ops.append((0, lambda c=c: p.lds("ds_write_b64 v%d, v[%d:%d] offset:%d" % (V_WA0, V_PK+2*c, V_PK+2*c+1, WS[t % 2] + c*512), ("w", t))))
                    continue
                if pk:
                    if c % 2 == 0:
                        for j in range(4): ops.append((1, lambda x=4*j+c: pe("v_pk_fma_f32 v[%d:%d], v[%d:%d], v[%d:%d], v[%d:%d]" % (R+x, R+x+1, R+x, R+x+1, V_S+(x & 3), V_S+(x & 3)+1, V_NZ+(x & 3), V_NZ+(x & 3)+1))))
                else:
                    for j in range(4): ops.append((1, lambda x=4*j+c: pe("v_fma_f32 v%d, v%d, v%d, v%d" % (R+x, R+x, V_S+(x & 3), V_NZ+(x & 3)))))
                ops.append((1, lambda c=c: pe("v_cvt_pk_bf16_f32 v%d, v%d, v%d" % (V_PK+2*c, R+c, R+4+c))))
                ops.append((1, lambda c=c: pe("v_cvt_pk_bf16_f32 v%d, v%d, v%d" % (V_PK+2*c+1, R+8+c, R+12+c))))
                if not (abl & 2): ops.append((0, lambda c=c: p.lds("ds_write_b64 v%d, v[%d:%d] offset:%d" % (V_WA0, V_PK+2*c, V_PK+2*c+1, WS[t % 2] + c*512), ("w", t)), "w"))
            if wdel:
                o2 = []; held = []
                for o in ops:
                    if len(o) == 3: held.append([wdel, o[:2]]); continue
                    o2.append(o)
                    if o[0]:
                        for h in held: h[0] -= 1
                        while held and held[0][0] <= 0: o2.append(held.pop(0)[1])
                o2 += [h[1] for h in held]
                ops = o2
            ops = [o[:2] for o in ops]
            return ops
        def epilogue(acc, idx):
            ops = []
            V_D, V_E, V_O = (acc, acc+4, acc) if ipe else (48, 52, 56)
            def firstop():
                p.need_mfma_done(acc); p.need_mfma_done(acc+4)
                pe("v_cvt_pk_bf16_f32 v%d, v%d, v%d" % (V_D, acc, acc+4))
            ops.append((1, firstop))
            for r in range(1, 4): ops.append((1, lambda r=r: pe("v_cvt_pk_bf16_f32 v%d, v%d, v%d" % (V_D+r, acc+r, acc+4+r))))
            if epi == 1:
                ops = []
                dd = V_D if idx % 4 < 2 else V_O
                def firstop():
                    p.need_mfma_done(acc); p.need_mfma_done(acc+4)
                    pe("s_add_u32 s%d, s%d, %d" % (S_EO, S_BASE, idx*18432)); pe("s_cmp_ge_u32 s%d, s%d" % (S_EO, S_END)); pe("s_cselect_b32 s%d, s%d, 0" % (S_INV, S_SPAN))
                    pe("v_cvt_pk_bf16_f32 v%d, v%d, v%d" % (dd, acc, acc+4))
                    pe("s_sub_u32 s%d, s%d, s%d" % (S_EO, S_EO, S_INV)); pe("s_lshl_b32 s%d, s%d, 3" % (S_EO, S_EO))
                ops.append((1, firstop))
                for r in range(1, 4): ops.append((1, lambda r=r: pe("v_cvt_pk_bf16_f32 v%d, v%d, v%d" % (dd+r, acc+r, acc+4+r))))
                for r in range(4): ops.append((stc, lambda r=r: p.vmem("buffer_store_dword v%d, v%d, s[%d:%d], s%d offen %s" % (dd+r, V_E+r, S_O, S_O+3, S_EO, spol), "st")))
                return ops
            if sw:
                ops.insert(1, (0, lambda: (pe("s_add_u32 s%d, s%d, %d" % (S_EO, S_BASE, idx*18432)), pe("s_cmp_ge_u32 s%d, s%d" % (S_EO, S_END)), pe("s_cselect_b32 s%d, s%d, 0" % (S_INV, S_SPAN)))))
                ops.insert(3, (0, lambda: (pe("s_sub_u32 s%d, s%d, s%d" % (S_EO, S_EO, S_INV)), pe("s_lshl_b32 s%d, s%d, 3" % (S_EO, S_EO)))))
                ops.append((0, lambda: p.vmem("buffer_store_dwordx4 v[%d:%d], v%d, s[%d:%d], s%d offen %s" % (V_D, V_D+3, V_OUT, S_O, S_O+3, S_EO, spol), "st")))
                return ops
            def dpp(d, s0, s1, ror): pe("v_cndmask_b32_dpp v%d, v%d, v%d, vcc row_ror:%d row_mask:0xf bank_mask:0xf" % (d, s0, s1, ror))
            ops.append((0, lambda: (pe("s_mov_b64 vcc, s[%d:%d]" % (S_M8, S_M8+1)), pe("s_add_u32 s%d, s%d, %d" % (S_EO, S_BASE, idx*18432)))))
            ops.append((1, lambda: dpp(V_E+0, V_D+2, V_D+0, 8)))
            ops.append((1, lambda: dpp(V_E+1, V_D+3, V_D+1, 8)))
            ops.append((0, lambda: (pe("s_mov_b64 vcc, s[%d:%d]" % (S_M8N, S_M8N+1)), pe("s_cmp_ge_u32 s%d, s%d" % (S_EO, S_END)), pe("s_cselect_b32 s%d, s%d, 0" % (S_INV, S_SPAN)))))
            ops.append((1, lambda: dpp(V_E+2, V_D+0, V_D+2, 8)))
            ops.append((1, lambda: dpp(V_E+3, V_D+1, V_D+3, 8)))
            ops.append((0, lambda: (pe("s_mov_b64 vcc, s[%d:%d]" % (S_M4, S_M4+1)), pe("s_sub_u32 s%d, s%d, s%d" % (S_EO, S_EO, S_INV)))))
            ops.append((1, lambda: dpp(V_O+0, V_E+1, V_E+0, 4)))
            ops.append((1, lambda: dpp(V_O+2, V_E+3, V_E+2, 4)))
            ops.append((0, lambda: (pe("s_mov_b64 vcc, s[%d:%d]" % (S_M4N, S_M4N+1)), pe("s_lshl_b32 s%d, s%d, 3" % (S_EO, S_EO)))))
            ops.append((1, lambda: dpp(V_O+1, V_E+0, V_E+1, 12)))
            ops.append((1, lambda: dpp(V_O+3, V_E+2, V_E+3, 12)))
            if abl & 1024: ops = [(c_, (lambda: None) if c_ else f_) for c_, f_ in ops]
            if not (abl & 256) or ((abl & 512) and idx >= 12): ops.append((0, lambda: p.vmem("buffer_store_dwordx4 v[%d:%d], v%d, s[%d:%d], s%d offen %s" % (V_O, V_O+3, V_OUT, S_O, S_O+3, S_EO, spol), "st")))
            return ops
        def guarantees(ep):
            p.wait(vm=lambda x: x[0] == "x" and x[1] <= ep, lg=lambda x: x == ("w", ep))
        tab_reads(0)
        lds_ = load_ops(-1)
        dq = dequant(0)
        k = 0
        for i, (c, f) in enumerate(dq):
            f()
            if c and i % 3 == 2 and k < len(lds_): lds_[k](); k += 1
        while k < len(lds_): lds_[k](); k += 1
        nF = len(frag_list) - (18 if rh else 0)
        def acc_of(j): return V_A1 + 8*j if j < P1 else V_S + 8*((j - P1) % 2)
        freg = {}
        def frag_read(f, b=None):
            j, t, e_ = frag_list[f]
            if b is None: b = XF[f % len(XF)]
            r, o = xaddr(gran[(j, t)]*4096, e_)
            if not ((abl & 32) and f > 4): p.lds("ds_read_b128 v[%d:%d], v%d offset:%d" % (b, b+3, r, o), ("f", f))
            freg[f] = b
        dqq = []; dq_at = 0
        epq = []
        ldq = []; ld_at = 0
        m = 0; ntr = 0; cur_ep = -1; m_tr = 0; hq = []
        def run_fill(budget):
            while dqq and m >= dq_at and (budget > 0 or dqq[0][0] == 0):
                c, f = dqq.pop(0); f(); budget -= c
            return budget
        def run_ep(budget):
            while epq and m >= epq[0][0] and (budget > 0 or epq[0][2][0][0] == 0):
                c, f = epq[0][2].pop(0); f(); budget -= c
                if not epq[0][2]: epq.pop(0)
        def flush_ep(upto_acc=None):
            k_ = 0
            while epq and (upto_acc is None or any(x[1] == upto_acc for x in epq)):
                c, f = epq[0][2].pop(0); f(); k_ += 1
                if not epq[0][2]: epq.pop(0)
            if k_ and ipe and upto_acc is not None: pe("s_nop 1")
        def seq_of(f):
            o_ = od if frag_list[f][0] < P1 else od2
            if o_ == 0: return [(0, 0), (1, 0), (0, 1), (1, 1)]
            if o_ == 1: return [(0, 0), (0, 1), (1, 0), (1, 1)]
            if o_ == 3 or (f // 2) % 2 == 0: return [(0, 0), (0, 1), (1, 1), (1, 0)]
            return [(1, 0), (1, 1), (0, 1), (0, 0)]
        acc_used = set()
        for f in range(nF):
            j, t, e_ = frag_list[f]
            if f in bpos:
                ep = bpos.index(f)
                while ldq: ldq.pop(0)()
                while dqq: dqq.pop(0)[1]()
                if rh == trh and ep == trace + 1 and trace >= 0: a.cstamp(ntr, TR); ntr += 1
                guarantees(ep)
                if rh == trh and ep == trace + 1 and trace >= 0: a.cstamp(ntr, TR); ntr += 1
                if not ((abl & 64) and 1 <= ep <= 8): pe("s_barrier")
                if rh == trh and ep in (trace, trace + 1) and trace >= 0: a.cstamp(ntr, TR); ntr += 1; m_tr = m
                cur_ep = ep; m_ep = m
                if rh == 1 and (pt1 if ep < 9 else pt2): pe("s_setprio %d" % pth); cur_pr = pth
                elif rh == 1 and ep == 9 and pt1: pe("s_setprio %d" % prio)
                if SL and ep in SL and rh == 0:
                    a.stamp(1 + SL.index(ep)); p.lg_all()
                if stamps and stamps < 3 and ep in (0, smid, 9) and not SL:
                    a.stamp({0: 2, smid: 3, 9: 4}[ep]); p.lg_all()
                hq = []
                h_ = hw if (rh == 0 or hw1 < 0) else hw1
                if ep <= 8 and not ((abl & 16) and ep >= 1):
                    for i_, (c, ks) in enumerate(seq_of(first[ep])):
                        if 1:
                            def wr(ks=ks, c=c, ep=ep):
                                r = V_W + 16*ep + 8*ks + 4*c
                                p.lds("ds_read_b128 v[%d:%d], v%d offset:%d" % (r, r+3, V_WR, WS[ep % 2] + ks*8192 + c*512), ("W", ep, ks, c))
                            if h_ and ep >= 1: hq.append([m + h_ + wst*i_, wr])
                            else: wr()
                if ep == 0:
                    for f2 in range(pf + (1 if od else 0)): frag_read(f2)
                if ep + 1 <= 8:
                    if not (abl & 16) and not (tabe == 1 and ep >= 1):
                        if tabe == 2 and ep >= 1: hq.append([m + h_ + 4*wst, lambda ep=ep: tab_reads(ep+1)])
                        else: tab_reads(ep+1)
                    dqq = dequant(ep+1); dq_at = m + (dq1 if rh else dq0)
                    if tabe == 1 and ep + 2 <= 8:
                        k_ = max(i for i, (c_, f_) in enumerate(dqq) if c_) - 2
                        dqq.insert(k_ + 1, (0, lambda ep=ep: tab_reads(ep+2)))
                ldq = load_ops(ep)
                nM = 2*((bpos[ep+1] if ep+1 < NE else nF) - f)
                n_ = len(ldq)
                ldpos = [m + ld0 + int((i + 0.5*rh + 0.25) * (nM - ld0 - ldm) / max(n_, 1)) for i in range(n_)]
            if rh == 0 and f == fidx[(9, 0, 0)]:
                pe("s_cmp_eq_u32 s%d, 18" % S_NB); pe("s_cbranch_scc1 L_skip")
                skip_state = ([(x[1], x[3]) for x in epq], [len(x[2]) for x in epq], dict(p.lastmf), p.n)
            late = (hw and f in bpos and f > 0)
            if f + pf < nF and not late and not od: frag_read(f + pf)
            acc = acc_of(j)
            if j >= P1 and t == 0 and e_ == 0: flush_ep(acc)
            for i_, (c, e2) in enumerate(seq_of(f)[2*e_:2*e_+2]):
                ff = f - e_ + e2
                W0 = V_W + 16*t + 8*e2 + 4*c
                if j < P1 and not (abl & 16): assert ("W", t, e2, c) in p.lg
                p.wait(lg=lambda x: x == ("f", ff) or x == ("W", t, e2, c))
                p.mfma(acc + 4*c, freg[ff], W0, (j, c) not in acc_used)
                acc_used.add((j, c))
                m += 1
                pt_ = pt1 if cur_ep < 9 else pt2
                if rh == 1 and pt_ and (m - m_ep) % pt_ == 0: cur_pr = 1 - cur_pr; pe("s_setprio %d" % cur_pr)
                if od:
                    if e_ == 1 and f + pf + i_ < nF: frag_read(f + pf + i_, freg[ff])
                elif late and i_ == 0 and f + pf < nF: frag_read(f + pf)
                while hq and m >= hq[0][0]: hq.pop(0)[1]()
                while ldq and m >= ldpos[0]: ldq.pop(0)(); ldpos.pop(0)
                if rh == trh and cur_ep == trace and (m - m_tr) % tstep == 0 and ntr < len(TR) - 3: a.cstamp(ntr, TR); ntr += 1
                b = run_fill(per1)
                if not dqq:
                    if er: run_ep(min(b, (er*(m+1))//12 - (er*m)//12))
                    else: run_ep(min(b, per2))
            if t == 8 and e_ == 1:
                epq.append([m + epd, acc, epilogue(acc, 2*j + rh), 2*j + rh])
        assert not ldq and not dqq
        flush_ep()
        if rh == 0:
            pe("s_branch L_end")
            a.lab("L_skip")
            lst, lens, lm, n_ = skip_state
            p.lastmf = {k: p.n - (n_ - v) for k, v in lm.items()}
            for (acc, idx), ln in zip(lst, lens):
                ops = epilogue(acc, idx)
                for c, f in ops[len(ops)-ln:]: f()
            a.lab("L_end")
        if stamps == 3 and rh == trh:
            sys.stderr.write("trace stamps: %d\n" % ntr)
            a.dump_regs(TR[:ntr], 36, 256*trh)
        if SL and rh == 0:
            a.stamp(1 + len(SL))
            a.dump_stamps(2 + len(SL), 36, vtmp=0)
        elif stamps and stamps < 3 and rh == 0:
            a.stamp(5)
            pe("s_waitcnt vmcnt(0)")
            a.stamp(6)
            if stamps == 2: a.dbg_stamps(7, 36)
            else: a.dump_stamps(7, 36, vtmp=0)
        pe("s_endpgm")
    a.lab("L_done")
    e("s_endpgm")
    a.descriptor(KN, 256, 102, 256)
    a.write(path)

if __name__ == "__main__":
    kw = dict(s.split("=") for s in sys.argv[2:])
    for k in kw:
        if k in ("sl", "kst"): pass
        elif k in ("spol", "qpol", "xpol"): kw[k] = kw[k].replace("+", " ").replace("plain", "")
        else: kw[k] = int(kw[k])
    build(sys.argv[1], **kw)
```

```python
import sys
from asmlib import *

V_Q, V_XD, V_OUT, V_WR, V_WA0, V_WA1, V_TAB = 1, 2, 3, 4, 5, 6, 7
V_X = 8
V_T0, V_T1 = 14, 15
V_QJ = [1, 109, 110, 111]
V_S, V_NZ, V_PK = 32, 36, 40
V_D, V_E, V_O = 48, 52, 56
V_A1 = 60
V_W = 112
S_X, S_Q, S_S, S_Z, S_O, S_WS = 16, 20, 24, 28, 32, 36
S_P = 40
S_INV = 49
S_BASE, S_END, S_SPAN, S_B2, S_W3L, S_NB, S_W = 50, 51, 52, 53, 54, 55, 56
S_T, S_U, S_QO, S_EO = 57, 58, 59, 14
S_DJ = 60
S_M8, S_M8N, S_M4, S_M4N = 90, 92, 94, 96
S_PAN, S_CH, S_JH, S_RH, S_ROT = 3, 98, 99, 100, 101

class Prog:
    def __init__(self, a):
        self.a = a; self.vm = []; self.lg = []; self.vmdone = 0; self.lgdone = 0; self.n = 0
        self.lastmf = {}
    def e(self, s):
        self.a.e(s); self.n += 1
    def vmem(self, s, tag): self.e(s); self.vm.append(tag)
    def lds(self, s, tag): self.e(s); self.lg.append(tag)
    def _cnt(self, lst, done, pred):
        for i in range(len(lst)-1, done-1, -1):
            if pred(lst[i]): return i
        return -1
    def wait(self, vm=None, lg=None):
        parts = []
        if vm is not None:
            idx = self._cnt(self.vm, self.vmdone, vm)
            if idx >= 0:
                n = min(len(self.vm)-1-idx, 63)
                parts.append("vmcnt(%d)" % n); self.vmdone = len(self.vm) - n
        if lg is not None:
            idx = self._cnt(self.lg, self.lgdone, lg)
            if idx >= 0:
                n = min(len(self.lg)-1-idx, 15)
                parts.append("lgkmcnt(%d)" % n); self.lgdone = len(self.lg) - n
        if parts: self.e("s_waitcnt " + " ".join(parts))
    def lg_all(self):
        self.e("s_waitcnt lgkmcnt(0)"); self.lgdone = len(self.lg)
    def mfma(self, d, x, w, first):
        c = "0" if first else "v[%d:%d]" % (d, d+3)
        if self.sw: x, w = w, x
        self.e("v_mfma_f32_16x16x32_bf16 v[%d:%d], v[%d:%d], v[%d:%d], %s" % (d, d+3, x, x+3, w, w+3, c))
        self.lastmf[d] = self.n
    def need_mfma_done(self, d):
        if d in self.lastmf:
            gap = self.n - self.lastmf[d]
            if gap < 8: self.e("s_nop %d" % (8-gap-1))

def build(path, b1=12, D=3, n0=1, spol="nt", stamps=0, krot=1, rrot=4, dq0=0, dq1=0, per1=2, per2=2, cap=12, prio=0, pf=3,
          ld0=0, ldm=2, n1=2, epd=4, smid=4, qpol="", xpol="", abl=0, trace=-1, trh=0, tstep=4, early=0, qa=0, fseg=0, r9=0, hw=0, hw1=-1, tabe=0, xs=0, xs2=0, wst=1, cyc=0, sl="", p2s=0, wdel=0, epi=0, stc=1, pt1=0, pt2=0, pth=1, sk12=0, od=0, od2=-1, ipe=0, er=0, pk=0, sw=0, kst="", plm=1, xl0=-1, e7=-1, e8=-1, xfirst=0, pst=-1, pro=0, mid=3, mid0=2, tl=0, tg=128, tw=4, th=1, tp=-1, tpos=0, tn=1, tpol="", xd0=0, t0=2):
    a = Asm(); e = a.e
    SL = [int(x) for x in sl.split("_")] if sl else []
    if cyc: a.stamp = lambda i, base=70: a.e("s_memtime s[%d:%d]" % (base+2*i, base+2*i+1))
    KN = NAME + "_kernel"
    P1 = b1 // 2
    assert b1 % 2 == 0 and (P1 <= 6 or (P1 == 7 and ipe and pf <= 3))
    V_A1 = 48 if P1 == 7 else 60
    assert pf <= 3 or (ipe and pf <= 6)
    if od2 < 0: od2 = od
    assert (od > 0) == (od2 > 0) and (not od or pf % 2 == 1)
    XF = [16, 20, 24, 28, 48, 52, 56][:pf+1]
    a.header(["; @launch grid=(256,1,1) block=(512,1,1) lds=%d" % (160*1024)])
    a.kernel_start(KN)
    TR = [70, 72, 74, 76, 78, 80, 82, 84, 86, 88, 4, 6, 8, 10, 12]
    if trace >= 0: stamps = 3
    PS = [70, 72, 74, 76, 78, 80, 82, 84, 86, 88, 4, 6, 8, 10, 12]
    psn = [0]
    def pstamp(rh_=None):
        if pst < 0 or (rh_ is not None and rh_ != pst): return
        e("s_memrealtime s[%d:%d]" % (PS[psn[0]], PS[psn[0]]+1)); psn[0] += 1
    if pst >= 0: stamps = 4
    pstamp()
    if stamps and stamps < 3: a.stamp(0)
    e("s_cmp_ge_u32 s2, 256"); e("s_cbranch_scc1 L_done")
    L, I, G = 20, 21, 22
    def late_scalars():
        pe_ = e
        pe_("s_cmp_lt_u32 s%d, 2" % S_R); pe_("s_cselect_b32 s%d, 19, 18" % S_NB)
        pe_("v_and_b32 v%d, 15, v0" % I)
        pe_("s_min_u32 s100, s%d, 2" % S_R); pe_("s_mul_i32 s%d, s%d, 18" % (S_T, S_R)); pe_("s_add_u32 s100, s100, s%d" % S_T)
        pe_("v_bfe_u32 v%d, v0, 4, 2" % G)
        pe_("s_add_u32 s%d, s100, s%d" % (S_T, S_NB)); pe_("s_mul_i32 s%d, s%d, 18432" % (S_END, S_T))
        pe_("s_mul_i32 s%d, s%d, 18432" % (S_SPAN, S_NB))
        pe_("s_and_b32 s98, s%d, 1" % S_W)
        pe_("s_bfe_u32 s99, s%d, 0x10001" % S_W)
        pe_("s_lshl_b32 s%d, s98, 2" % S_T); pe_("v_add_u32 v23, s%d, v%d" % (S_T, G)); pe_("v_and_b32 v24, 7, v%d" % L); pe_("v_xor_b32 v23, v23, v24")
        if rrot:
            pe_("s_sub_u32 s%d, s%d, 5" % (S_T, S_PL)); pe_("s_cmp_ge_u32 s%d, 5" % S_PL); pe_("s_cselect_b32 s%d, s%d, s%d" % (S_T, S_T, S_PL)); pe_("s_mul_i32 s%d, s%d, %d" % (S_T, S_T, rrot))
            pe_("s_add_u32 s100, s100, s%d" % S_T)
        pe_("v_lshrrev_b32 v24, 3, v%d" % L); pe_("v_mul_u32_u24 v24, 1152, v24"); pe_("v_lshl_add_u32 v%d, v23, 4, v24" % V_XD)
        pe_("s_mul_i32 s%d, s100, 18432" % S_BASE)
        pe_("s_mul_i32 s%d, s98, 9216" % S_T); pe_("v_add_u32 v%d, s%d, v%d" % (V_XD, S_T, V_XD))
        pe_("s_mul_i32 s%d, s99, 18432" % S_T); pe_("s_add_u32 s%d, s%d, s%d" % (S_B2, S_BASE, S_T))
        pe_("s_lshl_b32 s%d, s%d, 10" % (S_W3L, S_W)); pe_("s_and_b32 s%d, s%d, 0xc00" % (S_W3L, S_W3L))
        pe_("s_mov_b32 s%d, %d" % (S_X+2, M*K*2)); pe_("s_mov_b32 s%d, 0x00020000" % (S_X+3))
    def late2():
        for t in range(1, 9):
            e("s_add_u32 s%d, s%d, 128" % (S_P+t, S_P+t-1)); e("s_cmp_eq_u32 s%d, 1152" % (S_P+t)); e("s_cselect_b32 s%d, 0, s%d" % (S_P+t, S_P+t))
        e("s_mov_b32 s%d, %d" % (S_O+2, M*N*2)); e("s_mov_b32 s%d, 0x00020000" % (S_O+3))
        if stamps:
            e("s_mov_b32 s38, %s" % ("256" if stamps == 2 else "0x10000000")); e("s_mov_b32 s39, 0x00020000")
    def tab_addr():
        e("v_lshrrev_b32 v23, 5, v0"); e("v_add_u32 v23, s101, v23"); e("v_subrev_u32 v24, 9, v23"); e("v_min_u32 v23, v23, v24")
        e("v_bfe_u32 v24, v0, 4, 1"); e("v_lshl_add_u32 v23, v23, 1, v24"); e("v_mul_u32_u24 v23, 9216, v23")
        e("v_and_b32 v24, 15, v0"); e("v_lshl_add_u32 v23, v24, 4, v23"); e("s_lshl_b32 s%d, s3, 8" % S_T); e("v_add_u32 v%d, s%d, v23" % (V_T0, S_T))
        for sr in (S_S, S_Z):
            e("s_mov_b32 s%d, %d" % (sr+2, 18*N*2)); e("s_mov_b32 s%d, 0x00020000" % (sr+3))
    if pro:
        assert kst and plm == 1 and not early
        S_R, S_PL = 15, 13
        if pst >= 0: PS.remove(12)
        e("s_load_dwordx2 s[%d:%d], s[0:1], 8" % (S_Q, S_Q+1))
        e("s_load_dwordx2 s[%d:%d], s[0:1], 16" % (S_S, S_S+1))
        e("s_load_dwordx2 s[%d:%d], s[0:1], 24" % (S_Z, S_Z+1))
        e("s_load_dwordx2 s[%d:%d], s[0:1], 0" % (S_X, S_X+1))
        e("s_load_dwordx2 s[%d:%d], s[0:1], 32" % (S_O, S_O+1))
        if stamps: e("s_load_dwordx2 s[36:37], s[0:1], %d" % (40 if stamps == 2 else 48))
        e("v_lshrrev_b32 v1, 6, v0")
        e("s_and_b32 s3, s2, 1"); e("s_lshl_b32 s3, s3, 5"); e("s_lshr_b32 s98, s2, 3"); e("s_add_u32 s3, s3, s98")
        e("v_readfirstlane_b32 s%d, v1" % S_W)
        e("s_cmp_eq_u32 s3, 63"); e("s_cbranch_scc1 L_done")
        e("v_and_b32 v%d, 63, v0" % L)
        e("s_mul_i32 s%d, s3, 37" % S_PL); e("s_lshr_b32 s%d, s%d, 8" % (S_PL, S_PL))
        e("v_lshrrev_b32 v23, 3, v%d" % L)
        e("s_mul_i32 s%d, s%d, 7" % (S_R, S_PL)); e("s_sub_u32 s%d, s3, s%d" % (S_R, S_R))
        e("v_mul_u32_u24 v23, %d, v23" % (4*18432))
        e("s_bfe_u32 s3, s2, 0x20001"); e("s_mul_i32 s3, s3, 9"); e("s_add_u32 s3, s3, s%d" % S_PL)
        e("v_and_b32 v24, 7, v0")
        cst = sum(int(ch) << (4*i) for i, ch in enumerate(kst))
        e("s_lshl_b32 s101, s%d, 2" % S_R); e("s_lshr_b32 s101, 0x%x, s101" % cst); e("s_and_b32 s101, s101, 15")
        e("v_lshl_add_u32 v23, v24, 4, v23")
        e("s_add_u32 s101, s101, s%d" % S_PL)
        e("s_sub_u32 s100, s101, 9"); e("s_min_u32 s101, s100, s101")
        e("s_lshl_b32 s%d, s101, 7" % S_P)
        e("s_lshr_b32 s100, s%d, 2" % S_W)
        e("s_mul_i32 s%d, s100, %d" % (S_T, 32*18432)); e("s_lshl_b32 s%d, s3, 9" % S_U); e("s_add_u32 s%d, s%d, s%d" % (S_T, S_T, S_U))
        e("s_and_b32 s%d, s%d, 3" % (S_U, S_W)); e("s_lshl_b32 s%d, s%d, 7" % (S_U, S_U)); e("s_add_u32 s%d, s%d, s%d" % (S_T, S_T, S_U))
        e("v_add_u32 v%d, s%d, v23" % (V_QJ[0], S_T))
        e("s_mov_b32 s%d, %d" % (S_Q+2, K*N*4)); e("s_mov_b32 s%d, 0x00020000" % (S_Q+3))
        for j in range(1, 4): e("v_add_u32 v%d, %d, v%d" % (V_QJ[j], 18432*j, V_QJ[0]))
        tab_addr()
        pstamp()
        e("s_cmp_lg_u32 s100, 0"); e("s_cbranch_scc1 L_rh1")
    else:
        e("s_load_dwordx2 s[%d:%d], s[0:1], 16" % (S_S, S_S+1))
        e("s_load_dwordx2 s[%d:%d], s[0:1], 24" % (S_Z, S_Z+1))
        e("s_load_dwordx2 s[%d:%d], s[0:1], 8" % (S_Q, S_Q+1))
        e("s_load_dwordx2 s[%d:%d], s[0:1], 0" % (S_X, S_X+1))
        e("s_load_dwordx2 s[%d:%d], s[0:1], 32" % (S_O, S_O+1))
        if stamps: e("s_load_dwordx2 s[36:37], s[0:1], %d" % (40 if stamps == 2 else 48))
        e("s_and_b32 s3, s2, 1"); e("s_lshl_b32 s3, s3, 5"); e("s_lshr_b32 s98, s2, 3"); e("s_add_u32 s3, s3, s98")
        e("s_cmp_eq_u32 s3, 63"); e("s_cbranch_scc1 L_done")
        e("v_lshrrev_b32 v1, 6, v0")
        e("s_mul_i32 s98, s3, 37"); e("s_lshr_b32 s98, s98, 8")
        e("v_readfirstlane_b32 s%d, v1" % S_W)
        e("s_mul_i32 s99, s98, 7"); e("s_sub_u32 s99, s3, s99")
        e("s_bfe_u32 s3, s2, 0x20001"); e("s_mul_i32 s3, s3, 9"); e("s_add_u32 s3, s3, s98")
        e("s_cmp_lt_u32 s99, 2"); e("s_cselect_b32 s%d, 19, 18" % S_NB)
        e("s_min_u32 s100, s99, 2"); e("s_mul_i32 s101, s99, 18"); e("s_add_u32 s100, s100, s101")
        e("s_add_u32 s101, s100, s%d" % S_NB); e("s_mul_i32 s%d, s101, 18432" % S_END)
        e("s_mul_i32 s%d, s%d, 18432" % (S_SPAN, S_NB))
        if rrot:
            e("s_sub_u32 s101, s98, 5"); e("s_cmp_ge_u32 s98, 5"); e("s_cselect_b32 s101, s101, s98"); e("s_mul_i32 s101, s101, %d" % rrot)
            e("s_add_u32 s100, s100, s101")
        e("s_mul_i32 s%d, s100, 18432" % S_BASE)
        if early:
            e("s_add_u32 s101, s99, s3"); e("s_mul_i32 s100, s101, 37"); e("s_lshr_b32 s100, s100, 8"); e("s_mul_i32 s100, s100, 7")
            e("s_sub_u32 s101, s101, s100"); e("s_add_u32 s101, s101, 2")
            e("s_mov_b32 s%d, 0" % S_P); e("s_movk_i32 s%d, 128" % (S_P+1))
            for t in range(2, 8):
                e("s_cmp_le_u32 s101, %d" % t); e("s_cselect_b32 s%d, %d, %d" % (S_P+t, 64*(t+1), 64*t) if 0 else "s_cselect_b32 s%d, 128, 0" % (S_P+t)); e("s_add_u32 s%d, s%d, %d" % (S_P+t, S_P+t, 128*t))
            e("s_lshl_b32 s%d, s101, 7" % (S_P+8))
        else:
          if kst:
            cst = sum(int(ch) << (4*i) for i, ch in enumerate(kst))
            e("s_lshl_b32 s101, s99, 2"); e("s_lshr_b32 s101, 0x%x, s101" % cst); e("s_and_b32 s101, s101, 15")
            pc = sum(((plm*i) % 9) << (4*i) for i in range(8))
            e("s_lshl_b32 s100, s98, 2"); e("s_lshr_b32 s100, 0x%x, s100" % pc); e("s_and_b32 s100, s100, 15"); e("s_cmp_eq_u32 s98, 8"); e("s_cselect_b32 s100, %d, s100" % ((plm*8) % 9))
            e("s_add_u32 s101, s101, s100")
            e("s_sub_u32 s100, s101, 9"); e("s_cmp_ge_u32 s101, 9"); e("s_cselect_b32 s101, s100, s101")
          elif krot == 3:
            e("s_mul_i32 s101, s99, 11"); e("s_lshr_b32 s101, s101, 5"); e("s_mul_i32 s101, s101, 3"); e("s_sub_u32 s101, s99, s101"); e("s_mul_i32 s101, s101, 3"); e("s_add_u32 s101, s101, s98")
            e("s_sub_u32 s100, s101, 9"); e("s_cmp_ge_u32 s101, 9"); e("s_cselect_b32 s101, s100, s101")
          elif krot == 4:
            e("s_and_b32 s101, s99, 6"); e("s_add_u32 s101, s101, s98")
            e("s_sub_u32 s100, s101, 9"); e("s_cmp_ge_u32 s101, 9"); e("s_cselect_b32 s101, s100, s101")
          elif krot == 5:
            e("s_and_b32 s101, s99, 6"); e("s_cmp_eq_u32 s99, 5"); e("s_cselect_b32 s101, 6, s101"); e("s_cmp_eq_u32 s99, 6"); e("s_cselect_b32 s101, 8, s101"); e("s_add_u32 s101, s101, s98")
            e("s_sub_u32 s100, s101, 9"); e("s_cmp_ge_u32 s101, 9"); e("s_cselect_b32 s101, s100, s101")
          elif krot == 2:
            e("s_mov_b32 s101, s98")
          elif krot:
            e("s_lshl_b32 s101, s98, 1"); e("s_add_u32 s101, s101, s99")
            if r9:
                e("s_cmp_ge_u32 s99, 4"); e("s_addc_u32 s101, s101, 0")
            for _ in range(2):
                e("s_sub_u32 s100, s101, 9"); e("s_cmp_ge_u32 s101, 9"); e("s_cselect_b32 s101, s100, s101")
          else:
            e("s_mov_b32 s101, 0")
          e("s_lshl_b32 s%d, s101, 7" % S_P)
          for t in range(1, 9):
            e("s_add_u32 s%d, s%d, 128" % (S_P+t, S_P+t-1)); e("s_cmp_eq_u32 s%d, 1152" % (S_P+t)); e("s_cselect_b32 s%d, 0, s%d" % (S_P+t, S_P+t))
        for (sr, nb_) in ((S_S, 18*N*2), (S_Z, 18*N*2), (S_Q, K*N*4), (S_X, M*K*2), (S_O, M*N*2)):
            e("s_mov_b32 s%d, %d" % (sr+2, nb_)); e("s_mov_b32 s%d, 0x00020000" % (sr+3))
        if stamps:
            e("s_mov_b32 s38, %s" % ("256" if stamps == 2 else "0x10000000")); e("s_mov_b32 s39, 0x00020000")
        L, I, G = 20, 21, 22
        e("v_and_b32 v%d, 63, v0" % L); e("v_and_b32 v%d, 15, v0" % I); e("v_bfe_u32 v%d, v0, 4, 2" % G)
        e("s_and_b32 s98, s%d, 1" % S_W)
        e("s_bfe_u32 s99, s%d, 0x10001" % S_W)
        e("s_lshr_b32 s100, s%d, 2" % S_W)
        if early:
            e("v_lshrrev_b32 v23, 5, v0"); e("v_mov_b32 v25, s101"); e("v_cmp_le_u32 vcc, s101, v23"); e("v_add_u32 v24, 1, v23"); e("s_nop 0")
            e("v_cndmask_b32 v24, v23, v24, vcc"); e("v_cmp_eq_u32 vcc, 8, v23"); e("s_nop 1"); e("v_cndmask_b32 v23, v24, v25, vcc")
        else:
            e("v_lshrrev_b32 v23, 5, v0"); e("v_add_u32 v23, s101, v23"); e("v_subrev_u32 v24, 9, v23"); e("v_min_u32 v23, v23, v24")
        e("v_and_b32 v24, 1, v%d" % G); e("v_lshl_add_u32 v23, v23, 1, v24"); e("v_mul_u32_u24 v23, 9216, v23")
        e("v_lshl_add_u32 v23, v%d, 4, v23" % I); e("s_lshl_b32 s%d, s3, 8" % S_T); e("v_add_u32 v%d, s%d, v23" % (V_T0, S_T))
        e("s_mul_i32 s%d, s100, %d" % (S_T, 32*18432)); e("s_lshl_b32 s%d, s3, 9" % S_U); e("s_add_u32 s%d, s%d, s%d" % (S_T, S_T, S_U))
        e("s_and_b32 s%d, s%d, 3" % (S_U, S_W)); e("s_lshl_b32 s%d, s%d, 7" % (S_U, S_U)); e("s_add_u32 s%d, s%d, s%d" % (S_T, S_T, S_U))
        e("v_lshrrev_b32 v23, 3, v%d" % L); e("v_mul_u32_u24 v23, %d, v23" % (4*18432)); e("v_and_b32 v24, 7, v%d" % L)
        e("v_lshl_add_u32 v23, v24, 4, v23"); e("v_add_u32 v%d, s%d, v23" % (V_QJ[0], S_T))
        for j in range(1, 4): e("v_add_u32 v%d, %d, v%d" % (V_QJ[j], 18432*j, V_QJ[0]))
        e("s_lshl_b32 s%d, s98, 2" % S_T); e("v_add_u32 v23, s%d, v%d" % (S_T, G)); e("v_and_b32 v24, 7, v%d" % L); e("v_xor_b32 v23, v23, v24")
        e("v_lshrrev_b32 v24, 3, v%d" % L); e("v_mul_u32_u24 v24, 1152, v24"); e("v_lshl_add_u32 v%d, v23, 4, v24" % V_XD)
        e("s_mul_i32 s%d, s98, 9216" % S_T); e("v_add_u32 v%d, s%d, v%d" % (V_XD, S_T, V_XD))
        e("s_mul_i32 s%d, s99, 18432" % S_T); e("s_add_u32 s%d, s%d, s%d" % (S_B2, S_BASE, S_T))
        e("s_lshl_b32 s%d, s%d, 10" % (S_W3L, S_W)); e("s_and_b32 s%d, s%d, 0xc00" % (S_W3L, S_W3L))
        pstamp()
        e("s_cmp_lg_u32 s100, 0"); e("s_cbranch_scc1 L_rh1")


    TAB = 0
    WS = [5*4096, 9*4096]
    frag_list = [(j, t, e_) for t in range(9) for j in range(P1) for e_ in range(2)] + [(j, t, e_) for j in range(P1, 10) for t in range(9) for e_ in range(2)]
    fidx = {k: i for i, k in enumerate(frag_list)}
    NE = 9 + (10 - P1)
    first = [fidx[(0, t, 0)] for t in range(9)] + [fidx[(j, 0, 0)] for j in range(P1, 10)]
    bpos = [0] + [first[ep] - pf for ep in range(1, NE)]
    def ep_of(f): return max(ep for ep in range(NE) if bpos[ep] <= f)
    need = {(j, t): (t if j < P1 else 9 + j - P1) for j in range(10) for t in range(9)}
    free_at = {g: -99 for g in range(13, 40)}
    for g in range(0, 5): free_at[g] = 8
    for g in range(5, 9): free_at[g] = 9
    for g in range(9, 13): free_at[g] = 8
    order = []
    for t in range(9 + qa if qa else 0):
        if t - qa >= 0: order += [("x", j, t - qa) for j in range(P1)]
        if t < 9: order.append(("q", t))
    if qa:
        order.remove(("q", 0)); order.insert(0, ("q", 0))
        i0 = [("x", j, 0) for j in range(P1)]
        for it in i0: order.remove(it)
        order[1:1] = i0
    for t in range(0 if qa else 9):
        if t == 2 and early:
            order.append(("q", 8))
            if early >= 2: order += [("x", j, 8) for j in range(P1)]
        if not (early and t == 8): order.append(("q", t))
        if not (early >= 2 and t == 8): order += [("x", j, t) for j in range(P1)]
    order += [("x", j, t) for j in range(P1, 10) for t in range(9)]
    def pos_of(it):
        t = it[-1]
        if qa: return t if it[0] == "x" else (0 if t == 0 else max(t - qa, 1 if n0 == 1 else 0))
        if not early: return t
        if t == 8 and (it[0] == "q" or early >= 2): return 2
        return t if t < 2 else t + 1
    issue = {}; gran = {}
    pend = list(order)
    for ep in [-2, -1] + list(range(NE)):
        n = 0
        while pend:
            it = pend[0]
            step = pos_of(it) if (it[0] == "q" or it[1] < P1) else 99
            lim = n0 if ep == -2 else (n1 if ep == -1 else min(ep + D + 1 + (1 if early else 0), n1 + 2*(ep+1)))
            if step < 99 and step >= lim: break
            if step == 99 and (lim < 9 or n >= cap or ep < p2s): break
            if it[0] == "x":
                cands = sorted(g for g in free_at if free_at[g] <= ep)
                if not cands: break
                g = cands[0]; gran[it[1:]] = g
                free_at[g] = ep_of(fidx[(it[1], it[2], 1)]) + 1
                assert ep < need[it[1:]], (it, ep)
                n += 1
            else:
                assert ep < it[1] - 1 or it[1] == 0 or (it[1] == 1 and ep <= -1), (it, ep)
            issue[it] = ep; pend.pop(0)
    assert not pend
    if stamps or 1:
        sys.stderr.write("issue: " + " ".join("%d:[%s]" % (ep, ",".join(("q%d" % k[1] if k[0] == "q" else "%d.%d" % k[1:]) for k in order if issue[k] == ep)) for ep in [-2, -1] + list(range(NE))) + "\n")

    def xowner(j, t):
        ep = issue[("x", j, t)]
        if ep < 0: return (j + t) % 2
        lst = [it for it in order if it[0] == "x" and issue[it] == ep]
        i = lst.index(("x", j, t)); n = len(lst)
        x_ = xs if ep < 9 else xs2
        if x_ == 0: return (j + t) % 2
        return 0 if ((i+1)*x_)//6 != (i*x_)//6 else 1
    def xaddr(off, e_):
        return V_X + 2*(off >> 16) + e_, off & 0xffff

    for rh in range(2):
        p = Prog(a); pe = p.e; p.sw = sw
        if rh: a.lab("L_rh1")
        if prio and rh == 1: pe("s_setprio %d" % prio)
        dj_done = set()
        def mk_dj(j):
            if j in dj_done: return
            dj_done.add(j)
            d = S_DJ + j
            pe("s_add_u32 s%d, s%d, %d" % (d, S_B2, 2*j*18432)); pe("s_cmp_ge_u32 s%d, s%d" % (d, S_END))
            pe("s_cselect_b32 s%d, s%d, 0" % (S_U, S_SPAN)); pe("s_sub_u32 s%d, s%d, s%d" % (d, d, S_U))
            if j == 9:
                pe("s_add_u32 s%d, s%d, 18" % (S_U, S_JH)); pe("s_cmp_ge_u32 s%d, s%d" % (S_U, S_NB)); pe("s_cselect_b32 s%d, 0x40000000, s%d" % (d, d))
        def load_ops(ep):
            ops = []
            for it in order:
                if issue[it] != ep: continue
                if it[0] == "q":
                    t = it[1]
                    if (abl & 4) and t >= 1: continue
                    for j in range(4):
                        def f(j=j, t=t):
                            if j == 0: pe("s_mul_i32 s%d, s%d, 9216" % (S_QO, S_P+t))
                            r = V_W + 16*t + 4*j
                            p.vmem("buffer_load_dwordx4 v[%d:%d], v%d, s[%d:%d], s%d offen %s" % (r, r+3, V_QJ[j], S_Q, S_Q+3, S_QO, qpol), ("q", t, j))
                        ops.append(f)
                else:
                    j, t = it[1:]
                    if xowner(j, t) != rh: continue
                    if (abl & 8) and t >= 1 and j < P1: continue
                    if (abl & 2048) and j >= P1: continue
                    def f(j=j, t=t):
                        mk_dj(j)
                        pe("s_add_u32 m0, s%d, %d" % (S_W3L, gran[(j, t)]*4096))
                        pe("s_add_u32 s%d, s%d, s%d" % (S_T, S_DJ+j, S_P+t))
                        p.vmem("buffer_load_dwordx4 v%d, s[%d:%d], s%d offen lds %s" % (V_XD, S_X, S_X+3, S_T, xpol), ("x", need[(j, t)]))
                    ops.append(f)
            if tl and rh == th:
                ts = [t for t in range(t0, 9) if (max(tp, (t - tl) // tn) if t - tl >= 0 else tp) == ep]
                tops = []
                for t in ts:
                    def f(t=t):
                        pe("s_mul_i32 s%d, s%d, 9216" % (S_U, S_P+t))
                        p.vmem("buffer_load_dword v%d, v%d, s[%d:%d], s%d offen %s" % (V_T0, V_WA1, S_Q, S_Q+3, S_U, tpol), ("tch", t))
                    tops.append(f)
                k_ = len(ops) if (tpos == 0 or ep < 0) else tpos - 1
                ops = ops[:k_] + tops + ops[k_:]
            return ops
        def touch_addr():
            n_ = 64*512 // tg; c_ = -(-n_ // 7); cw = -(-c_ // tw); sh = 2 if tg == 128 else 3
            assert cw <= 64
            pe("s_and_b32 s%d, s%d, 3" % (S_T, S_W)); pe("s_mul_i32 s%d, s%d, %d" % (S_T, S_T, cw)); pe("v_add_u32 v16, s%d, v%d" % (S_T, L))
            pe("s_mul_i32 s%d, s%d, %d" % (S_U, S_R, c_)); pe("v_add_u32 v17, s%d, v16" % S_U)
            pe("v_lshrrev_b32 v18, %d, v17" % sh); pe("v_mul_u32_u24 v18, 18432, v18"); pe("v_and_b32 v19, %d, v17" % ((1 << sh) - 1))
            pe("v_lshl_add_u32 v18, v19, %d, v18" % (9 - sh)); pe("s_lshl_b32 s%d, s3, 9" % S_T); pe("v_add_u32 v18, s%d, v18" % S_T)
            pe("v_mov_b32 v19, 0x40000000")
            pe("v_cmp_gt_u32 vcc, %d, v%d" % (cw, L)); pe("s_movk_i32 s%d, %d" % (S_T, c_)); pe("s_movk_i32 s%d, %d" % (S_U, n_)); pe("v_cndmask_b32 v18, v19, v18, vcc")
            pe("v_cmp_gt_u32 vcc, s%d, v16" % S_T); pe("s_nop 1"); pe("v_cndmask_b32 v18, v19, v18, vcc")
            pe("v_cmp_gt_u32 vcc, s%d, v17" % S_U); pe("s_nop 1"); pe("v_cndmask_b32 v%d, v19, v18, vcc" % V_WA1)
        if pro:
            if rh == 1:
                pe("s_cmp_eq_u32 s%d, 4" % S_W); pe("s_cselect_b32 exec_lo, -1, 0"); pe("s_mov_b32 exec_hi, 0")
            pstamp(rh)
            pe("s_waitcnt lgkmcnt(0)")
            pstamp(rh)
            tb = 48 if rh else 24
            p.vmem("buffer_load_dwordx4 v[%d:%d], v%d, s[%d:%d], 0 offen" % (tb, tb+3, V_T0, S_S, S_S+3), "tab")
            p.vmem("buffer_load_dwordx4 v[%d:%d], v%d, s[%d:%d], 0 offen" % (tb+4, tb+7, V_T0, S_Z, S_Z+3), "tab")
            if rh == 1: pe("s_mov_b64 exec, -1")
            l0 = load_ops(-2)
            for f in l0[:4]: f()
            sv_out = len(a.out)
            late_scalars()
            a.out[sv_out:] = [l.replace("v23", "v16").replace("v24", "v17") for l in a.out[sv_out:]]
            nx0 = len([1 for it in order if issue[it] == -2 and it[0] == "x" and xowner(it[1], it[2]) == rh])
            xlate = []
            if xd0 & (1 << rh): xlate = l0[4:4+nx0]
            else:
                for f in l0[4:4+nx0]: f()
            pstamp(rh)
            late2()
            if tl and rh == th: touch_addr()
            if not xlate:
                for f in l0[4+nx0:]: f()
        else:
            for it in order:
                if issue[it] == -2 and it[0] == "x" and xowner(it[1], it[2]) == rh: mk_dj(it[1])
            if rh == 1:
                pe("v_mov_b32 v%d, 0x7fffffff" % V_T1); pe("v_cmp_gt_u32 vcc, 288, v0"); pe("s_nop 1"); pe("v_cndmask_b32 v%d, v%d, v%d, vcc" % (V_T0, V_T1, V_T0))
            pstamp(rh)
            pe("s_waitcnt lgkmcnt(0)")
            pstamp(rh)
            p.vmem("buffer_load_dwordx4 v[24:27], v%d, s[%d:%d], 0 offen" % (V_T0, S_S, S_S+3), "tab")
            p.vmem("buffer_load_dwordx4 v[28:31], v%d, s[%d:%d], 0 offen" % (V_T0, S_Z, S_Z+3), "tab")
            for f in load_ops(-2): f()
            if stamps and stamps < 3 and not SL: a.stamp(1)
            pstamp(rh)
        pe("v_lshrrev_b32 v16, 2, v%d" % L); pe("v_mul_u32_u24 v16, 9216, v16"); pe("v_and_b32 v17, 3, v%d" % L); pe("v_lshl_add_u32 v16, v17, 4, v16")
        pe("s_lshr_b32 s%d, s%d, 4" % (S_T, S_W3L)); pe("s_lshl_b32 s%d, s3, 8" % S_U); pe("s_add_u32 s%d, s%d, s%d" % (S_T, S_T, S_U)); pe("v_add_u32 v%d, s%d, v16" % (V_OUT, S_T))
        if sw:
            pe("v_mul_u32_u24 v16, 9216, v%d" % I); pe("v_lshl_add_u32 v16, v%d, 4, v16" % G); pe("v_add_u32 v%d, s%d, v16" % (V_OUT, S_T))
        if epi == 1:
            pe("v_and_b32 v16, 3, v%d" % I); pe("v_lshlrev_b32 v16, 4, v16"); pe("v_lshrrev_b32 v17, 3, v%d" % I); pe("v_lshl_add_u32 v16, v17, 3, v16")
            pe("v_bfe_u32 v17, v%d, 2, 1" % I); pe("v_lshl_add_u32 v16, v17, 2, v16"); pe("v_mul_u32_u24 v17, %d, v%d" % (4*9216, G)); pe("v_add_u32 v16, v16, v17")
            pe("v_add_u32 v%d, s%d, v16" % (V_E, S_T))
            for r in range(1, 4): pe("v_add_u32 v%d, %d, v%d" % (V_E+r, 9216*r, V_E))
        if fseg == 128:
            pe("v_lshrrev_b32 v16, 3, v%d" % L); pe("v_mul_u32_u24 v16, 9216, v16"); pe("v_and_b32 v17, 7, v%d" % L); pe("v_lshl_add_u32 v16, v17, 4, v16")
            pe("s_and_b32 s%d, s%d, 1" % (S_T, S_W)); pe("s_lshl_b32 s%d, s%d, 7" % (S_T, S_T)); pe("s_add_u32 s%d, s%d, s%d" % (S_U, S_T, S_U))
            pe("s_bfe_u32 s%d, s%d, 0x10001" % (S_T, S_W)); pe("s_mul_i32 s%d, s%d, %d" % (S_T, S_T, 8*9216)); pe("s_add_u32 s%d, s%d, s%d" % (S_T, S_T, S_U)); pe("v_add_u32 v%d, s%d, v16" % (V_OUT, S_T))
        if fseg == 256:
            pe("v_lshrrev_b32 v16, 4, v%d" % L); pe("v_mul_u32_u24 v16, 9216, v16"); pe("v_and_b32 v17, 15, v%d" % L); pe("v_lshl_add_u32 v16, v17, 4, v16")
            pe("s_and_b32 s%d, s%d, 3" % (S_T, S_W)); pe("s_mul_i32 s%d, s%d, %d" % (S_T, S_T, 4*9216)); pe("s_add_u32 s%d, s%d, s%d" % (S_T, S_T, S_U)); pe("v_add_u32 v%d, s%d, v16" % (V_OUT, S_T))
        pe("v_bfe_u32 v16, v%d, 2, 1" % I); pe("v_and_b32 v17, 3, v%d" % I); pe("v_lshlrev_b32 v17, 1, v17"); pe("v_lshrrev_b32 v18, 3, v%d" % I); pe("v_add_u32 v17, v17, v18")
        if sw: pe("v_and_b32 v16, 1, v%d" % I); pe("v_lshrrev_b32 v17, 1, v%d" % I)
        pe("v_lshlrev_b32 v17, 4, v17"); pe("v_lshl_add_u32 v17, v16, 10, v17"); pe("v_lshl_add_u32 v17, v%d, 7, v17" % G)
        pe("s_lshl_b32 s%d, s%d, 1" % (S_T, S_W3L)); pe("v_add_u32 v%d, s%d, v17" % (V_WR, S_T))
        pe("v_and_b32 v16, 7, v%d" % I); pe("v_lshlrev_b32 v16, 4, v16"); pe("v_lshl_add_u32 v17, v18, 3, v16"); pe("v_lshl_add_u32 v17, v%d, 7, v17" % G)
        pe("s_add_u32 s%d, s%d, %d" % (S_T, S_T, rh*8192)); pe("v_add_u32 v%d, s%d, v17" % (V_WA0, S_T))
        pe("s_lshr_b32 s%d, s%d, 3" % (S_T, S_W3L)); pe("s_add_u32 s%d, s%d, %d" % (S_T, S_T, rh*1024 + TAB)); pe("v_add_u32 v%d, s%d, v16" % (V_TAB, S_T))
        pe("v_lshrrev_b32 v16, 1, v%d" % I); pe("v_xor_b32 v16, v16, v%d" % G); pe("v_lshlrev_b32 v16, 4, v16"); pe("v_lshl_add_u32 v%d, v%d, 7, v16" % (V_X, I))
        if rh: pe("v_add_u32 v%d, 2048, v%d" % (V_X, V_X))
        pe("v_xor_b32 v%d, 64, v%d" % (V_X+1, V_X))
        for w_ in (1, 2):
            pe("v_add_u32 v%d, %d, v%d" % (V_X+2*w_, w_ << 16, V_X)); pe("v_add_u32 v%d, %d, v%d" % (V_X+2*w_+1, w_ << 16, V_X+1))
        pe("v_lshrrev_b32 v16, 4, v0"); pe("v_lshlrev_b32 v16, 10, v16"); pe("v_lshl_add_u32 v%d, v%d, 5, v16" % (V_T1, I))
        pe("s_mov_b32 s%d, 0x00ff00ff" % S_M8); pe("s_mov_b32 s%d, 0x00ff00ff" % (S_M8+1)); pe("s_not_b64 s[%d:%d], s[%d:%d]" % (S_M8N, S_M8N+1, S_M8, S_M8+1))
        pe("s_mov_b32 s%d, 0x0f0f0f0f" % S_M4); pe("s_mov_b32 s%d, 0x0f0f0f0f" % (S_M4+1)); pe("s_not_b64 s[%d:%d], s[%d:%d]" % (S_M4N, S_M4N+1, S_M4, S_M4+1))
        def tab_build(tb, T0):
            if rh == 1:
                pe("s_cmp_lg_u32 s%d, 4" % S_W); pe("s_cbranch_scc1 L_notab")
                pe("s_mov_b32 exec_hi, 0")
            sv = p.vmdone
            p.wait(vm=lambda x: x == "tab")
            if not (pro and rh): pstamp(rh)
            for c in range(4):
                pe("v_lshlrev_b32 v%d, 16, v%d" % (T0+2*c, tb+c)); pe("v_and_b32 v%d, 0xffff0000, v%d" % (T0+1+2*c, tb+c))
                pe("v_lshlrev_b32 v%d, 16, v%d" % (T0+8+2*c, tb+4+c)); pe("v_and_b32 v%d, 0xffff0000, v%d" % (T0+9+2*c, tb+4+c))
            pe("ds_write_b128 v%d, v[%d:%d] offset:%d" % (V_T1, T0, T0+3, TAB)); pe("ds_write_b128 v%d, v[%d:%d] offset:%d" % (V_T1, T0+4, T0+7, TAB+16))
            for c in range(8): pe("v_mul_f32 v%d, -v%d, v%d" % (T0+8+c, T0+8+c, T0+c))
            pe("ds_write_b128 v%d, v[%d:%d] offset:%d" % (V_T1, T0+8, T0+11, TAB+512)); pe("ds_write_b128 v%d, v[%d:%d] offset:%d" % (V_T1, T0+12, T0+15, TAB+528))
            pe("s_waitcnt lgkmcnt(0)")
            if rh == 1:
                pe("s_mov_b32 exec_hi, -1")
                a.lab("L_notab")
                p.vmdone = sv
        if not (pro and rh): tab_build(24, 32)
        else: pstamp(rh)
        if pro and xlate and not (xd0 & 4):
            for f in l0[4:]: f()
        pe("s_barrier")
        if pro and xlate and (xd0 & 4):
            for f in l0[4:]: f()
        pstamp(rh)
        def tab_reads(t):
            p.lds("ds_read_b128 v[%d:%d], v%d offset:%d" % (V_S, V_S+3, V_TAB, t*2048), ("t", t))
            p.lds("ds_read_b128 v[%d:%d], v%d offset:%d" % (V_NZ, V_NZ+3, V_TAB, t*2048+512), ("t", t))
        def dequant(t):
            R = V_W + 16*t
            ops = []
            for j in range(4):
                ops.append((0, lambda j=j: p.wait(vm=lambda x: x == ("q", t, j))))
                if not (abl & 129):
                    for c in range(4): ops.append((1, lambda x=4*j+c: pe("v_cvt_f32_i32 v%d, v%d" % (R+x, R+x))))
            ops.append((0, lambda: p.wait(lg=lambda x: x == ("t", t))))
            for c in range(4):
                if abl & 1:
                    if not (abl & 2): ops.append((0, lambda c=c: p.lds("ds_write_b64 v%d, v[%d:%d] offset:%d" % (V_WA0, V_PK+2*c, V_PK+2*c+1, WS[t % 2] + c*512), ("w", t))))
                    continue
                if pk:
                    if c % 2 == 0:
                        for j in range(4): ops.append((1, lambda x=4*j+c: pe("v_pk_fma_f32 v[%d:%d], v[%d:%d], v[%d:%d], v[%d:%d]" % (R+x, R+x+1, R+x, R+x+1, V_S+(x & 3), V_S+(x & 3)+1, V_NZ+(x & 3), V_NZ+(x & 3)+1))))
                else:
                    for j in range(4): ops.append((1, lambda x=4*j+c: pe("v_fma_f32 v%d, v%d, v%d, v%d" % (R+x, R+x, V_S+(x & 3), V_NZ+(x & 3)))))
                ops.append((1, lambda c=c: pe("v_cvt_pk_bf16_f32 v%d, v%d, v%d" % (V_PK+2*c, R+c, R+4+c))))
                ops.append((1, lambda c=c: pe("v_cvt_pk_bf16_f32 v%d, v%d, v%d" % (V_PK+2*c+1, R+8+c, R+12+c))))
                if not (abl & 2): ops.append((0, lambda c=c: p.lds("ds_write_b64 v%d, v[%d:%d] offset:%d" % (V_WA0, V_PK+2*c, V_PK+2*c+1, WS[t % 2] + c*512), ("w", t)), "w"))
            if wdel:
                o2 = []; held = []
                for o in ops:
                    if len(o) == 3: held.append([wdel, o[:2]]); continue
                    o2.append(o)
                    if o[0]:
                        for h in held: h[0] -= 1
                        while held and held[0][0] <= 0: o2.append(held.pop(0)[1])
                o2 += [h[1] for h in held]
                ops = o2
            ops = [o[:2] for o in ops]
            return ops
        def epilogue(acc, idx):
            ops = []
            V_D, V_E, V_O = (acc, acc+4, acc) if ipe else (48, 52, 56)
            def firstop():
                p.need_mfma_done(acc); p.need_mfma_done(acc+4)
                pe("v_cvt_pk_bf16_f32 v%d, v%d, v%d" % (V_D, acc, acc+4))
            ops.append((1, firstop))
            for r in range(1, 4): ops.append((1, lambda r=r: pe("v_cvt_pk_bf16_f32 v%d, v%d, v%d" % (V_D+r, acc+r, acc+4+r))))
            if epi == 1:
                ops = []
                dd = V_D if idx % 4 < 2 else V_O
                def firstop():
                    p.need_mfma_done(acc); p.need_mfma_done(acc+4)
                    pe("s_add_u32 s%d, s%d, %d" % (S_EO, S_BASE, idx*18432)); pe("s_cmp_ge_u32 s%d, s%d" % (S_EO, S_END)); pe("s_cselect_b32 s%d, s%d, 0" % (S_INV, S_SPAN))
                    pe("v_cvt_pk_bf16_f32 v%d, v%d, v%d" % (dd, acc, acc+4))
                    pe("s_sub_u32 s%d, s%d, s%d" % (S_EO, S_EO, S_INV)); pe("s_lshl_b32 s%d, s%d, 3" % (S_EO, S_EO))
                ops.append((1, firstop))
                for r in range(1, 4): ops.append((1, lambda r=r: pe("v_cvt_pk_bf16_f32 v%d, v%d, v%d" % (dd+r, acc+r, acc+4+r))))
                for r in range(4): ops.append((stc, lambda r=r: p.vmem("buffer_store_dword v%d, v%d, s[%d:%d], s%d offen %s" % (dd+r, V_E+r, S_O, S_O+3, S_EO, spol), "st")))
                return ops
            if sw:
                ops.insert(1, (0, lambda: (pe("s_add_u32 s%d, s%d, %d" % (S_EO, S_BASE, idx*18432)), pe("s_cmp_ge_u32 s%d, s%d" % (S_EO, S_END)), pe("s_cselect_b32 s%d, s%d, 0" % (S_INV, S_SPAN)))))
                ops.insert(3, (0, lambda: (pe("s_sub_u32 s%d, s%d, s%d" % (S_EO, S_EO, S_INV)), pe("s_lshl_b32 s%d, s%d, 3" % (S_EO, S_EO)))))
                ops.append((0, lambda: p.vmem("buffer_store_dwordx4 v[%d:%d], v%d, s[%d:%d], s%d offen %s" % (V_D, V_D+3, V_OUT, S_O, S_O+3, S_EO, spol), "st")))
                return ops
            def dpp(d, s0, s1, ror): pe("v_cndmask_b32_dpp v%d, v%d, v%d, vcc row_ror:%d row_mask:0xf bank_mask:0xf" % (d, s0, s1, ror))
            ops.append((0, lambda: (pe("s_mov_b64 vcc, s[%d:%d]" % (S_M8, S_M8+1)), pe("s_add_u32 s%d, s%d, %d" % (S_EO, S_BASE, idx*18432)))))
            ops.append((1, lambda: dpp(V_E+0, V_D+2, V_D+0, 8)))
            ops.append((1, lambda: dpp(V_E+1, V_D+3, V_D+1, 8)))
            ops.append((0, lambda: (pe("s_mov_b64 vcc, s[%d:%d]" % (S_M8N, S_M8N+1)), pe("s_cmp_ge_u32 s%d, s%d" % (S_EO, S_END)), pe("s_cselect_b32 s%d, s%d, 0" % (S_INV, S_SPAN)))))
            ops.append((1, lambda: dpp(V_E+2, V_D+0, V_D+2, 8)))
            ops.append((1, lambda: dpp(V_E+3, V_D+1, V_D+3, 8)))
            ops.append((0, lambda: (pe("s_mov_b64 vcc, s[%d:%d]" % (S_M4, S_M4+1)), pe("s_sub_u32 s%d, s%d, s%d" % (S_EO, S_EO, S_INV)))))
            ops.append((1, lambda: dpp(V_O+0, V_E+1, V_E+0, 4)))
            ops.append((1, lambda: dpp(V_O+2, V_E+3, V_E+2, 4)))
            ops.append((0, lambda: (pe("s_mov_b64 vcc, s[%d:%d]" % (S_M4N, S_M4N+1)), pe("s_lshl_b32 s%d, s%d, 3" % (S_EO, S_EO)))))
            ops.append((1, lambda: dpp(V_O+1, V_E+0, V_E+1, 12)))
            ops.append((1, lambda: dpp(V_O+3, V_E+2, V_E+3, 12)))
            if abl & 1024: ops = [(c_, (lambda: None) if c_ else f_) for c_, f_ in ops]
            if not (abl & 256) or ((abl & 512) and idx >= 12): ops.append((0, lambda: p.vmem("buffer_store_dwordx4 v[%d:%d], v%d, s[%d:%d], s%d offen %s" % (V_O, V_O+3, V_OUT, S_O, S_O+3, S_EO, spol), "st")))
            return ops
        def guarantees(ep):
            p.wait(vm=lambda x: x[0] == "x" and x[1] <= ep, lg=lambda x: x == ("w", ep))
        tab_reads(0)
        lds_ = load_ops(-1)
        dq = dequant(0)
        k = 0
        for i, (c, f) in enumerate(dq):
            f()
            if i in (0, 15): pstamp(rh)
            if c and i % mid == mid0 and k < len(lds_): lds_[k](); k += 1
        if pro == 2 and rh: tab_build(48, 60)
        while k < len(lds_): lds_[k](); k += 1
        if pro == 1 and rh: tab_build(48, 60)
        nF = len(frag_list) - (18 if rh else 0)
        def acc_of(j): return V_A1 + 8*j if j < P1 else V_S + 8*((j - P1) % 2)
        freg = {}
        def frag_read(f, b=None):
            j, t, e_ = frag_list[f]
            if b is None: b = XF[f % len(XF)]
            r, o = xaddr(gran[(j, t)]*4096, e_)
            if not ((abl & 32) and f > 4): p.lds("ds_read_b128 v[%d:%d], v%d offset:%d" % (b, b+3, r, o), ("f", f))
            freg[f] = b
        dqq = []; dq_at = 0
        epq = []
        ldq = []; ld_at = 0
        m = 0; ntr = 0; cur_ep = -1; m_tr = 0; hq = []
        def run_fill(budget):
            while dqq and m >= dq_at and (budget > 0 or dqq[0][0] == 0):
                c, f = dqq.pop(0); f(); budget -= c
            return budget
        def run_ep(budget):
            while epq and m >= epq[0][0] and (budget > 0 or epq[0][2][0][0] == 0):
                c, f = epq[0][2].pop(0); f(); budget -= c
                if not epq[0][2]: epq.pop(0)
        def flush_ep(upto_acc=None):
            k_ = 0
            while epq and (upto_acc is None or any(x[1] == upto_acc for x in epq)):
                c, f = epq[0][2].pop(0); f(); k_ += 1
                if not epq[0][2]: epq.pop(0)
            if k_ and ipe and upto_acc is not None: pe("s_nop 1")
        def seq_of(f):
            o_ = od if frag_list[f][0] < P1 else od2
            if o_ == 0: return [(0, 0), (1, 0), (0, 1), (1, 1)]
            if o_ == 1: return [(0, 0), (0, 1), (1, 0), (1, 1)]
            if o_ == 3 or (f // 2) % 2 == 0: return [(0, 0), (0, 1), (1, 1), (1, 0)]
            return [(1, 0), (1, 1), (0, 1), (0, 0)]
        acc_used = set()
        for f in range(nF):
            j, t, e_ = frag_list[f]
            if f in bpos:
                ep = bpos.index(f)
                while ldq: ldq.pop(0)()
                while dqq: dqq.pop(0)[1]()
                if rh == trh and ep == trace + 1 and trace >= 0: a.cstamp(ntr, TR); ntr += 1
                if ep == 0: pstamp(rh)
                guarantees(ep)
                if rh == trh and ep == trace + 1 and trace >= 0: a.cstamp(ntr, TR); ntr += 1
                if not ((abl & 64) and 1 <= ep <= 8): pe("s_barrier")
                if rh == trh and ep in (trace, trace + 1) and trace >= 0: a.cstamp(ntr, TR); ntr += 1; m_tr = m
                cur_ep = ep; m_ep = m
                if ep <= 2 and pst == rh: pstamp(rh); p.lg_all()
                if rh == 1 and (pt1 if ep < 9 else pt2): pe("s_setprio %d" % pth); cur_pr = pth
                elif rh == 1 and ep == 9 and pt1: pe("s_setprio %d" % prio)
                if SL and ep in SL and rh == 0:
                    a.stamp(1 + SL.index(ep)); p.lg_all()
                if stamps and stamps < 3 and ep in (0, smid, 9) and not SL:
                    a.stamp({0: 2, smid: 3, 9: 4}[ep]); p.lg_all()
                hq = []
                h_ = hw if (rh == 0 or hw1 < 0) else hw1
                if ep <= 8 and not ((abl & 16) and ep >= 1):
                    for i_, (c, ks) in enumerate(seq_of(first[ep])):
                        if 1:
                            def wr(ks=ks, c=c, ep=ep):
                                r = V_W + 16*ep + 8*ks + 4*c
                                p.lds("ds_read_b128 v[%d:%d], v%d offset:%d" % (r, r+3, V_WR, WS[ep % 2] + ks*8192 + c*512), ("W", ep, ks, c))
                            if h_ and ep >= 1: hq.append([m + h_ + wst*i_, wr])
                            else: wr()
                if ep == 0:
                    for f2 in range(pf + (1 if od else 0)): frag_read(f2)
                if ep + 1 <= 8:
                    if not (abl & 16) and not (tabe == 1 and ep >= 1):
                        if tabe == 2 and ep >= 1: hq.append([m + h_ + 4*wst, lambda ep=ep: tab_reads(ep+1)])
                        else: tab_reads(ep+1)
                    dqq = dequant(ep+1); dq_at = m + (dq1 if rh else dq0)
                    if tabe == 1 and ep + 2 <= 8:
                        k_ = max(i for i, (c_, f_) in enumerate(dqq) if c_) - 2
                        dqq.insert(k_ + 1, (0, lambda ep=ep: tab_reads(ep+2)))
                ldq = load_ops(ep)
                nM = 2*((bpos[ep+1] if ep+1 < NE else nF) - f)
                n_ = len(ldq)
                l0_ = ld0
                if ep == 7 and e7 >= 0: l0_ = e7
                if ep == 8 and e8 >= 0: l0_ = e8
                ldpos = [m + l0_ + int((i + 0.5*rh + 0.25) * (nM - l0_ - ldm) / max(n_, 1)) for i in range(n_)]
                if xl0 >= 0 and ep <= 6 and n_ > 4:
                    if xfirst:
                        ldq = ldq[4:] + ldq[:4]; na = n_ - 4
                    else: na = 4
                    ldpos = [m + ld0 + int((i + 0.5*rh + 0.25) * (xl0 - ld0) / na) for i in range(na)] + [m + xl0 + int((i + 0.5*rh + 0.25) * (nM - xl0 - ldm) / (n_ - na)) for i in range(n_ - na)]
            if rh == 0 and f == fidx[(9, 0, 0)]:
                pe("s_cmp_eq_u32 s%d, 18" % S_NB); pe("s_cbranch_scc1 L_skip")
                skip_state = ([(x[1], x[3]) for x in epq], [len(x[2]) for x in epq], dict(p.lastmf), p.n)
            late = (hw and f in bpos and f > 0)
            if f + pf < nF and not late and not od: frag_read(f + pf)
            acc = acc_of(j)
            if j >= P1 and t == 0 and e_ == 0: flush_ep(acc)
            for i_, (c, e2) in enumerate(seq_of(f)[2*e_:2*e_+2]):
                ff = f - e_ + e2
                W0 = V_W + 16*t + 8*e2 + 4*c
                if j < P1 and not (abl & 16): assert ("W", t, e2, c) in p.lg
                p.wait(lg=lambda x: x == ("f", ff) or x == ("W", t, e2, c))
                p.mfma(acc + 4*c, freg[ff], W0, (j, c) not in acc_used)
                acc_used.add((j, c))
                m += 1
                pt_ = pt1 if cur_ep < 9 else pt2
                if rh == 1 and pt_ and (m - m_ep) % pt_ == 0: cur_pr = 1 - cur_pr; pe("s_setprio %d" % cur_pr)
                if od:
                    if e_ == 1 and f + pf + i_ < nF: frag_read(f + pf + i_, freg[ff])
                elif late and i_ == 0 and f + pf < nF: frag_read(f + pf)
                while hq and m >= hq[0][0]: hq.pop(0)[1]()
                while ldq and m >= ldpos[0]: ldq.pop(0)(); ldpos.pop(0)
                if rh == trh and cur_ep == trace and (m - m_tr) % tstep == 0 and ntr < len(TR) - 3: a.cstamp(ntr, TR); ntr += 1
                b = run_fill(per1)
                if not dqq:
                    if er: run_ep(min(b, (er*(m+1))//12 - (er*m)//12))
                    else: run_ep(min(b, per2))
            if t == 8 and e_ == 1:
                epq.append([m + epd, acc, epilogue(acc, 2*j + rh), 2*j + rh])
        assert not ldq and not dqq
        flush_ep()
        if rh == 0:
            pe("s_branch L_end")
            a.lab("L_skip")
            lst, lens, lm, n_ = skip_state
            p.lastmf = {k: p.n - (n_ - v) for k, v in lm.items()}
            for (acc, idx), ln in zip(lst, lens):
                ops = epilogue(acc, idx)
                for c, f in ops[len(ops)-ln:]: f()
            a.lab("L_end")
        if pst == rh:
            pstamp(rh)
            sys.stderr.write("pstamps: %d\n" % psn[0])
            a.dump_regs(PS[:psn[0]], 36, 256*rh)
        if stamps == 3 and rh == trh:
            sys.stderr.write("trace stamps: %d\n" % ntr)
            a.dump_regs(TR[:ntr], 36, 256*trh)
        if SL and rh == 0:
            a.stamp(1 + len(SL))
            a.dump_stamps(2 + len(SL), 36, vtmp=0)
        elif stamps and stamps < 3 and rh == 0:
            a.stamp(5)
            pe("s_waitcnt vmcnt(0)")
            a.stamp(6)
            if stamps == 2: a.dbg_stamps(7, 36)
            else: a.dump_stamps(7, 36, vtmp=0)
        pe("s_endpgm")
    a.lab("L_done")
    e("s_endpgm")
    a.descriptor(KN, 256, 102, 256)
    a.write(path)

if __name__ == "__main__":
    kw = dict(s.split("=") for s in sys.argv[2:])
    for k in kw:
        if k in ("sl", "kst"): pass
        elif k in ("spol", "qpol", "xpol", "tpol"): kw[k] = kw[k].replace("+", " ").replace("plain", "")
        else: kw[k] = int(kw[k])
    build(sys.argv[1], **kw)
```

```python
import sys
from asmlib import *

V_Q, V_XD, V_OUT, V_WR, V_WA0, V_WA1, V_TAB = 1, 2, 3, 4, 5, 6, 7
V_X = 8
V_T0, V_T1 = 14, 15
V_QJ = [1, 109, 110, 111]
V_S, V_NZ, V_PK = 32, 36, 40
V_D, V_E, V_O = 48, 52, 56
V_A1 = 60
V_W = 112
S_X, S_Q, S_S, S_Z, S_O, S_WS = 16, 20, 24, 28, 32, 36
S_P = 40
S_INV = 49
S_BASE, S_END, S_SPAN, S_B2, S_W3L, S_NB, S_W = 50, 51, 52, 53, 54, 55, 56
S_T, S_U, S_QO, S_EO = 57, 58, 59, 14
S_DJ = 60
S_M8, S_M8N, S_M4, S_M4N = 90, 92, 94, 96
S_PAN, S_CH, S_JH, S_RH, S_ROT = 3, 98, 99, 100, 101

class Prog:
    def __init__(self, a):
        self.a = a; self.vm = []; self.lg = []; self.vmdone = 0; self.lgdone = 0; self.n = 0
        self.lastmf = {}
    def e(self, s):
        self.a.e(s); self.n += 1
    def vmem(self, s, tag): self.e(s); self.vm.append(tag)
    def lds(self, s, tag): self.e(s); self.lg.append(tag)
    def _cnt(self, lst, done, pred):
        for i in range(len(lst)-1, done-1, -1):
            if pred(lst[i]): return i
        return -1
    def wait(self, vm=None, lg=None):
        parts = []
        if vm is not None:
            idx = self._cnt(self.vm, self.vmdone, vm)
            if idx >= 0:
                n = min(len(self.vm)-1-idx, 63)
                parts.append("vmcnt(%d)" % n); self.vmdone = len(self.vm) - n
        if lg is not None:
            idx = self._cnt(self.lg, self.lgdone, lg)
            if idx >= 0:
                n = min(len(self.lg)-1-idx, 15)
                parts.append("lgkmcnt(%d)" % n); self.lgdone = len(self.lg) - n
        if parts: self.e("s_waitcnt " + " ".join(parts))
    def lg_all(self):
        self.e("s_waitcnt lgkmcnt(0)"); self.lgdone = len(self.lg)
    def mfma(self, d, x, w, first):
        c = "0" if first else "v[%d:%d]" % (d, d+3)
        if self.sw: x, w = w, x
        self.e("v_mfma_f32_16x16x32_bf16 v[%d:%d], v[%d:%d], v[%d:%d], %s" % (d, d+3, x, x+3, w, w+3, c))
        self.lastmf[d] = self.n
    def need_mfma_done(self, d):
        if d in self.lastmf:
            gap = self.n - self.lastmf[d]
            if gap < 8: self.e("s_nop %d" % (8-gap-1))

def build(path, b1=12, D=3, n0=1, spol="nt", stamps=0, krot=1, rrot=4, dq0=0, dq1=0, per1=2, per2=2, cap=12, prio=0, pf=3,
          ld0=0, ldm=2, n1=2, epd=4, smid=4, qpol="", xpol="", abl=0, trace=-1, trh=0, tstep=4, early=0, qa=0, fseg=0, r9=0, hw=0, hw1=-1, tabe=0, xs=0, xs2=0, wst=1, cyc=0, sl="", p2s=0, wdel=0, epi=0, stc=1, pt1=0, pt2=0, pth=1, sk12=0, od=0, od2=-1, ipe=0, er=0, pk=0, sw=0, kst="", plm=1, xl0=-1, e7=-1, e8=-1, xfirst=0, pst=-1, pro=0, mid=3, mid0=2, tl=0, tg=128, tw=4, th=1, tp=-1, tpos=0, tn=1, tpol="", xd0=0, t0=2, xo="", ro=""):
    a = Asm(); e = a.e
    SL = [int(x) for x in sl.split("_")] if sl else []
    if cyc: a.stamp = lambda i, base=70: a.e("s_memtime s[%d:%d]" % (base+2*i, base+2*i+1))
    KN = NAME + "_kernel"
    P1 = b1 // 2
    assert b1 % 2 == 0 and (P1 <= 6 or (P1 == 7 and ipe and pf <= 3))
    V_A1 = 48 if P1 == 7 else 60
    assert pf <= 3 or (ipe and pf <= 6)
    if od2 < 0: od2 = od
    assert (od > 0) == (od2 > 0) and (not od or pf % 2 == 1)
    XF = [16, 20, 24, 28, 48, 52, 56][:pf+1]
    a.header(["; @launch grid=(256,1,1) block=(512,1,1) lds=%d" % (160*1024)])
    a.kernel_start(KN)
    TR = [70, 72, 74, 76, 78, 80, 82, 84, 86, 88, 4, 6, 8, 10, 12]
    if trace >= 0: stamps = 3
    PS = [70, 72, 74, 76, 78, 80, 82, 84, 86, 88, 4, 6, 8, 10, 12]
    psn = [0]
    def pstamp(rh_=None):
        if pst < 0 or (rh_ is not None and rh_ != pst): return
        e("s_memrealtime s[%d:%d]" % (PS[psn[0]], PS[psn[0]]+1)); psn[0] += 1
    if pst >= 0: stamps = 4
    pstamp()
    if stamps and stamps < 3: a.stamp(0)
    e("s_cmp_ge_u32 s2, 256"); e("s_cbranch_scc1 L_done")
    L, I, G = 20, 21, 22
    def late_scalars():
        pe_ = e
        pe_("s_cmp_lt_u32 s%d, 2" % S_R); pe_("s_cselect_b32 s%d, 19, 18" % S_NB)
        pe_("v_and_b32 v%d, 15, v0" % I)
        pe_("s_min_u32 s100, s%d, 2" % S_R); pe_("s_mul_i32 s%d, s%d, 18" % (S_T, S_R)); pe_("s_add_u32 s100, s100, s%d" % S_T)
        pe_("v_bfe_u32 v%d, v0, 4, 2" % G)
        pe_("s_add_u32 s%d, s100, s%d" % (S_T, S_NB)); pe_("s_mul_i32 s%d, s%d, 18432" % (S_END, S_T))
        pe_("s_mul_i32 s%d, s%d, 18432" % (S_SPAN, S_NB))
        pe_("s_and_b32 s98, s%d, 1" % S_W)
        pe_("s_bfe_u32 s99, s%d, 0x10001" % S_W)
        pe_("s_lshl_b32 s%d, s98, 2" % S_T); pe_("v_add_u32 v23, s%d, v%d" % (S_T, G)); pe_("v_and_b32 v24, 7, v%d" % L); pe_("v_xor_b32 v23, v23, v24")
        if ro:
            pe_("s_and_b32 s%d, s2, 7" % S_T); pe_("s_lshl_b32 s%d, s%d, 2" % (S_T, S_T)); pe_("s_lshr_b32 s%d, 0x%x, s%d" % (S_T, sum(int(ch, 16) << (4*i) for i, ch in enumerate(ro)), S_T)); pe_("s_and_b32 s%d, s%d, 15" % (S_T, S_T))
            pe_("s_add_u32 s100, s100, s%d" % S_T)
        elif rrot:
            pe_("s_sub_u32 s%d, s%d, 5" % (S_T, S_PL)); pe_("s_cmp_ge_u32 s%d, 5" % S_PL); pe_("s_cselect_b32 s%d, s%d, s%d" % (S_T, S_T, S_PL)); pe_("s_mul_i32 s%d, s%d, %d" % (S_T, S_T, rrot))
            pe_("s_add_u32 s100, s100, s%d" % S_T)
        pe_("v_lshrrev_b32 v24, 3, v%d" % L); pe_("v_mul_u32_u24 v24, 1152, v24"); pe_("v_lshl_add_u32 v%d, v23, 4, v24" % V_XD)
        pe_("s_mul_i32 s%d, s100, 18432" % S_BASE)
        pe_("s_mul_i32 s%d, s98, 9216" % S_T); pe_("v_add_u32 v%d, s%d, v%d" % (V_XD, S_T, V_XD))
        pe_("s_mul_i32 s%d, s99, 18432" % S_T); pe_("s_add_u32 s%d, s%d, s%d" % (S_B2, S_BASE, S_T))
        pe_("s_lshl_b32 s%d, s%d, 10" % (S_W3L, S_W)); pe_("s_and_b32 s%d, s%d, 0xc00" % (S_W3L, S_W3L))
        pe_("s_mov_b32 s%d, %d" % (S_X+2, M*K*2)); pe_("s_mov_b32 s%d, 0x00020000" % (S_X+3))
    def late2():
        for t in range(1, 9):
            e("s_add_u32 s%d, s%d, 128" % (S_P+t, S_P+t-1)); e("s_cmp_eq_u32 s%d, 1152" % (S_P+t)); e("s_cselect_b32 s%d, 0, s%d" % (S_P+t, S_P+t))
        e("s_mov_b32 s%d, %d" % (S_O+2, M*N*2)); e("s_mov_b32 s%d, 0x00020000" % (S_O+3))
        if stamps:
            e("s_mov_b32 s38, %s" % ("256" if stamps == 2 else "0x10000000")); e("s_mov_b32 s39, 0x00020000")
    def tab_addr():
        e("v_lshrrev_b32 v23, 5, v0"); e("v_add_u32 v23, s101, v23"); e("v_subrev_u32 v24, 9, v23"); e("v_min_u32 v23, v23, v24")
        e("v_bfe_u32 v24, v0, 4, 1"); e("v_lshl_add_u32 v23, v23, 1, v24"); e("v_mul_u32_u24 v23, 9216, v23")
        e("v_and_b32 v24, 15, v0"); e("v_lshl_add_u32 v23, v24, 4, v23"); e("s_lshl_b32 s%d, s3, 8" % S_T); e("v_add_u32 v%d, s%d, v23" % (V_T0, S_T))
        for sr in (S_S, S_Z):
            e("s_mov_b32 s%d, %d" % (sr+2, 18*N*2)); e("s_mov_b32 s%d, 0x00020000" % (sr+3))
    if pro:
        assert kst and plm == 1 and not early
        S_R, S_PL, S_NC = 15, 13, 12
        if pst >= 0 and tl: PS.remove(4)
        if pst >= 0: PS.remove(12)
        e("s_load_dwordx2 s[%d:%d], s[0:1], 8" % (S_Q, S_Q+1))
        e("s_load_dwordx2 s[%d:%d], s[0:1], 16" % (S_S, S_S+1))
        e("s_load_dwordx2 s[%d:%d], s[0:1], 24" % (S_Z, S_Z+1))
        e("s_load_dwordx2 s[%d:%d], s[0:1], 0" % (S_X, S_X+1))
        e("s_load_dwordx2 s[%d:%d], s[0:1], 32" % (S_O, S_O+1))
        if stamps: e("s_load_dwordx2 s[36:37], s[0:1], %d" % (40 if stamps == 2 else 48))
        e("v_lshrrev_b32 v1, 6, v0")
        e("s_and_b32 s3, s2, 1"); e("s_lshl_b32 s3, s3, 5"); e("s_lshr_b32 s98, s2, 3"); e("s_add_u32 s3, s3, s98")
        e("v_readfirstlane_b32 s%d, v1" % S_W)
        e("s_cmp_eq_u32 s3, 63"); e("s_cbranch_scc1 L_done")
        e("v_and_b32 v%d, 63, v0" % L)
        e("s_mul_i32 s%d, s3, 37" % S_PL); e("s_lshr_b32 s%d, s%d, 8" % (S_PL, S_PL))
        e("v_lshrrev_b32 v23, 3, v%d" % L)
        e("s_mul_i32 s%d, s%d, 7" % (S_R, S_PL)); e("s_sub_u32 s%d, s3, s%d" % (S_R, S_R))
        e("v_mul_u32_u24 v23, %d, v23" % (4*18432))
        e("s_bfe_u32 s3, s2, 0x20001"); e("s_mul_i32 s3, s3, 9"); e("s_add_u32 s3, s3, s%d" % S_PL)
        e("v_and_b32 v24, 7, v0")
        cst = sum(int(ch) << (4*i) for i, ch in enumerate(kst))
        e("s_lshl_b32 s101, s%d, 2" % S_R); e("s_lshr_b32 s101, 0x%x, s101" % cst); e("s_and_b32 s101, s101, 15")
        e("v_lshl_add_u32 v23, v24, 4, v23")
        if xo:
            e("s_and_b32 s100, s2, 7"); e("s_lshl_b32 s100, s100, 2"); e("s_lshr_b32 s100, 0x%x, s100" % sum(int(ch) << (4*i) for i, ch in enumerate(xo))); e("s_and_b32 s100, s100, 15")
            e("s_add_u32 s101, s101, s100")
        else: e("s_add_u32 s101, s101, s%d" % S_PL)
        e("s_sub_u32 s100, s101, 9"); e("s_min_u32 s101, s100, s101")
        e("s_lshl_b32 s%d, s101, 7" % S_P)
        e("s_lshr_b32 s100, s%d, 2" % S_W)
        e("s_mul_i32 s%d, s100, %d" % (S_T, 32*18432)); e("s_lshl_b32 s%d, s3, 9" % S_U); e("s_add_u32 s%d, s%d, s%d" % (S_T, S_T, S_U))
        e("s_and_b32 s%d, s%d, 3" % (S_U, S_W)); e("s_lshl_b32 s%d, s%d, 7" % (S_U, S_U)); e("s_add_u32 s%d, s%d, s%d" % (S_T, S_T, S_U))
        e("v_add_u32 v%d, s%d, v23" % (V_QJ[0], S_T))
        e("s_mov_b32 s%d, %d" % (S_Q+2, K*N*4)); e("s_mov_b32 s%d, 0x00020000" % (S_Q+3))
        for j in range(1, 4): e("v_add_u32 v%d, %d, v%d" % (V_QJ[j], 18432*j, V_QJ[0]))
        tab_addr()
        pstamp()
        e("s_cmp_lg_u32 s100, 0"); e("s_cbranch_scc1 L_rh1")
    else:
        e("s_load_dwordx2 s[%d:%d], s[0:1], 16" % (S_S, S_S+1))
        e("s_load_dwordx2 s[%d:%d], s[0:1], 24" % (S_Z, S_Z+1))
        e("s_load_dwordx2 s[%d:%d], s[0:1], 8" % (S_Q, S_Q+1))
        e("s_load_dwordx2 s[%d:%d], s[0:1], 0" % (S_X, S_X+1))
        e("s_load_dwordx2 s[%d:%d], s[0:1], 32" % (S_O, S_O+1))
        if stamps: e("s_load_dwordx2 s[36:37], s[0:1], %d" % (40 if stamps == 2 else 48))
        e("s_and_b32 s3, s2, 1"); e("s_lshl_b32 s3, s3, 5"); e("s_lshr_b32 s98, s2, 3"); e("s_add_u32 s3, s3, s98")
        e("s_cmp_eq_u32 s3, 63"); e("s_cbranch_scc1 L_done")
        e("v_lshrrev_b32 v1, 6, v0")
        e("s_mul_i32 s98, s3, 37"); e("s_lshr_b32 s98, s98, 8")
        e("v_readfirstlane_b32 s%d, v1" % S_W)
        e("s_mul_i32 s99, s98, 7"); e("s_sub_u32 s99, s3, s99")
        e("s_bfe_u32 s3, s2, 0x20001"); e("s_mul_i32 s3, s3, 9"); e("s_add_u32 s3, s3, s98")
        e("s_cmp_lt_u32 s99, 2"); e("s_cselect_b32 s%d, 19, 18" % S_NB)
        e("s_min_u32 s100, s99, 2"); e("s_mul_i32 s101, s99, 18"); e("s_add_u32 s100, s100, s101")
        e("s_add_u32 s101, s100, s%d" % S_NB); e("s_mul_i32 s%d, s101, 18432" % S_END)
        e("s_mul_i32 s%d, s%d, 18432" % (S_SPAN, S_NB))
        if rrot:
            e("s_sub_u32 s101, s98, 5"); e("s_cmp_ge_u32 s98, 5"); e("s_cselect_b32 s101, s101, s98"); e("s_mul_i32 s101, s101, %d" % rrot)
            e("s_add_u32 s100, s100, s101")
        e("s_mul_i32 s%d, s100, 18432" % S_BASE)
        if early:
            e("s_add_u32 s101, s99, s3"); e("s_mul_i32 s100, s101, 37"); e("s_lshr_b32 s100, s100, 8"); e("s_mul_i32 s100, s100, 7")
            e("s_sub_u32 s101, s101, s100"); e("s_add_u32 s101, s101, 2")
            e("s_mov_b32 s%d, 0" % S_P); e("s_movk_i32 s%d, 128" % (S_P+1))
            for t in range(2, 8):
                e("s_cmp_le_u32 s101, %d" % t); e("s_cselect_b32 s%d, %d, %d" % (S_P+t, 64*(t+1), 64*t) if 0 else "s_cselect_b32 s%d, 128, 0" % (S_P+t)); e("s_add_u32 s%d, s%d, %d" % (S_P+t, S_P+t, 128*t))
            e("s_lshl_b32 s%d, s101, 7" % (S_P+8))
        else:
          if kst:
            cst = sum(int(ch) << (4*i) for i, ch in enumerate(kst))
            e("s_lshl_b32 s101, s99, 2"); e("s_lshr_b32 s101, 0x%x, s101" % cst); e("s_and_b32 s101, s101, 15")
            pc = sum(((plm*i) % 9) << (4*i) for i in range(8))
            e("s_lshl_b32 s100, s98, 2"); e("s_lshr_b32 s100, 0x%x, s100" % pc); e("s_and_b32 s100, s100, 15"); e("s_cmp_eq_u32 s98, 8"); e("s_cselect_b32 s100, %d, s100" % ((plm*8) % 9))
            e("s_add_u32 s101, s101, s100")
            e("s_sub_u32 s100, s101, 9"); e("s_cmp_ge_u32 s101, 9"); e("s_cselect_b32 s101, s100, s101")
          elif krot == 3:
            e("s_mul_i32 s101, s99, 11"); e("s_lshr_b32 s101, s101, 5"); e("s_mul_i32 s101, s101, 3"); e("s_sub_u32 s101, s99, s101"); e("s_mul_i32 s101, s101, 3"); e("s_add_u32 s101, s101, s98")
            e("s_sub_u32 s100, s101, 9"); e("s_cmp_ge_u32 s101, 9"); e("s_cselect_b32 s101, s100, s101")
          elif krot == 4:
            e("s_and_b32 s101, s99, 6"); e("s_add_u32 s101, s101, s98")
            e("s_sub_u32 s100, s101, 9"); e("s_cmp_ge_u32 s101, 9"); e("s_cselect_b32 s101, s100, s101")
          elif krot == 5:
            e("s_and_b32 s101, s99, 6"); e("s_cmp_eq_u32 s99, 5"); e("s_cselect_b32 s101, 6, s101"); e("s_cmp_eq_u32 s99, 6"); e("s_cselect_b32 s101, 8, s101"); e("s_add_u32 s101, s101, s98")
            e("s_sub_u32 s100, s101, 9"); e("s_cmp_ge_u32 s101, 9"); e("s_cselect_b32 s101, s100, s101")
          elif krot == 2:
            e("s_mov_b32 s101, s98")
          elif krot:
            e("s_lshl_b32 s101, s98, 1"); e("s_add_u32 s101, s101, s99")
            if r9:
                e("s_cmp_ge_u32 s99, 4"); e("s_addc_u32 s101, s101, 0")
            for _ in range(2):
                e("s_sub_u32 s100, s101, 9"); e("s_cmp_ge_u32 s101, 9"); e("s_cselect_b32 s101, s100, s101")
          else:
            e("s_mov_b32 s101, 0")
          e("s_lshl_b32 s%d, s101, 7" % S_P)
          for t in range(1, 9):
            e("s_add_u32 s%d, s%d, 128" % (S_P+t, S_P+t-1)); e("s_cmp_eq_u32 s%d, 1152" % (S_P+t)); e("s_cselect_b32 s%d, 0, s%d" % (S_P+t, S_P+t))
        for (sr, nb_) in ((S_S, 18*N*2), (S_Z, 18*N*2), (S_Q, K*N*4), (S_X, M*K*2), (S_O, M*N*2)):
            e("s_mov_b32 s%d, %d" % (sr+2, nb_)); e("s_mov_b32 s%d, 0x00020000" % (sr+3))
        if stamps:
            e("s_mov_b32 s38, %s" % ("256" if stamps == 2 else "0x10000000")); e("s_mov_b32 s39, 0x00020000")
        L, I, G = 20, 21, 22
        e("v_and_b32 v%d, 63, v0" % L); e("v_and_b32 v%d, 15, v0" % I); e("v_bfe_u32 v%d, v0, 4, 2" % G)
        e("s_and_b32 s98, s%d, 1" % S_W)
        e("s_bfe_u32 s99, s%d, 0x10001" % S_W)
        e("s_lshr_b32 s100, s%d, 2" % S_W)
        if early:
            e("v_lshrrev_b32 v23, 5, v0"); e("v_mov_b32 v25, s101"); e("v_cmp_le_u32 vcc, s101, v23"); e("v_add_u32 v24, 1, v23"); e("s_nop 0")
            e("v_cndmask_b32 v24, v23, v24, vcc"); e("v_cmp_eq_u32 vcc, 8, v23"); e("s_nop 1"); e("v_cndmask_b32 v23, v24, v25, vcc")
        else:
            e("v_lshrrev_b32 v23, 5, v0"); e("v_add_u32 v23, s101, v23"); e("v_subrev_u32 v24, 9, v23"); e("v_min_u32 v23, v23, v24")
        e("v_and_b32 v24, 1, v%d" % G); e("v_lshl_add_u32 v23, v23, 1, v24"); e("v_mul_u32_u24 v23, 9216, v23")
        e("v_lshl_add_u32 v23, v%d, 4, v23" % I); e("s_lshl_b32 s%d, s3, 8" % S_T); e("v_add_u32 v%d, s%d, v23" % (V_T0, S_T))
        e("s_mul_i32 s%d, s100, %d" % (S_T, 32*18432)); e("s_lshl_b32 s%d, s3, 9" % S_U); e("s_add_u32 s%d, s%d, s%d" % (S_T, S_T, S_U))
        e("s_and_b32 s%d, s%d, 3" % (S_U, S_W)); e("s_lshl_b32 s%d, s%d, 7" % (S_U, S_U)); e("s_add_u32 s%d, s%d, s%d" % (S_T, S_T, S_U))
        e("v_lshrrev_b32 v23, 3, v%d" % L); e("v_mul_u32_u24 v23, %d, v23" % (4*18432)); e("v_and_b32 v24, 7, v%d" % L)
        e("v_lshl_add_u32 v23, v24, 4, v23"); e("v_add_u32 v%d, s%d, v23" % (V_QJ[0], S_T))
        for j in range(1, 4): e("v_add_u32 v%d, %d, v%d" % (V_QJ[j], 18432*j, V_QJ[0]))
        e("s_lshl_b32 s%d, s98, 2" % S_T); e("v_add_u32 v23, s%d, v%d" % (S_T, G)); e("v_and_b32 v24, 7, v%d" % L); e("v_xor_b32 v23, v23, v24")
        e("v_lshrrev_b32 v24, 3, v%d" % L); e("v_mul_u32_u24 v24, 1152, v24"); e("v_lshl_add_u32 v%d, v23, 4, v24" % V_XD)
        e("s_mul_i32 s%d, s98, 9216" % S_T); e("v_add_u32 v%d, s%d, v%d" % (V_XD, S_T, V_XD))
        e("s_mul_i32 s%d, s99, 18432" % S_T); e("s_add_u32 s%d, s%d, s%d" % (S_B2, S_BASE, S_T))
        e("s_lshl_b32 s%d, s%d, 10" % (S_W3L, S_W)); e("s_and_b32 s%d, s%d, 0xc00" % (S_W3L, S_W3L))
        pstamp()
        e("s_cmp_lg_u32 s100, 0"); e("s_cbranch_scc1 L_rh1")


    TAB = 0
    WS = [5*4096, 9*4096]
    frag_list = [(j, t, e_) for t in range(9) for j in range(P1) for e_ in range(2)] + [(j, t, e_) for j in range(P1, 10) for t in range(9) for e_ in range(2)]
    fidx = {k: i for i, k in enumerate(frag_list)}
    NE = 9 + (10 - P1)
    first = [fidx[(0, t, 0)] for t in range(9)] + [fidx[(j, 0, 0)] for j in range(P1, 10)]
    bpos = [0] + [first[ep] - pf for ep in range(1, NE)]
    def ep_of(f): return max(ep for ep in range(NE) if bpos[ep] <= f)
    need = {(j, t): (t if j < P1 else 9 + j - P1) for j in range(10) for t in range(9)}
    free_at = {g: -99 for g in range(13, 40)}
    for g in range(0, 5): free_at[g] = 8
    for g in range(5, 9): free_at[g] = 9
    for g in range(9, 13): free_at[g] = 8
    order = []
    for t in range(9 + qa if qa else 0):
        if t - qa >= 0: order += [("x", j, t - qa) for j in range(P1)]
        if t < 9: order.append(("q", t))
    if qa:
        order.remove(("q", 0)); order.insert(0, ("q", 0))
        i0 = [("x", j, 0) for j in range(P1)]
        for it in i0: order.remove(it)
        order[1:1] = i0
    for t in range(0 if qa else 9):
        if t == 2 and early:
            order.append(("q", 8))
            if early >= 2: order += [("x", j, 8) for j in range(P1)]
        if not (early and t == 8): order.append(("q", t))
        if not (early >= 2 and t == 8): order += [("x", j, t) for j in range(P1)]
    order += [("x", j, t) for j in range(P1, 10) for t in range(9)]
    def pos_of(it):
        t = it[-1]
        if qa: return t if it[0] == "x" else (0 if t == 0 else max(t - qa, 1 if n0 == 1 else 0))
        if not early: return t
        if t == 8 and (it[0] == "q" or early >= 2): return 2
        return t if t < 2 else t + 1
    issue = {}; gran = {}
    pend = list(order)
    for ep in [-2, -1] + list(range(NE)):
        n = 0
        while pend:
            it = pend[0]
            step = pos_of(it) if (it[0] == "q" or it[1] < P1) else 99
            lim = n0 if ep == -2 else (n1 if ep == -1 else min(ep + D + 1 + (1 if early else 0), n1 + 2*(ep+1)))
            if step < 99 and step >= lim: break
            if step == 99 and (lim < 9 or n >= cap or ep < p2s): break
            if it[0] == "x":
                cands = sorted(g for g in free_at if free_at[g] <= ep)
                if not cands: break
                g = cands[0]; gran[it[1:]] = g
                free_at[g] = ep_of(fidx[(it[1], it[2], 1)]) + 1
                assert ep < need[it[1:]], (it, ep)
                n += 1
            else:
                assert ep < it[1] - 1 or it[1] == 0 or (it[1] == 1 and ep <= -1), (it, ep)
            issue[it] = ep; pend.pop(0)
    assert not pend
    if stamps or 1:
        sys.stderr.write("issue: " + " ".join("%d:[%s]" % (ep, ",".join(("q%d" % k[1] if k[0] == "q" else "%d.%d" % k[1:]) for k in order if issue[k] == ep)) for ep in [-2, -1] + list(range(NE))) + "\n")

    def xowner(j, t):
        ep = issue[("x", j, t)]
        if ep < 0: return (j + t) % 2
        lst = [it for it in order if it[0] == "x" and issue[it] == ep]
        i = lst.index(("x", j, t)); n = len(lst)
        x_ = xs if ep < 9 else xs2
        if x_ == 0: return (j + t) % 2
        return 0 if ((i+1)*x_)//6 != (i*x_)//6 else 1
    def xaddr(off, e_):
        return V_X + 2*(off >> 16) + e_, off & 0xffff

    for rh in range(2):
        p = Prog(a); pe = p.e; p.sw = sw
        if rh: a.lab("L_rh1")
        if prio and rh == 1: pe("s_setprio %d" % prio)
        dj_done = set()
        def mk_dj(j):
            if j in dj_done: return
            dj_done.add(j)
            d = S_DJ + j
            pe("s_add_u32 s%d, s%d, %d" % (d, S_B2, 2*j*18432)); pe("s_cmp_ge_u32 s%d, s%d" % (d, S_END))
            pe("s_cselect_b32 s%d, s%d, 0" % (S_U, S_SPAN)); pe("s_sub_u32 s%d, s%d, s%d" % (d, d, S_U))
            if j == 9:
                pe("s_add_u32 s%d, s%d, 18" % (S_U, S_JH)); pe("s_cmp_ge_u32 s%d, s%d" % (S_U, S_NB)); pe("s_cselect_b32 s%d, 0x40000000, s%d" % (d, d))
        def load_ops(ep):
            ops = []
            for it in order:
                if issue[it] != ep: continue
                if it[0] == "q":
                    t = it[1]
                    if (abl & 4) and t >= 1: continue
                    for j in range(4):
                        def f(j=j, t=t):
                            if j == 0: pe("s_mul_i32 s%d, s%d, 9216" % (S_QO, S_P+t))
                            r = V_W + 16*t + 4*j
                            p.vmem("buffer_load_dwordx4 v[%d:%d], v%d, s[%d:%d], s%d offen %s" % (r, r+3, V_QJ[j], S_Q, S_Q+3, S_QO, qpol), ("q", t, j))
                        ops.append(f)
                else:
                    j, t = it[1:]
                    if xowner(j, t) != rh: continue
                    if (abl & 8) and t >= 1 and j < P1: continue
                    if (abl & 2048) and j >= P1: continue
                    def f(j=j, t=t):
                        mk_dj(j)
                        pe("s_add_u32 m0, s%d, %d" % (S_W3L, gran[(j, t)]*4096))
                        pe("s_add_u32 s%d, s%d, s%d" % (S_T, S_DJ+j, S_P+t))
                        p.vmem("buffer_load_dwordx4 v%d, s[%d:%d], s%d offen lds %s" % (V_XD, S_X, S_X+3, S_T, xpol), ("x", need[(j, t)]))
                    ops.append(f)
            if tl and rh == th:
                ks_ = sorted(set(int(ch) for ch in kst)); ncl = [((ks_[(i + 1) % len(ks_)] - ks_[i] - 1) % 9) + 1 for i in range(len(ks_))]
                ts = [t for t in range(t0, max(ncl)) if (max(tp, (t - tl) // tn) if t - tl >= 0 else tp) == ep]
                tops = []
                for t in ts:
                    def f(t=t):
                        pe("s_mul_i32 s%d, s%d, 9216" % (S_U, S_P+t))
                        if t >= min(ncl): pe("s_cmp_gt_u32 s%d, %d" % (S_NC, t)); pe("s_cselect_b32 s%d, s%d, 0x40000000" % (S_U, S_U))
                        p.vmem("buffer_load_dword v%d, v%d, s[%d:%d], s%d offen %s" % (V_T0, V_WA1, S_Q, S_Q+3, S_U, tpol), ("tch", t))
                    tops.append(f)
                k_ = len(ops) if (tpos == 0 or ep < 0) else tpos - 1
                ops = ops[:k_] + tops + ops[k_:]
            return ops
        def touch_addr():
            n_ = 64*512 // tg; sh = 2 if tg == 128 else 3
            ks = [int(ch) for ch in kst]; st = sorted(set(ks))
            rank = [ks[:r].count(ks[r]) for r in range(7)]
            cw4 = [-(-n_ // (ks.count(k_) * tw * 4)) for k_ in ks]
            ncs = [((st[(st.index(k_) + 1) % len(st)] - k_ - 1) % 9) + 1 for k_ in ks]
            assert max(cw4) <= 16
            nib = lambda l_: sum(v << (4*i) for i, v in enumerate(l_))
            pe("s_lshl_b32 s%d, s%d, 2" % (S_U, S_R))
            pe("s_lshr_b32 s%d, 0x%x, s%d" % (S_NC, nib(ncs), S_U)); pe("s_and_b32 s%d, s%d, 15" % (S_NC, S_NC))
            pe("s_lshr_b32 s4, 0x%x, s%d" % (nib([c - 1 for c in cw4]), S_U)); pe("s_and_b32 s4, s4, 15"); pe("s_lshl_b32 s4, s4, 2"); pe("s_add_u32 s4, s4, 4")
            pe("s_lshr_b32 s5, 0x%x, s%d" % (nib(rank), S_U)); pe("s_and_b32 s5, s5, 15"); pe("s_mul_i32 s5, s5, %d" % tw)
            pe("s_and_b32 s%d, s%d, 3" % (S_T, S_W)); pe("s_add_u32 s5, s5, s%d" % S_T); pe("s_mul_i32 s5, s5, s4")
            pe("s_cmp_lt_u32 s%d, %d" % (S_T, tw)); pe("s_cselect_b32 s4, s4, 0")
            pe("v_add_u32 v17, s5, v%d" % L)
            pe("v_lshrrev_b32 v18, %d, v17" % sh); pe("v_mul_u32_u24 v18, 18432, v18"); pe("v_and_b32 v19, %d, v17" % ((1 << sh) - 1))
            pe("v_lshl_add_u32 v18, v19, %d, v18" % (9 - sh)); pe("s_lshl_b32 s%d, s3, 9" % S_T); pe("v_add_u32 v18, s%d, v18" % S_T)
            pe("v_mov_b32 v19, 0x40000000")
            pe("v_cmp_gt_u32 vcc, s4, v%d" % L); pe("s_movk_i32 s%d, %d" % (S_U, n_)); pe("s_nop 0"); pe("v_cndmask_b32 v18, v19, v18, vcc")
            pe("v_cmp_gt_u32 vcc, s%d, v17" % S_U); pe("s_nop 1"); pe("v_cndmask_b32 v%d, v19, v18, vcc" % V_WA1)
        if pro:
            if rh == 1:
                pe("s_cmp_eq_u32 s%d, 4" % S_W); pe("s_cselect_b32 exec_lo, -1, 0"); pe("s_mov_b32 exec_hi, 0")
            pstamp(rh)
            pe("s_waitcnt lgkmcnt(0)")
            pstamp(rh)
            tb = 48 if rh else 24
            p.vmem("buffer_load_dwordx4 v[%d:%d], v%d, s[%d:%d], 0 offen" % (tb, tb+3, V_T0, S_S, S_S+3), "tab")
            p.vmem("buffer_load_dwordx4 v[%d:%d], v%d, s[%d:%d], 0 offen" % (tb+4, tb+7, V_T0, S_Z, S_Z+3), "tab")
            if rh == 1: pe("s_mov_b64 exec, -1")
            l0 = load_ops(-2)
            for f in l0[:4]: f()
            sv_out = len(a.out)
            late_scalars()
            a.out[sv_out:] = [l.replace("v23", "v16").replace("v24", "v17") for l in a.out[sv_out:]]
            nx0 = len([1 for it in order if issue[it] == -2 and it[0] == "x" and xowner(it[1], it[2]) == rh])
            xlate = []
            if xd0 & (1 << rh): xlate = l0[4:4+nx0]
            else:
                for f in l0[4:4+nx0]: f()
            pstamp(rh)
            late2()
            if tl and rh == th: touch_addr()
            if not xlate:
                for f in l0[4+nx0:]: f()
        else:
            for it in order:
                if issue[it] == -2 and it[0] == "x" and xowner(it[1], it[2]) == rh: mk_dj(it[1])
            if rh == 1:
                pe("v_mov_b32 v%d, 0x7fffffff" % V_T1); pe("v_cmp_gt_u32 vcc, 288, v0"); pe("s_nop 1"); pe("v_cndmask_b32 v%d, v%d, v%d, vcc" % (V_T0, V_T1, V_T0))
            pstamp(rh)
            pe("s_waitcnt lgkmcnt(0)")
            pstamp(rh)
            p.vmem("buffer_load_dwordx4 v[24:27], v%d, s[%d:%d], 0 offen" % (V_T0, S_S, S_S+3), "tab")
            p.vmem("buffer_load_dwordx4 v[28:31], v%d, s[%d:%d], 0 offen" % (V_T0, S_Z, S_Z+3), "tab")
            for f in load_ops(-2): f()
            if stamps and stamps < 3 and not SL: a.stamp(1)
            pstamp(rh)
        pe("v_lshrrev_b32 v16, 2, v%d" % L); pe("v_mul_u32_u24 v16, 9216, v16"); pe("v_and_b32 v17, 3, v%d" % L); pe("v_lshl_add_u32 v16, v17, 4, v16")
        pe("s_lshr_b32 s%d, s%d, 4" % (S_T, S_W3L)); pe("s_lshl_b32 s%d, s3, 8" % S_U); pe("s_add_u32 s%d, s%d, s%d" % (S_T, S_T, S_U)); pe("v_add_u32 v%d, s%d, v16" % (V_OUT, S_T))
        if sw:
            pe("v_mul_u32_u24 v16, 9216, v%d" % I); pe("v_lshl_add_u32 v16, v%d, 4, v16" % G); pe("v_add_u32 v%d, s%d, v16" % (V_OUT, S_T))
        if epi == 1:
            pe("v_and_b32 v16, 3, v%d" % I); pe("v_lshlrev_b32 v16, 4, v16"); pe("v_lshrrev_b32 v17, 3, v%d" % I); pe("v_lshl_add_u32 v16, v17, 3, v16")
            pe("v_bfe_u32 v17, v%d, 2, 1" % I); pe("v_lshl_add_u32 v16, v17, 2, v16"); pe("v_mul_u32_u24 v17, %d, v%d" % (4*9216, G)); pe("v_add_u32 v16, v16, v17")
            pe("v_add_u32 v%d, s%d, v16" % (V_E, S_T))
            for r in range(1, 4): pe("v_add_u32 v%d, %d, v%d" % (V_E+r, 9216*r, V_E))
        if fseg == 128:
            pe("v_lshrrev_b32 v16, 3, v%d" % L); pe("v_mul_u32_u24 v16, 9216, v16"); pe("v_and_b32 v17, 7, v%d" % L); pe("v_lshl_add_u32 v16, v17, 4, v16")
            pe("s_and_b32 s%d, s%d, 1" % (S_T, S_W)); pe("s_lshl_b32 s%d, s%d, 7" % (S_T, S_T)); pe("s_add_u32 s%d, s%d, s%d" % (S_U, S_T, S_U))
            pe("s_bfe_u32 s%d, s%d, 0x10001" % (S_T, S_W)); pe("s_mul_i32 s%d, s%d, %d" % (S_T, S_T, 8*9216)); pe("s_add_u32 s%d, s%d, s%d" % (S_T, S_T, S_U)); pe("v_add_u32 v%d, s%d, v16" % (V_OUT, S_T))
        if fseg == 256:
            pe("v_lshrrev_b32 v16, 4, v%d" % L); pe("v_mul_u32_u24 v16, 9216, v16"); pe("v_and_b32 v17, 15, v%d" % L); pe("v_lshl_add_u32 v16, v17, 4, v16")
            pe("s_and_b32 s%d, s%d, 3" % (S_T, S_W)); pe("s_mul_i32 s%d, s%d, %d" % (S_T, S_T, 4*9216)); pe("s_add_u32 s%d, s%d, s%d" % (S_T, S_T, S_U)); pe("v_add_u32 v%d, s%d, v16" % (V_OUT, S_T))
        pe("v_bfe_u32 v16, v%d, 2, 1" % I); pe("v_and_b32 v17, 3, v%d" % I); pe("v_lshlrev_b32 v17, 1, v17"); pe("v_lshrrev_b32 v18, 3, v%d" % I); pe("v_add_u32 v17, v17, v18")
        if sw: pe("v_and_b32 v16, 1, v%d" % I); pe("v_lshrrev_b32 v17, 1, v%d" % I)
        pe("v_lshlrev_b32 v17, 4, v17"); pe("v_lshl_add_u32 v17, v16, 10, v17"); pe("v_lshl_add_u32 v17, v%d, 7, v17" % G)
        pe("s_lshl_b32 s%d, s%d, 1" % (S_T, S_W3L)); pe("v_add_u32 v%d, s%d, v17" % (V_WR, S_T))
        pe("v_and_b32 v16, 7, v%d" % I); pe("v_lshlrev_b32 v16, 4, v16"); pe("v_lshl_add_u32 v17, v18, 3, v16"); pe("v_lshl_add_u32 v17, v%d, 7, v17" % G)
        pe("s_add_u32 s%d, s%d, %d" % (S_T, S_T, rh*8192)); pe("v_add_u32 v%d, s%d, v17" % (V_WA0, S_T))
        pe("s_lshr_b32 s%d, s%d, 3" % (S_T, S_W3L)); pe("s_add_u32 s%d, s%d, %d" % (S_T, S_T, rh*1024 + TAB)); pe("v_add_u32 v%d, s%d, v16" % (V_TAB, S_T))
        pe("v_lshrrev_b32 v16, 1, v%d" % I); pe("v_xor_b32 v16, v16, v%d" % G); pe("v_lshlrev_b32 v16, 4, v16"); pe("v_lshl_add_u32 v%d, v%d, 7, v16" % (V_X, I))
        if rh: pe("v_add_u32 v%d, 2048, v%d" % (V_X, V_X))
        pe("v_xor_b32 v%d, 64, v%d" % (V_X+1, V_X))
        for w_ in (1, 2):
            pe("v_add_u32 v%d, %d, v%d" % (V_X+2*w_, w_ << 16, V_X)); pe("v_add_u32 v%d, %d, v%d" % (V_X+2*w_+1, w_ << 16, V_X+1))
        pe("v_lshrrev_b32 v16, 4, v0"); pe("v_lshlrev_b32 v16, 10, v16"); pe("v_lshl_add_u32 v%d, v%d, 5, v16" % (V_T1, I))
        pe("s_mov_b32 s%d, 0x00ff00ff" % S_M8); pe("s_mov_b32 s%d, 0x00ff00ff" % (S_M8+1)); pe("s_not_b64 s[%d:%d], s[%d:%d]" % (S_M8N, S_M8N+1, S_M8, S_M8+1))
        pe("s_mov_b32 s%d, 0x0f0f0f0f" % S_M4); pe("s_mov_b32 s%d, 0x0f0f0f0f" % (S_M4+1)); pe("s_not_b64 s[%d:%d], s[%d:%d]" % (S_M4N, S_M4N+1, S_M4, S_M4+1))
        def tab_build(tb, T0):
            if rh == 1:
                pe("s_cmp_lg_u32 s%d, 4" % S_W); pe("s_cbranch_scc1 L_notab")
                pe("s_mov_b32 exec_hi, 0")
            sv = p.vmdone
            p.wait(vm=lambda x: x == "tab")
            if not (pro and rh): pstamp(rh)
            for c in range(4):
                pe("v_lshlrev_b32 v%d, 16, v%d" % (T0+2*c, tb+c)); pe("v_and_b32 v%d, 0xffff0000, v%d" % (T0+1+2*c, tb+c))
                pe("v_lshlrev_b32 v%d, 16, v%d" % (T0+8+2*c, tb+4+c)); pe("v_and_b32 v%d, 0xffff0000, v%d" % (T0+9+2*c, tb+4+c))
            pe("ds_write_b128 v%d, v[%d:%d] offset:%d" % (V_T1, T0, T0+3, TAB)); pe("ds_write_b128 v%d, v[%d:%d] offset:%d" % (V_T1, T0+4, T0+7, TAB+16))
            for c in range(8): pe("v_mul_f32 v%d, -v%d, v%d" % (T0+8+c, T0+8+c, T0+c))
            pe("ds_write_b128 v%d, v[%d:%d] offset:%d" % (V_T1, T0+8, T0+11, TAB+512)); pe("ds_write_b128 v%d, v[%d:%d] offset:%d" % (V_T1, T0+12, T0+15, TAB+528))
            pe("s_waitcnt lgkmcnt(0)")
            if rh == 1:
                pe("s_mov_b32 exec_hi, -1")
                a.lab("L_notab")
                p.vmdone = sv
        if not (pro and rh): tab_build(24, 32)
        else: pstamp(rh)
        if pro and xlate and not (xd0 & 4):
            for f in l0[4:]: f()
        pe("s_barrier")
        if pro and xlate and (xd0 & 4):
            for f in l0[4:]: f()
        pstamp(rh)
        def tab_reads(t):
            p.lds("ds_read_b128 v[%d:%d], v%d offset:%d" % (V_S, V_S+3, V_TAB, t*2048), ("t", t))
            p.lds("ds_read_b128 v[%d:%d], v%d offset:%d" % (V_NZ, V_NZ+3, V_TAB, t*2048+512), ("t", t))
        def dequant(t):
            R = V_W + 16*t
            ops = []
            for j in range(4):
                ops.append((0, lambda j=j: p.wait(vm=lambda x: x == ("q", t, j))))
                if not (abl & 129):
                    for c in range(4): ops.append((1, lambda x=4*j+c: pe("v_cvt_f32_i32 v%d, v%d" % (R+x, R+x))))
            ops.append((0, lambda: p.wait(lg=lambda x: x == ("t", t))))
            for c in range(4):
                if abl & 1:
                    if not (abl & 2): ops.append((0, lambda c=c: p.lds("ds_write_b64 v%d, v[%d:%d] offset:%d" % (V_WA0, V_PK+2*c, V_PK+2*c+1, WS[t % 2] + c*512), ("w", t))))
                    continue
                if pk:
                    if c % 2 == 0:
                        for j in range(4): ops.append((1, lambda x=4*j+c: pe("v_pk_fma_f32 v[%d:%d], v[%d:%d], v[%d:%d], v[%d:%d]" % (R+x, R+x+1, R+x, R+x+1, V_S+(x & 3), V_S+(x & 3)+1, V_NZ+(x & 3), V_NZ+(x & 3)+1))))
                else:
                    for j in range(4): ops.append((1, lambda x=4*j+c: pe("v_fma_f32 v%d, v%d, v%d, v%d" % (R+x, R+x, V_S+(x & 3), V_NZ+(x & 3)))))
                ops.append((1, lambda c=c: pe("v_cvt_pk_bf16_f32 v%d, v%d, v%d" % (V_PK+2*c, R+c, R+4+c))))
                ops.append((1, lambda c=c: pe("v_cvt_pk_bf16_f32 v%d, v%d, v%d" % (V_PK+2*c+1, R+8+c, R+12+c))))
                if not (abl & 2): ops.append((0, lambda c=c: p.lds("ds_write_b64 v%d, v[%d:%d] offset:%d" % (V_WA0, V_PK+2*c, V_PK+2*c+1, WS[t % 2] + c*512), ("w", t)), "w"))
            if wdel:
                o2 = []; held = []
                for o in ops:
                    if len(o) == 3: held.append([wdel, o[:2]]); continue
                    o2.append(o)
                    if o[0]:
                        for h in held: h[0] -= 1
                        while held and held[0][0] <= 0: o2.append(held.pop(0)[1])
                o2 += [h[1] for h in held]
                ops = o2
            ops = [o[:2] for o in ops]
            return ops
        def epilogue(acc, idx):
            ops = []
            V_D, V_E, V_O = (acc, acc+4, acc) if ipe else (48, 52, 56)
            def firstop():
                p.need_mfma_done(acc); p.need_mfma_done(acc+4)
                pe("v_cvt_pk_bf16_f32 v%d, v%d, v%d" % (V_D, acc, acc+4))
            ops.append((1, firstop))
            for r in range(1, 4): ops.append((1, lambda r=r: pe("v_cvt_pk_bf16_f32 v%d, v%d, v%d" % (V_D+r, acc+r, acc+4+r))))
            if epi == 1:
                ops = []
                dd = V_D if idx % 4 < 2 else V_O
                def firstop():
                    p.need_mfma_done(acc); p.need_mfma_done(acc+4)
                    pe("s_add_u32 s%d, s%d, %d" % (S_EO, S_BASE, idx*18432)); pe("s_cmp_ge_u32 s%d, s%d" % (S_EO, S_END)); pe("s_cselect_b32 s%d, s%d, 0" % (S_INV, S_SPAN))
                    pe("v_cvt_pk_bf16_f32 v%d, v%d, v%d" % (dd, acc, acc+4))
                    pe("s_sub_u32 s%d, s%d, s%d" % (S_EO, S_EO, S_INV)); pe("s_lshl_b32 s%d, s%d, 3" % (S_EO, S_EO))
                ops.append((1, firstop))
                for r in range(1, 4): ops.append((1, lambda r=r: pe("v_cvt_pk_bf16_f32 v%d, v%d, v%d" % (dd+r, acc+r, acc+4+r))))
                for r in range(4): ops.append((stc, lambda r=r: p.vmem("buffer_store_dword v%d, v%d, s[%d:%d], s%d offen %s" % (dd+r, V_E+r, S_O, S_O+3, S_EO, spol), "st")))
                return ops
            if sw:
                ops.insert(1, (0, lambda: (pe("s_add_u32 s%d, s%d, %d" % (S_EO, S_BASE, idx*18432)), pe("s_cmp_ge_u32 s%d, s%d" % (S_EO, S_END)), pe("s_cselect_b32 s%d, s%d, 0" % (S_INV, S_SPAN)))))
                ops.insert(3, (0, lambda: (pe("s_sub_u32 s%d, s%d, s%d" % (S_EO, S_EO, S_INV)), pe("s_lshl_b32 s%d, s%d, 3" % (S_EO, S_EO)))))
                ops.append((0, lambda: p.vmem("buffer_store_dwordx4 v[%d:%d], v%d, s[%d:%d], s%d offen %s" % (V_D, V_D+3, V_OUT, S_O, S_O+3, S_EO, spol), "st")))
                return ops
            def dpp(d, s0, s1, ror): pe("v_cndmask_b32_dpp v%d, v%d, v%d, vcc row_ror:%d row_mask:0xf bank_mask:0xf" % (d, s0, s1, ror))
            ops.append((0, lambda: (pe("s_mov_b64 vcc, s[%d:%d]" % (S_M8, S_M8+1)), pe("s_add_u32 s%d, s%d, %d" % (S_EO, S_BASE, idx*18432)))))
            ops.append((1, lambda: dpp(V_E+0, V_D+2, V_D+0, 8)))
            ops.append((1, lambda: dpp(V_E+1, V_D+3, V_D+1, 8)))
            ops.append((0, lambda: (pe("s_mov_b64 vcc, s[%d:%d]" % (S_M8N, S_M8N+1)), pe("s_cmp_ge_u32 s%d, s%d" % (S_EO, S_END)), pe("s_cselect_b32 s%d, s%d, 0" % (S_INV, S_SPAN)))))
            ops.append((1, lambda: dpp(V_E+2, V_D+0, V_D+2, 8)))
            ops.append((1, lambda: dpp(V_E+3, V_D+1, V_D+3, 8)))
            ops.append((0, lambda: (pe("s_mov_b64 vcc, s[%d:%d]" % (S_M4, S_M4+1)), pe("s_sub_u32 s%d, s%d, s%d" % (S_EO, S_EO, S_INV)))))
            ops.append((1, lambda: dpp(V_O+0, V_E+1, V_E+0, 4)))
            ops.append((1, lambda: dpp(V_O+2, V_E+3, V_E+2, 4)))
            ops.append((0, lambda: (pe("s_mov_b64 vcc, s[%d:%d]" % (S_M4N, S_M4N+1)), pe("s_lshl_b32 s%d, s%d, 3" % (S_EO, S_EO)))))
            ops.append((1, lambda: dpp(V_O+1, V_E+0, V_E+1, 12)))
            ops.append((1, lambda: dpp(V_O+3, V_E+2, V_E+3, 12)))
            if abl & 1024: ops = [(c_, (lambda: None) if c_ else f_) for c_, f_ in ops]
            if not (abl & 256) or ((abl & 512) and idx >= 12): ops.append((0, lambda: p.vmem("buffer_store_dwordx4 v[%d:%d], v%d, s[%d:%d], s%d offen %s" % (V_O, V_O+3, V_OUT, S_O, S_O+3, S_EO, spol), "st")))
            return ops
        def guarantees(ep):
            p.wait(vm=lambda x: x[0] == "x" and x[1] <= ep, lg=lambda x: x == ("w", ep))
        tab_reads(0)
        lds_ = load_ops(-1)
        dq = dequant(0)
        k = 0
        for i, (c, f) in enumerate(dq):
            f()
            if i in (0, 15): pstamp(rh)
            if c and i % mid == mid0 and k < len(lds_): lds_[k](); k += 1
        if pro == 2 and rh: tab_build(48, 60)
        while k < len(lds_): lds_[k](); k += 1
        if pro == 1 and rh: tab_build(48, 60)
        nF = len(frag_list) - (18 if rh else 0)
        def acc_of(j): return V_A1 + 8*j if j < P1 else V_S + 8*((j - P1) % 2)
        freg = {}
        def frag_read(f, b=None):
            j, t, e_ = frag_list[f]
            if b is None: b = XF[f % len(XF)]
            r, o = xaddr(gran[(j, t)]*4096, e_)
            if not ((abl & 32) and f > 4): p.lds("ds_read_b128 v[%d:%d], v%d offset:%d" % (b, b+3, r, o), ("f", f))
            freg[f] = b
        dqq = []; dq_at = 0
        epq = []
        ldq = []; ld_at = 0
        m = 0; ntr = 0; cur_ep = -1; m_tr = 0; hq = []
        def run_fill(budget):
            while dqq and m >= dq_at and (budget > 0 or dqq[0][0] == 0):
                c, f = dqq.pop(0); f(); budget -= c
            return budget
        def run_ep(budget):
            while epq and m >= epq[0][0] and (budget > 0 or epq[0][2][0][0] == 0):
                c, f = epq[0][2].pop(0); f(); budget -= c
                if not epq[0][2]: epq.pop(0)
        def flush_ep(upto_acc=None):
            k_ = 0
            while epq and (upto_acc is None or any(x[1] == upto_acc for x in epq)):
                c, f = epq[0][2].pop(0); f(); k_ += 1
                if not epq[0][2]: epq.pop(0)
            if k_ and ipe and upto_acc is not None: pe("s_nop 1")
        def seq_of(f):
            o_ = od if frag_list[f][0] < P1 else od2
            if o_ == 0: return [(0, 0), (1, 0), (0, 1), (1, 1)]
            if o_ == 1: return [(0, 0), (0, 1), (1, 0), (1, 1)]
            if o_ == 3 or (f // 2) % 2 == 0: return [(0, 0), (0, 1), (1, 1), (1, 0)]
            return [(1, 0), (1, 1), (0, 1), (0, 0)]
        acc_used = set()
        for f in range(nF):
            j, t, e_ = frag_list[f]
            if f in bpos:
                ep = bpos.index(f)
                while ldq: ldq.pop(0)()
                while dqq: dqq.pop(0)[1]()
                if rh == trh and ep == trace + 1 and trace >= 0: a.cstamp(ntr, TR); ntr += 1
                if ep == 0: pstamp(rh)
                guarantees(ep)
                if rh == trh and ep == trace + 1 and trace >= 0: a.cstamp(ntr, TR); ntr += 1
                if not ((abl & 64) and 1 <= ep <= 8): pe("s_barrier")
                if rh == trh and ep in (trace, trace + 1) and trace >= 0: a.cstamp(ntr, TR); ntr += 1; m_tr = m
                cur_ep = ep; m_ep = m
                if ep <= 2 and pst == rh: pstamp(rh); p.lg_all()
                if rh == 1 and (pt1 if ep < 9 else pt2): pe("s_setprio %d" % pth); cur_pr = pth
                elif rh == 1 and ep == 9 and pt1: pe("s_setprio %d" % prio)
                if SL and ep in SL and rh == 0:
                    a.stamp(1 + SL.index(ep)); p.lg_all()
                if stamps and stamps < 3 and ep in (0, smid, 9) and not SL:
                    a.stamp({0: 2, smid: 3, 9: 4}[ep]); p.lg_all()
                hq = []
                h_ = hw if (rh == 0 or hw1 < 0) else hw1
                if ep <= 8 and not ((abl & 16) and ep >= 1):
                    for i_, (c, ks) in enumerate(seq_of(first[ep])):
                        if 1:
                            def wr(ks=ks, c=c, ep=ep):
                                r = V_W + 16*ep + 8*ks + 4*c
                                p.lds("ds_read_b128 v[%d:%d], v%d offset:%d" % (r, r+3, V_WR, WS[ep % 2] + ks*8192 + c*512), ("W", ep, ks, c))
                            if h_ and ep >= 1: hq.append([m + h_ + wst*i_, wr])
                            else: wr()
                if ep == 0:
                    for f2 in range(pf + (1 if od else 0)): frag_read(f2)
                if ep + 1 <= 8:
                    if not (abl & 16) and not (tabe == 1 and ep >= 1):
                        if tabe == 2 and ep >= 1: hq.append([m + h_ + 4*wst, lambda ep=ep: tab_reads(ep+1)])
                        else: tab_reads(ep+1)
                    dqq = dequant(ep+1); dq_at = m + (dq1 if rh else dq0)
                    if tabe == 1 and ep + 2 <= 8:
                        k_ = max(i for i, (c_, f_) in enumerate(dqq) if c_) - 2
                        dqq.insert(k_ + 1, (0, lambda ep=ep: tab_reads(ep+2)))
                ldq = load_ops(ep)
                nM = 2*((bpos[ep+1] if ep+1 < NE else nF) - f)
                n_ = len(ldq)
                l0_ = ld0
                if ep == 7 and e7 >= 0: l0_ = e7
                if ep == 8 and e8 >= 0: l0_ = e8
                ldpos = [m + l0_ + int((i + 0.5*rh + 0.25) * (nM - l0_ - ldm) / max(n_, 1)) for i in range(n_)]
                if xl0 >= 0 and ep <= 6 and n_ > 4:
                    if xfirst:
                        ldq = ldq[4:] + ldq[:4]; na = n_ - 4
                    else: na = 4
                    ldpos = [m + ld0 + int((i + 0.5*rh + 0.25) * (xl0 - ld0) / na) for i in range(na)] + [m + xl0 + int((i + 0.5*rh + 0.25) * (nM - xl0 - ldm) / (n_ - na)) for i in range(n_ - na)]
            if rh == 0 and f == fidx[(9, 0, 0)]:
                pe("s_cmp_eq_u32 s%d, 18" % S_NB); pe("s_cbranch_scc1 L_skip")
                skip_state = ([(x[1], x[3]) for x in epq], [len(x[2]) for x in epq], dict(p.lastmf), p.n)
            late = (hw and f in bpos and f > 0)
            if f + pf < nF and not late and not od: frag_read(f + pf)
            acc = acc_of(j)
            if j >= P1 and t == 0 and e_ == 0: flush_ep(acc)
            for i_, (c, e2) in enumerate(seq_of(f)[2*e_:2*e_+2]):
                ff = f - e_ + e2
                W0 = V_W + 16*t + 8*e2 + 4*c
                if j < P1 and not (abl & 16): assert ("W", t, e2, c) in p.lg
                p.wait(lg=lambda x: x == ("f", ff) or x == ("W", t, e2, c))
                p.mfma(acc + 4*c, freg[ff], W0, (j, c) not in acc_used)
                acc_used.add((j, c))
                m += 1
                pt_ = pt1 if cur_ep < 9 else pt2
                if rh == 1 and pt_ and (m - m_ep) % pt_ == 0: cur_pr = 1 - cur_pr; pe("s_setprio %d" % cur_pr)
                if od:
                    if e_ == 1 and f + pf + i_ < nF: frag_read(f + pf + i_, freg[ff])
                elif late and i_ == 0 and f + pf < nF: frag_read(f + pf)
                while hq and m >= hq[0][0]: hq.pop(0)[1]()
                while ldq and m >= ldpos[0]: ldq.pop(0)(); ldpos.pop(0)
                if rh == trh and cur_ep == trace and (m - m_tr) % tstep == 0 and ntr < len(TR) - 3: a.cstamp(ntr, TR); ntr += 1
                b = run_fill(per1)
                if not dqq:
                    if er: run_ep(min(b, (er*(m+1))//12 - (er*m)//12))
                    else: run_ep(min(b, per2))
            if t == 8 and e_ == 1:
                epq.append([m + epd, acc, epilogue(acc, 2*j + rh), 2*j + rh])
        assert not ldq and not dqq
        flush_ep()
        if rh == 0:
            pe("s_branch L_end")
            a.lab("L_skip")
            lst, lens, lm, n_ = skip_state
            p.lastmf = {k: p.n - (n_ - v) for k, v in lm.items()}
            for (acc, idx), ln in zip(lst, lens):
                ops = epilogue(acc, idx)
                for c, f in ops[len(ops)-ln:]: f()
            a.lab("L_end")
        if pst == rh:
            pstamp(rh)
            sys.stderr.write("pstamps: %d\n" % psn[0])
            a.dump_regs(PS[:psn[0]], 36, 256*rh)
        if stamps == 3 and rh == trh:
            sys.stderr.write("trace stamps: %d\n" % ntr)
            a.dump_regs(TR[:ntr], 36, 256*trh)
        if SL and rh == 0:
            a.stamp(1 + len(SL))
            a.dump_stamps(2 + len(SL), 36, vtmp=0)
        elif stamps and stamps < 3 and rh == 0:
            a.stamp(5)
            pe("s_waitcnt vmcnt(0)")
            a.stamp(6)
            if stamps == 2: a.dbg_stamps(7, 36)
            else: a.dump_stamps(7, 36, vtmp=0)
        pe("s_endpgm")
    a.lab("L_done")
    e("s_endpgm")
    a.descriptor(KN, 256, 102, 256)
    a.write(path)

if __name__ == "__main__":
    kw = dict(s.split("=") for s in sys.argv[2:])
    for k in kw:
        if k in ("sl", "kst", "xo", "ro"): pass
        elif k in ("spol", "qpol", "xpol", "tpol"): kw[k] = kw[k].replace("+", " ").replace("plain", "")
        else: kw[k] = int(kw[k])
    build(sys.argv[1], **kw)
```

```python
import sys
from asmlib import *

V_Q, V_XD, V_OUT, V_WR, V_WA0, V_WA1, V_TAB = 1, 2, 3, 4, 5, 6, 7
V_X = 8
V_T0, V_T1 = 14, 15
V_QJ = [1, 109, 110, 111]
V_S, V_NZ, V_PK = 32, 36, 40
V_D, V_E, V_O = 48, 52, 56
V_A1 = 60
V_W = 112
S_X, S_Q, S_S, S_Z, S_O, S_WS = 16, 20, 24, 28, 32, 36
S_P = 40
S_INV = 49
S_BASE, S_END, S_SPAN, S_B2, S_W3L, S_NB, S_W = 50, 51, 52, 53, 54, 55, 56
S_T, S_U, S_QO, S_EO = 57, 58, 59, 14
S_DJ = 60
S_M8, S_M8N, S_M4, S_M4N = 90, 92, 94, 96
S_PAN, S_CH, S_JH, S_RH, S_ROT = 3, 98, 99, 100, 101

class Prog:
    def __init__(self, a):
        self.a = a; self.vm = []; self.lg = []; self.vmdone = 0; self.lgdone = 0; self.n = 0
        self.lastmf = {}
    def e(self, s):
        self.a.e(s); self.n += 1
    def vmem(self, s, tag): self.e(s); self.vm.append(tag)
    def lds(self, s, tag): self.e(s); self.lg.append(tag)
    def _cnt(self, lst, done, pred):
        for i in range(len(lst)-1, done-1, -1):
            if pred(lst[i]): return i
        return -1
    def wait(self, vm=None, lg=None):
        parts = []
        if vm is not None:
            idx = self._cnt(self.vm, self.vmdone, vm)
            if idx >= 0:
                n = min(len(self.vm)-1-idx, 63)
                parts.append("vmcnt(%d)" % n); self.vmdone = len(self.vm) - n
        if lg is not None:
            idx = self._cnt(self.lg, self.lgdone, lg)
            if idx >= 0:
                n = min(len(self.lg)-1-idx, 15)
                parts.append("lgkmcnt(%d)" % n); self.lgdone = len(self.lg) - n
        if parts: self.e("s_waitcnt " + " ".join(parts))
    def lg_all(self):
        self.e("s_waitcnt lgkmcnt(0)"); self.lgdone = len(self.lg)
    def mfma(self, d, x, w, first):
        c = "0" if first else "v[%d:%d]" % (d, d+3)
        if self.sw: x, w = w, x
        self.e("v_mfma_f32_16x16x32_bf16 v[%d:%d], v[%d:%d], v[%d:%d], %s" % (d, d+3, x, x+3, w, w+3, c))
        self.lastmf[d] = self.n
    def need_mfma_done(self, d):
        if d in self.lastmf:
            gap = self.n - self.lastmf[d]
            if gap < 8: self.e("s_nop %d" % (8-gap-1))

def build(path, b1=12, D=3, n0=1, spol="nt", stamps=0, krot=1, rrot=4, dq0=0, dq1=0, per1=2, per2=2, cap=12, prio=0, pf=3,
          ld0=0, ldm=2, n1=2, epd=4, smid=4, qpol="", xpol="", abl=0, trace=-1, trh=0, tstep=4, early=0, qa=0, fseg=0, r9=0, hw=0, hw1=-1, tabe=0, xs=0, xs2=0, wst=1, cyc=0, sl="", p2s=0, wdel=0, epi=0, stc=1, pt1=0, pt2=0, pth=1, sk12=0, od=0, od2=-1, ipe=0, er=0, pk=0, sw=0, kst="", plm=1, xl0=-1, e7=-1, e8=-1, xfirst=0, pst=-1, pro=0, mid=3, mid0=2, tl=0, tg=128, tw=4, th=1, tp=-1, tpos=0, tn=1, tpol="", xd0=0, t0=2, xo="", ro="", fm=0, fck=9):
    a = Asm(); e = a.e
    SL = [int(x) for x in sl.split("_")] if sl else []
    if cyc: a.stamp = lambda i, base=70: a.e("s_memtime s[%d:%d]" % (base+2*i, base+2*i+1))
    KN = NAME + "_kernel"
    P1 = b1 // 2
    assert b1 % 2 == 0 and (P1 <= 6 or (P1 == 7 and ipe and pf <= 3))
    V_A1 = 48 if P1 == 7 else 60
    assert pf <= 3 or (ipe and pf <= 6)
    if od2 < 0: od2 = od
    assert (od > 0) == (od2 > 0) and (not od or pf % 2 == 1)
    XF = [16, 20, 24, 28, 48, 52, 56][:pf+1]
    a.header(["; @launch grid=(256,1,1) block=(512,1,1) lds=%d" % (160*1024)])
    a.kernel_start(KN)
    TR = [70, 72, 74, 76, 78, 80, 82, 84, 86, 88, 4, 6, 8, 10, 12]
    if trace >= 0: stamps = 3
    PS = [70, 72, 74, 76, 78, 80, 82, 84, 86, 88, 4, 6, 8, 10, 12]
    psn = [0]
    def pstamp(rh_=None):
        if pst < 0 or (rh_ is not None and rh_ != pst): return
        e("s_memrealtime s[%d:%d]" % (PS[psn[0]], PS[psn[0]]+1)); psn[0] += 1
    if pst >= 0: stamps = 4
    pstamp()
    if stamps and stamps < 3: a.stamp(0)
    e("s_cmp_ge_u32 s2, 256"); e("s_cbranch_scc1 L_done")
    L, I, G = 20, 21, 22
    def late_scalars():
        pe_ = e
        pe_("s_cmp_lt_u32 s%d, 2" % S_R); pe_("s_cselect_b32 s%d, 19, 18" % S_NB)
        pe_("v_and_b32 v%d, 15, v0" % I)
        pe_("s_min_u32 s100, s%d, 2" % S_R); pe_("s_mul_i32 s%d, s%d, 18" % (S_T, S_R)); pe_("s_add_u32 s100, s100, s%d" % S_T)
        pe_("v_bfe_u32 v%d, v0, 4, 2" % G)
        pe_("s_add_u32 s%d, s100, s%d" % (S_T, S_NB)); pe_("s_mul_i32 s%d, s%d, 18432" % (S_END, S_T))
        pe_("s_mul_i32 s%d, s%d, 18432" % (S_SPAN, S_NB))
        pe_("s_and_b32 s98, s%d, 1" % S_W)
        pe_("s_bfe_u32 s99, s%d, 0x10001" % S_W)
        pe_("s_lshl_b32 s%d, s98, 2" % S_T); pe_("v_add_u32 v23, s%d, v%d" % (S_T, G)); pe_("v_and_b32 v24, 7, v%d" % L); pe_("v_xor_b32 v23, v23, v24")
        if ro:
            pe_("s_and_b32 s%d, s2, 7" % S_T); pe_("s_lshl_b32 s%d, s%d, 2" % (S_T, S_T)); pe_("s_lshr_b32 s%d, 0x%x, s%d" % (S_T, sum(int(ch, 16) << (4*i) for i, ch in enumerate(ro)), S_T)); pe_("s_and_b32 s%d, s%d, 15" % (S_T, S_T))
            pe_("s_add_u32 s100, s100, s%d" % S_T)
        elif rrot:
            pe_("s_sub_u32 s%d, s%d, 5" % (S_T, S_PL)); pe_("s_cmp_ge_u32 s%d, 5" % S_PL); pe_("s_cselect_b32 s%d, s%d, s%d" % (S_T, S_T, S_PL)); pe_("s_mul_i32 s%d, s%d, %d" % (S_T, S_T, rrot))
            pe_("s_add_u32 s100, s100, s%d" % S_T)
        pe_("v_lshrrev_b32 v24, 3, v%d" % L); pe_("v_mul_u32_u24 v24, 1152, v24"); pe_("v_lshl_add_u32 v%d, v23, 4, v24" % V_XD)
        pe_("s_mul_i32 s%d, s100, 18432" % S_BASE)
        pe_("s_mul_i32 s%d, s98, 9216" % S_T); pe_("v_add_u32 v%d, s%d, v%d" % (V_XD, S_T, V_XD))
        pe_("s_mul_i32 s%d, s99, 18432" % S_T); pe_("s_add_u32 s%d, s%d, s%d" % (S_B2, S_BASE, S_T))
        pe_("s_lshl_b32 s%d, s%d, 10" % (S_W3L, S_W)); pe_("s_and_b32 s%d, s%d, 0xc00" % (S_W3L, S_W3L))
        pe_("s_mov_b32 s%d, %d" % (S_X+2, M*K*2)); pe_("s_mov_b32 s%d, 0x00020000" % (S_X+3))
    def late2():
        for t in range(1, 9):
            e("s_add_u32 s%d, s%d, 128" % (S_P+t, S_P+t-1)); e("s_cmp_eq_u32 s%d, 1152" % (S_P+t)); e("s_cselect_b32 s%d, 0, s%d" % (S_P+t, S_P+t))
        e("s_mov_b32 s%d, %d" % (S_O+2, M*N*2)); e("s_mov_b32 s%d, 0x00020000" % (S_O+3))
        if stamps:
            e("s_mov_b32 s38, %s" % ("256" if stamps == 2 else "0x10000000")); e("s_mov_b32 s39, 0x00020000")
    def tab_addr():
        e("v_lshrrev_b32 v23, 5, v0"); e("v_add_u32 v23, s101, v23"); e("v_subrev_u32 v24, 9, v23"); e("v_min_u32 v23, v23, v24")
        e("v_bfe_u32 v24, v0, 4, 1"); e("v_lshl_add_u32 v23, v23, 1, v24"); e("v_mul_u32_u24 v23, 9216, v23")
        e("v_and_b32 v24, 15, v0"); e("v_lshl_add_u32 v23, v24, 4, v23"); e("s_lshl_b32 s%d, s3, 8" % S_T); e("v_add_u32 v%d, s%d, v23" % (V_T0, S_T))
        for sr in (S_S, S_Z):
            e("s_mov_b32 s%d, %d" % (sr+2, 18*N*2)); e("s_mov_b32 s%d, 0x00020000" % (sr+3))
    if pro:
        assert kst and plm == 1 and not early
        S_R, S_PL, S_NC = 15, 13, 12
        if pst >= 0 and tl: PS.remove(4)
        if pst >= 0: PS.remove(12)
        e("s_load_dwordx2 s[%d:%d], s[0:1], 8" % (S_Q, S_Q+1))
        e("s_load_dwordx2 s[%d:%d], s[0:1], 16" % (S_S, S_S+1))
        e("s_load_dwordx2 s[%d:%d], s[0:1], 24" % (S_Z, S_Z+1))
        e("s_load_dwordx2 s[%d:%d], s[0:1], 0" % (S_X, S_X+1))
        e("s_load_dwordx2 s[%d:%d], s[0:1], 32" % (S_O, S_O+1))
        if stamps: e("s_load_dwordx2 s[36:37], s[0:1], %d" % (40 if stamps == 2 else 48))
        e("v_lshrrev_b32 v1, 6, v0")
        e("s_and_b32 s3, s2, 1"); e("s_lshl_b32 s3, s3, 5"); e("s_lshr_b32 s98, s2, 3"); e("s_add_u32 s3, s3, s98")
        e("v_readfirstlane_b32 s%d, v1" % S_W)
        e("s_cmp_eq_u32 s3, 63"); e("s_cbranch_scc1 L_done")
        e("v_and_b32 v%d, 63, v0" % L)
        e("s_mul_i32 s%d, s3, 37" % S_PL); e("s_lshr_b32 s%d, s%d, 8" % (S_PL, S_PL))
        e("v_lshrrev_b32 v23, 3, v%d" % L)
        e("s_mul_i32 s%d, s%d, 7" % (S_R, S_PL)); e("s_sub_u32 s%d, s3, s%d" % (S_R, S_R))
        e("v_mul_u32_u24 v23, %d, v23" % (4*18432))
        e("s_bfe_u32 s3, s2, 0x20001"); e("s_mul_i32 s3, s3, 9"); e("s_add_u32 s3, s3, s%d" % S_PL)
        e("v_and_b32 v24, 7, v0")
        cst = sum(int(ch) << (4*i) for i, ch in enumerate(kst))
        e("s_lshl_b32 s101, s%d, 2" % S_R); e("s_lshr_b32 s101, 0x%x, s101" % cst); e("s_and_b32 s101, s101, 15")
        e("v_lshl_add_u32 v23, v24, 4, v23")
        if xo:
            e("s_and_b32 s100, s2, 7"); e("s_lshl_b32 s100, s100, 2"); e("s_lshr_b32 s100, 0x%x, s100" % sum(int(ch) << (4*i) for i, ch in enumerate(xo))); e("s_and_b32 s100, s100, 15")
            e("s_add_u32 s101, s101, s100")
        else: e("s_add_u32 s101, s101, s%d" % S_PL)
        e("s_sub_u32 s100, s101, 9"); e("s_min_u32 s101, s100, s101")
        e("s_lshl_b32 s%d, s101, 7" % S_P)
        e("s_lshr_b32 s100, s%d, 2" % S_W)
        e("s_mul_i32 s%d, s100, %d" % (S_T, 32*18432)); e("s_lshl_b32 s%d, s3, 9" % S_U); e("s_add_u32 s%d, s%d, s%d" % (S_T, S_T, S_U))
        e("s_and_b32 s%d, s%d, 3" % (S_U, S_W)); e("s_lshl_b32 s%d, s%d, 7" % (S_U, S_U)); e("s_add_u32 s%d, s%d, s%d" % (S_T, S_T, S_U))
        e("v_add_u32 v%d, s%d, v23" % (V_QJ[0], S_T))
        e("s_mov_b32 s%d, %d" % (S_Q+2, K*N*4)); e("s_mov_b32 s%d, 0x00020000" % (S_Q+3))
        for j in range(1, 4): e("v_add_u32 v%d, %d, v%d" % (V_QJ[j], 18432*j, V_QJ[0]))
        tab_addr()
        pstamp()
        e("s_cmp_lg_u32 s100, 0"); e("s_cbranch_scc1 L_rh1")
    else:
        e("s_load_dwordx2 s[%d:%d], s[0:1], 16" % (S_S, S_S+1))
        e("s_load_dwordx2 s[%d:%d], s[0:1], 24" % (S_Z, S_Z+1))
        e("s_load_dwordx2 s[%d:%d], s[0:1], 8" % (S_Q, S_Q+1))
        e("s_load_dwordx2 s[%d:%d], s[0:1], 0" % (S_X, S_X+1))
        e("s_load_dwordx2 s[%d:%d], s[0:1], 32" % (S_O, S_O+1))
        if stamps: e("s_load_dwordx2 s[36:37], s[0:1], %d" % (40 if stamps == 2 else 48))
        e("s_and_b32 s3, s2, 1"); e("s_lshl_b32 s3, s3, 5"); e("s_lshr_b32 s98, s2, 3"); e("s_add_u32 s3, s3, s98")
        e("s_cmp_eq_u32 s3, 63"); e("s_cbranch_scc1 L_done")
        e("v_lshrrev_b32 v1, 6, v0")
        e("s_mul_i32 s98, s3, 37"); e("s_lshr_b32 s98, s98, 8")
        e("v_readfirstlane_b32 s%d, v1" % S_W)
        e("s_mul_i32 s99, s98, 7"); e("s_sub_u32 s99, s3, s99")
        e("s_bfe_u32 s3, s2, 0x20001"); e("s_mul_i32 s3, s3, 9"); e("s_add_u32 s3, s3, s98")
        e("s_cmp_lt_u32 s99, 2"); e("s_cselect_b32 s%d, 19, 18" % S_NB)
        e("s_min_u32 s100, s99, 2"); e("s_mul_i32 s101, s99, 18"); e("s_add_u32 s100, s100, s101")
        e("s_add_u32 s101, s100, s%d" % S_NB); e("s_mul_i32 s%d, s101, 18432" % S_END)
        e("s_mul_i32 s%d, s%d, 18432" % (S_SPAN, S_NB))
        if rrot:
            e("s_sub_u32 s101, s98, 5"); e("s_cmp_ge_u32 s98, 5"); e("s_cselect_b32 s101, s101, s98"); e("s_mul_i32 s101, s101, %d" % rrot)
            e("s_add_u32 s100, s100, s101")
        e("s_mul_i32 s%d, s100, 18432" % S_BASE)
        if early:
            e("s_add_u32 s101, s99, s3"); e("s_mul_i32 s100, s101, 37"); e("s_lshr_b32 s100, s100, 8"); e("s_mul_i32 s100, s100, 7")
            e("s_sub_u32 s101, s101, s100"); e("s_add_u32 s101, s101, 2")
            e("s_mov_b32 s%d, 0" % S_P); e("s_movk_i32 s%d, 128" % (S_P+1))
            for t in range(2, 8):
                e("s_cmp_le_u32 s101, %d" % t); e("s_cselect_b32 s%d, %d, %d" % (S_P+t, 64*(t+1), 64*t) if 0 else "s_cselect_b32 s%d, 128, 0" % (S_P+t)); e("s_add_u32 s%d, s%d, %d" % (S_P+t, S_P+t, 128*t))
            e("s_lshl_b32 s%d, s101, 7" % (S_P+8))
        else:
          if kst:
            cst = sum(int(ch) << (4*i) for i, ch in enumerate(kst))
            e("s_lshl_b32 s101, s99, 2"); e("s_lshr_b32 s101, 0x%x, s101" % cst); e("s_and_b32 s101, s101, 15")
            pc = sum(((plm*i) % 9) << (4*i) for i in range(8))
            e("s_lshl_b32 s100, s98, 2"); e("s_lshr_b32 s100, 0x%x, s100" % pc); e("s_and_b32 s100, s100, 15"); e("s_cmp_eq_u32 s98, 8"); e("s_cselect_b32 s100, %d, s100" % ((plm*8) % 9))
            e("s_add_u32 s101, s101, s100")
            e("s_sub_u32 s100, s101, 9"); e("s_cmp_ge_u32 s101, 9"); e("s_cselect_b32 s101, s100, s101")
          elif krot == 3:
            e("s_mul_i32 s101, s99, 11"); e("s_lshr_b32 s101, s101, 5"); e("s_mul_i32 s101, s101, 3"); e("s_sub_u32 s101, s99, s101"); e("s_mul_i32 s101, s101, 3"); e("s_add_u32 s101, s101, s98")
            e("s_sub_u32 s100, s101, 9"); e("s_cmp_ge_u32 s101, 9"); e("s_cselect_b32 s101, s100, s101")
          elif krot == 4:
            e("s_and_b32 s101, s99, 6"); e("s_add_u32 s101, s101, s98")
            e("s_sub_u32 s100, s101, 9"); e("s_cmp_ge_u32 s101, 9"); e("s_cselect_b32 s101, s100, s101")
          elif krot == 5:
            e("s_and_b32 s101, s99, 6"); e("s_cmp_eq_u32 s99, 5"); e("s_cselect_b32 s101, 6, s101"); e("s_cmp_eq_u32 s99, 6"); e("s_cselect_b32 s101, 8, s101"); e("s_add_u32 s101, s101, s98")
            e("s_sub_u32 s100, s101, 9"); e("s_cmp_ge_u32 s101, 9"); e("s_cselect_b32 s101, s100, s101")
          elif krot == 2:
            e("s_mov_b32 s101, s98")
          elif krot:
            e("s_lshl_b32 s101, s98, 1"); e("s_add_u32 s101, s101, s99")
            if r9:
                e("s_cmp_ge_u32 s99, 4"); e("s_addc_u32 s101, s101, 0")
            for _ in range(2):
                e("s_sub_u32 s100, s101, 9"); e("s_cmp_ge_u32 s101, 9"); e("s_cselect_b32 s101, s100, s101")
          else:
            e("s_mov_b32 s101, 0")
          e("s_lshl_b32 s%d, s101, 7" % S_P)
          for t in range(1, 9):
            e("s_add_u32 s%d, s%d, 128" % (S_P+t, S_P+t-1)); e("s_cmp_eq_u32 s%d, 1152" % (S_P+t)); e("s_cselect_b32 s%d, 0, s%d" % (S_P+t, S_P+t))
        for (sr, nb_) in ((S_S, 18*N*2), (S_Z, 18*N*2), (S_Q, K*N*4), (S_X, M*K*2), (S_O, M*N*2)):
            e("s_mov_b32 s%d, %d" % (sr+2, nb_)); e("s_mov_b32 s%d, 0x00020000" % (sr+3))
        if stamps:
            e("s_mov_b32 s38, %s" % ("256" if stamps == 2 else "0x10000000")); e("s_mov_b32 s39, 0x00020000")
        L, I, G = 20, 21, 22
        e("v_and_b32 v%d, 63, v0" % L); e("v_and_b32 v%d, 15, v0" % I); e("v_bfe_u32 v%d, v0, 4, 2" % G)
        e("s_and_b32 s98, s%d, 1" % S_W)
        e("s_bfe_u32 s99, s%d, 0x10001" % S_W)
        e("s_lshr_b32 s100, s%d, 2" % S_W)
        if early:
            e("v_lshrrev_b32 v23, 5, v0"); e("v_mov_b32 v25, s101"); e("v_cmp_le_u32 vcc, s101, v23"); e("v_add_u32 v24, 1, v23"); e("s_nop 0")
            e("v_cndmask_b32 v24, v23, v24, vcc"); e("v_cmp_eq_u32 vcc, 8, v23"); e("s_nop 1"); e("v_cndmask_b32 v23, v24, v25, vcc")
        else:
            e("v_lshrrev_b32 v23, 5, v0"); e("v_add_u32 v23, s101, v23"); e("v_subrev_u32 v24, 9, v23"); e("v_min_u32 v23, v23, v24")
        e("v_and_b32 v24, 1, v%d" % G); e("v_lshl_add_u32 v23, v23, 1, v24"); e("v_mul_u32_u24 v23, 9216, v23")
        e("v_lshl_add_u32 v23, v%d, 4, v23" % I); e("s_lshl_b32 s%d, s3, 8" % S_T); e("v_add_u32 v%d, s%d, v23" % (V_T0, S_T))
        e("s_mul_i32 s%d, s100, %d" % (S_T, 32*18432)); e("s_lshl_b32 s%d, s3, 9" % S_U); e("s_add_u32 s%d, s%d, s%d" % (S_T, S_T, S_U))
        e("s_and_b32 s%d, s%d, 3" % (S_U, S_W)); e("s_lshl_b32 s%d, s%d, 7" % (S_U, S_U)); e("s_add_u32 s%d, s%d, s%d" % (S_T, S_T, S_U))
        e("v_lshrrev_b32 v23, 3, v%d" % L); e("v_mul_u32_u24 v23, %d, v23" % (4*18432)); e("v_and_b32 v24, 7, v%d" % L)
        e("v_lshl_add_u32 v23, v24, 4, v23"); e("v_add_u32 v%d, s%d, v23" % (V_QJ[0], S_T))
        for j in range(1, 4): e("v_add_u32 v%d, %d, v%d" % (V_QJ[j], 18432*j, V_QJ[0]))
        e("s_lshl_b32 s%d, s98, 2" % S_T); e("v_add_u32 v23, s%d, v%d" % (S_T, G)); e("v_and_b32 v24, 7, v%d" % L); e("v_xor_b32 v23, v23, v24")
        e("v_lshrrev_b32 v24, 3, v%d" % L); e("v_mul_u32_u24 v24, 1152, v24"); e("v_lshl_add_u32 v%d, v23, 4, v24" % V_XD)
        e("s_mul_i32 s%d, s98, 9216" % S_T); e("v_add_u32 v%d, s%d, v%d" % (V_XD, S_T, V_XD))
        e("s_mul_i32 s%d, s99, 18432" % S_T); e("s_add_u32 s%d, s%d, s%d" % (S_B2, S_BASE, S_T))
        e("s_lshl_b32 s%d, s%d, 10" % (S_W3L, S_W)); e("s_and_b32 s%d, s%d, 0xc00" % (S_W3L, S_W3L))
        pstamp()
        e("s_cmp_lg_u32 s100, 0"); e("s_cbranch_scc1 L_rh1")


    TAB = 0
    WS = [5*4096, 9*4096]
    frag_list = [(j, t, e_) for t in range(9) for j in range(P1) for e_ in range(2)] + [(j, t, e_) for j in range(P1, 10) for t in range(9) for e_ in range(2)]
    fidx = {k: i for i, k in enumerate(frag_list)}
    NE = 9 + (10 - P1)
    first = [fidx[(0, t, 0)] for t in range(9)] + [fidx[(j, 0, 0)] for j in range(P1, 10)]
    bpos = [0] + [first[ep] - pf for ep in range(1, NE)]
    def ep_of(f): return max(ep for ep in range(NE) if bpos[ep] <= f)
    need = {(j, t): (t if j < P1 else 9 + j - P1) for j in range(10) for t in range(9)}
    free_at = {g: -99 for g in range(13, 40)}
    for g in range(0, 5): free_at[g] = 8
    for g in range(5, 9): free_at[g] = 9
    for g in range(9, 13): free_at[g] = 8
    order = []
    for t in range(9 + qa if qa else 0):
        if t - qa >= 0: order += [("x", j, t - qa) for j in range(P1)]
        if t < 9: order.append(("q", t))
    if qa:
        order.remove(("q", 0)); order.insert(0, ("q", 0))
        i0 = [("x", j, 0) for j in range(P1)]
        for it in i0: order.remove(it)
        order[1:1] = i0
    for t in range(0 if qa else 9):
        if t == 2 and early:
            order.append(("q", 8))
            if early >= 2: order += [("x", j, 8) for j in range(P1)]
        if not (early and t == 8): order.append(("q", t))
        if not (early >= 2 and t == 8): order += [("x", j, t) for j in range(P1)]
    order += [("x", j, t) for j in range(P1, 10) for t in range(9)]
    def pos_of(it):
        t = it[-1]
        if qa: return t if it[0] == "x" else (0 if t == 0 else max(t - qa, 1 if n0 == 1 else 0))
        if not early: return t
        if t == 8 and (it[0] == "q" or early >= 2): return 2
        return t if t < 2 else t + 1
    issue = {}; gran = {}
    pend = list(order)
    for ep in [-2, -1] + list(range(NE)):
        n = 0
        while pend:
            it = pend[0]
            step = pos_of(it) if (it[0] == "q" or it[1] < P1) else 99
            lim = n0 if ep == -2 else (n1 if ep == -1 else min(ep + D + 1 + (1 if early else 0), n1 + 2*(ep+1)))
            if step < 99 and step >= lim: break
            if step == 99 and (lim < 9 or n >= cap or ep < p2s): break
            if it[0] == "x":
                cands = sorted(g for g in free_at if free_at[g] <= ep)
                if not cands: break
                g = cands[0]; gran[it[1:]] = g
                free_at[g] = ep_of(fidx[(it[1], it[2], 1)]) + 1
                assert ep < need[it[1:]], (it, ep)
                n += 1
            else:
                assert ep < it[1] - 1 or it[1] == 0 or (it[1] == 1 and ep <= -1), (it, ep)
            issue[it] = ep; pend.pop(0)
    assert not pend
    if stamps or 1:
        sys.stderr.write("issue: " + " ".join("%d:[%s]" % (ep, ",".join(("q%d" % k[1] if k[0] == "q" else "%d.%d" % k[1:]) for k in order if issue[k] == ep)) for ep in [-2, -1] + list(range(NE))) + "\n")

    def xowner(j, t):
        ep = issue[("x", j, t)]
        if ep < 0: return (j + t) % 2
        lst = [it for it in order if it[0] == "x" and issue[it] == ep]
        i = lst.index(("x", j, t)); n = len(lst)
        x_ = xs if ep < 9 else xs2
        if x_ == 0: return (j + t) % 2
        return 0 if ((i+1)*x_)//6 != (i*x_)//6 else 1
    def xaddr(off, e_):
        return V_X + 2*(off >> 16) + e_, off & 0xffff

    for rh in range(2):
        p = Prog(a); pe = p.e; p.sw = sw
        if rh: a.lab("L_rh1")
        if prio and rh == 1: pe("s_setprio %d" % prio)
        dj_done = set()
        def mk_dj(j):
            if j in dj_done: return
            dj_done.add(j)
            d = S_DJ + j
            pe("s_add_u32 s%d, s%d, %d" % (d, S_B2, 2*j*18432)); pe("s_cmp_ge_u32 s%d, s%d" % (d, S_END))
            pe("s_cselect_b32 s%d, s%d, 0" % (S_U, S_SPAN)); pe("s_sub_u32 s%d, s%d, s%d" % (d, d, S_U))
            if j == 9:
                pe("s_add_u32 s%d, s%d, 18" % (S_U, S_JH)); pe("s_cmp_ge_u32 s%d, s%d" % (S_U, S_NB)); pe("s_cselect_b32 s%d, 0x40000000, s%d" % (d, d))
        def load_ops(ep):
            ops = []
            for it in order:
                if issue[it] != ep: continue
                if it[0] == "q":
                    t = it[1]
                    if (abl & 4) and t >= 1: continue
                    for j in range(4):
                        def f(j=j, t=t):
                            if j == 0: pe("s_mul_i32 s%d, s%d, 9216" % (S_QO, S_P+t))
                            r = V_W + 16*t + 4*j
                            p.vmem("buffer_load_dwordx4 v[%d:%d], v%d, s[%d:%d], s%d offen %s" % (r, r+3, V_QJ[j], S_Q, S_Q+3, S_QO, qpol), ("q", t, j))
                        ops.append(f)
                else:
                    j, t = it[1:]
                    if xowner(j, t) != rh: continue
                    if (abl & 8) and t >= 1 and j < P1: continue
                    if (abl & 2048) and j >= P1: continue
                    def f(j=j, t=t):
                        mk_dj(j)
                        pe("s_add_u32 m0, s%d, %d" % (S_W3L, gran[(j, t)]*4096))
                        pe("s_add_u32 s%d, s%d, s%d" % (S_T, S_DJ+j, S_P+t))
                        p.vmem("buffer_load_dwordx4 v%d, s[%d:%d], s%d offen lds %s" % (V_XD, S_X, S_X+3, S_T, xpol), ("x", need[(j, t)]))
                    ops.append(f)
            if tl and rh == th:
                ks_ = sorted(set(int(ch) for ch in kst)); ncl = [((ks_[(i + 1) % len(ks_)] - ks_[i] - 1) % 9) + 1 for i in range(len(ks_))]
                ts = [t for t in range(t0, max(ncl)) if (max(tp, (t - tl) // tn) if t - tl >= 0 else tp) == ep]
                tops = []
                for t in ts:
                    def f(t=t):
                        pe("s_mul_i32 s%d, s%d, 9216" % (S_U, S_P+t))
                        if t >= min(ncl): pe("s_cmp_gt_u32 s%d, %d" % (S_NC, t)); pe("s_cselect_b32 s%d, s%d, 0x40000000" % (S_U, S_U))
                        p.vmem("buffer_load_dword v%d, v%d, s[%d:%d], s%d offen %s" % (V_T0, V_WA1, S_Q, S_Q+3, S_U, tpol), ("tch", t))
                    tops.append(f)
                k_ = len(ops) if (tpos == 0 or ep < 0) else tpos - 1
                ops = ops[:k_] + tops + ops[k_:]
            return ops
        def touch_addr():
            n_ = 64*512 // tg; sh = 2 if tg == 128 else 3
            ks = [int(ch) for ch in kst]; st = sorted(set(ks))
            rank = [ks[:r].count(ks[r]) for r in range(7)]
            cw4 = [-(-n_ // (ks.count(k_) * tw * 4)) for k_ in ks]
            ncs = [((st[(st.index(k_) + 1) % len(st)] - k_ - 1) % 9) + 1 for k_ in ks]
            assert max(cw4) <= 16
            nib = lambda l_: sum(v << (4*i) for i, v in enumerate(l_))
            pe("s_lshl_b32 s%d, s%d, 2" % (S_U, S_R))
            pe("s_lshr_b32 s%d, 0x%x, s%d" % (S_NC, nib(ncs), S_U)); pe("s_and_b32 s%d, s%d, 15" % (S_NC, S_NC))
            pe("s_lshr_b32 s4, 0x%x, s%d" % (nib([c - 1 for c in cw4]), S_U)); pe("s_and_b32 s4, s4, 15"); pe("s_lshl_b32 s4, s4, 2"); pe("s_add_u32 s4, s4, 4")
            pe("s_lshr_b32 s5, 0x%x, s%d" % (nib(rank), S_U)); pe("s_and_b32 s5, s5, 15"); pe("s_mul_i32 s5, s5, %d" % tw)
            pe("s_and_b32 s%d, s%d, 3" % (S_T, S_W)); pe("s_add_u32 s5, s5, s%d" % S_T); pe("s_mul_i32 s5, s5, s4")
            pe("s_cmp_lt_u32 s%d, %d" % (S_T, tw)); pe("s_cselect_b32 s4, s4, 0")
            pe("v_add_u32 v17, s5, v%d" % L)
            pe("v_lshrrev_b32 v18, %d, v17" % sh); pe("v_mul_u32_u24 v18, 18432, v18"); pe("v_and_b32 v19, %d, v17" % ((1 << sh) - 1))
            pe("v_lshl_add_u32 v18, v19, %d, v18" % (9 - sh)); pe("s_lshl_b32 s%d, s3, 9" % S_T); pe("v_add_u32 v18, s%d, v18" % S_T)
            pe("v_mov_b32 v19, 0x40000000")
            pe("v_cmp_gt_u32 vcc, s4, v%d" % L); pe("s_movk_i32 s%d, %d" % (S_U, n_)); pe("s_nop 0"); pe("v_cndmask_b32 v18, v19, v18, vcc")
            pe("v_cmp_gt_u32 vcc, s%d, v17" % S_U); pe("s_nop 1"); pe("v_cndmask_b32 v%d, v19, v18, vcc" % V_WA1)
        if pro:
            if rh == 1:
                pe("s_cmp_eq_u32 s%d, 4" % S_W); pe("s_cselect_b32 exec_lo, -1, 0"); pe("s_mov_b32 exec_hi, 0")
            pstamp(rh)
            pe("s_waitcnt lgkmcnt(0)")
            pstamp(rh)
            tb = 48 if rh else 24
            p.vmem("buffer_load_dwordx4 v[%d:%d], v%d, s[%d:%d], 0 offen" % (tb, tb+3, V_T0, S_S, S_S+3), "tab")
            p.vmem("buffer_load_dwordx4 v[%d:%d], v%d, s[%d:%d], 0 offen" % (tb+4, tb+7, V_T0, S_Z, S_Z+3), "tab")
            if rh == 1: pe("s_mov_b64 exec, -1")
            l0 = load_ops(-2)
            for f in l0[:4]: f()
            sv_out = len(a.out)
            late_scalars()
            a.out[sv_out:] = [l.replace("v23", "v16").replace("v24", "v17") for l in a.out[sv_out:]]
            nx0 = len([1 for it in order if issue[it] == -2 and it[0] == "x" and xowner(it[1], it[2]) == rh])
            xlate = []
            if xd0 & (1 << rh): xlate = l0[4:4+nx0]
            else:
                for f in l0[4:4+nx0]: f()
            pstamp(rh)
            late2()
            if tl and rh == th: touch_addr()
            if not xlate:
                for f in l0[4+nx0:]: f()
        else:
            for it in order:
                if issue[it] == -2 and it[0] == "x" and xowner(it[1], it[2]) == rh: mk_dj(it[1])
            if rh == 1:
                pe("v_mov_b32 v%d, 0x7fffffff" % V_T1); pe("v_cmp_gt_u32 vcc, 288, v0"); pe("s_nop 1"); pe("v_cndmask_b32 v%d, v%d, v%d, vcc" % (V_T0, V_T1, V_T0))
            pstamp(rh)
            pe("s_waitcnt lgkmcnt(0)")
            pstamp(rh)
            p.vmem("buffer_load_dwordx4 v[24:27], v%d, s[%d:%d], 0 offen" % (V_T0, S_S, S_S+3), "tab")
            p.vmem("buffer_load_dwordx4 v[28:31], v%d, s[%d:%d], 0 offen" % (V_T0, S_Z, S_Z+3), "tab")
            for f in load_ops(-2): f()
            if stamps and stamps < 3 and not SL: a.stamp(1)
            pstamp(rh)
        pe("v_lshrrev_b32 v16, 2, v%d" % L); pe("v_mul_u32_u24 v16, 9216, v16"); pe("v_and_b32 v17, 3, v%d" % L); pe("v_lshl_add_u32 v16, v17, 4, v16")
        pe("s_lshr_b32 s%d, s%d, 4" % (S_T, S_W3L)); pe("s_lshl_b32 s%d, s3, 8" % S_U); pe("s_add_u32 s%d, s%d, s%d" % (S_T, S_T, S_U)); pe("v_add_u32 v%d, s%d, v16" % (V_OUT, S_T))
        if sw:
            pe("v_mul_u32_u24 v16, 9216, v%d" % I); pe("v_lshl_add_u32 v16, v%d, 4, v16" % G); pe("v_add_u32 v%d, s%d, v16" % (V_OUT, S_T))
        if epi == 1:
            pe("v_and_b32 v16, 3, v%d" % I); pe("v_lshlrev_b32 v16, 4, v16"); pe("v_lshrrev_b32 v17, 3, v%d" % I); pe("v_lshl_add_u32 v16, v17, 3, v16")
            pe("v_bfe_u32 v17, v%d, 2, 1" % I); pe("v_lshl_add_u32 v16, v17, 2, v16"); pe("v_mul_u32_u24 v17, %d, v%d" % (4*9216, G)); pe("v_add_u32 v16, v16, v17")
            pe("v_add_u32 v%d, s%d, v16" % (V_E, S_T))
            for r in range(1, 4): pe("v_add_u32 v%d, %d, v%d" % (V_E+r, 9216*r, V_E))
        if fseg == 128:
            pe("v_lshrrev_b32 v16, 3, v%d" % L); pe("v_mul_u32_u24 v16, 9216, v16"); pe("v_and_b32 v17, 7, v%d" % L); pe("v_lshl_add_u32 v16, v17, 4, v16")
            pe("s_and_b32 s%d, s%d, 1" % (S_T, S_W)); pe("s_lshl_b32 s%d, s%d, 7" % (S_T, S_T)); pe("s_add_u32 s%d, s%d, s%d" % (S_U, S_T, S_U))
            pe("s_bfe_u32 s%d, s%d, 0x10001" % (S_T, S_W)); pe("s_mul_i32 s%d, s%d, %d" % (S_T, S_T, 8*9216)); pe("s_add_u32 s%d, s%d, s%d" % (S_T, S_T, S_U)); pe("v_add_u32 v%d, s%d, v16" % (V_OUT, S_T))
        if fseg == 256:
            pe("v_lshrrev_b32 v16, 4, v%d" % L); pe("v_mul_u32_u24 v16, 9216, v16"); pe("v_and_b32 v17, 15, v%d" % L); pe("v_lshl_add_u32 v16, v17, 4, v16")
            pe("s_and_b32 s%d, s%d, 3" % (S_T, S_W)); pe("s_mul_i32 s%d, s%d, %d" % (S_T, S_T, 4*9216)); pe("s_add_u32 s%d, s%d, s%d" % (S_T, S_T, S_U)); pe("v_add_u32 v%d, s%d, v16" % (V_OUT, S_T))
        pe("v_bfe_u32 v16, v%d, 2, 1" % I); pe("v_and_b32 v17, 3, v%d" % I); pe("v_lshlrev_b32 v17, 1, v17"); pe("v_lshrrev_b32 v18, 3, v%d" % I); pe("v_add_u32 v17, v17, v18")
        if sw: pe("v_and_b32 v16, 1, v%d" % I); pe("v_lshrrev_b32 v17, 1, v%d" % I)
        pe("v_lshlrev_b32 v17, 4, v17"); pe("v_lshl_add_u32 v17, v16, 10, v17"); pe("v_lshl_add_u32 v17, v%d, 7, v17" % G)
        pe("s_lshl_b32 s%d, s%d, 1" % (S_T, S_W3L)); pe("v_add_u32 v%d, s%d, v17" % (V_WR, S_T))
        pe("v_and_b32 v16, 7, v%d" % I); pe("v_lshlrev_b32 v16, 4, v16"); pe("v_lshl_add_u32 v17, v18, 3, v16"); pe("v_lshl_add_u32 v17, v%d, 7, v17" % G)
        pe("s_add_u32 s%d, s%d, %d" % (S_T, S_T, rh*8192)); pe("v_add_u32 v%d, s%d, v17" % (V_WA0, S_T))
        pe("s_lshr_b32 s%d, s%d, 3" % (S_T, S_W3L)); pe("s_add_u32 s%d, s%d, %d" % (S_T, S_T, rh*1024 + TAB)); pe("v_add_u32 v%d, s%d, v16" % (V_TAB, S_T))
        pe("v_lshrrev_b32 v16, 1, v%d" % I); pe("v_xor_b32 v16, v16, v%d" % G); pe("v_lshlrev_b32 v16, 4, v16"); pe("v_lshl_add_u32 v%d, v%d, 7, v16" % (V_X, I))
        if rh: pe("v_add_u32 v%d, 2048, v%d" % (V_X, V_X))
        pe("v_xor_b32 v%d, 64, v%d" % (V_X+1, V_X))
        for w_ in (1, 2):
            pe("v_add_u32 v%d, %d, v%d" % (V_X+2*w_, w_ << 16, V_X)); pe("v_add_u32 v%d, %d, v%d" % (V_X+2*w_+1, w_ << 16, V_X+1))
        pe("v_lshrrev_b32 v16, 4, v0"); pe("v_lshlrev_b32 v16, 10, v16"); pe("v_lshl_add_u32 v%d, v%d, 5, v16" % (V_T1, I))
        pe("s_mov_b32 s%d, 0x00ff00ff" % S_M8); pe("s_mov_b32 s%d, 0x00ff00ff" % (S_M8+1)); pe("s_not_b64 s[%d:%d], s[%d:%d]" % (S_M8N, S_M8N+1, S_M8, S_M8+1))
        pe("s_mov_b32 s%d, 0x0f0f0f0f" % S_M4); pe("s_mov_b32 s%d, 0x0f0f0f0f" % (S_M4+1)); pe("s_not_b64 s[%d:%d], s[%d:%d]" % (S_M4N, S_M4N+1, S_M4, S_M4+1))
        def tab_build(tb, T0):
            if rh == 1:
                pe("s_cmp_lg_u32 s%d, 4" % S_W); pe("s_cbranch_scc1 L_notab")
                pe("s_mov_b32 exec_hi, 0")
            sv = p.vmdone
            p.wait(vm=lambda x: x == "tab")
            if not (pro and rh): pstamp(rh)
            for c in range(4):
                pe("v_lshlrev_b32 v%d, 16, v%d" % (T0+2*c, tb+c)); pe("v_and_b32 v%d, 0xffff0000, v%d" % (T0+1+2*c, tb+c))
                pe("v_lshlrev_b32 v%d, 16, v%d" % (T0+8+2*c, tb+4+c)); pe("v_and_b32 v%d, 0xffff0000, v%d" % (T0+9+2*c, tb+4+c))
            if not fm: pe("ds_write_b128 v%d, v[%d:%d] offset:%d" % (V_T1, T0, T0+3, TAB)); pe("ds_write_b128 v%d, v[%d:%d] offset:%d" % (V_T1, T0+4, T0+7, TAB+16))
            for c in range(8): pe("v_mul_f32 v%d, -v%d, v%d" % (T0+8+c, T0+8+c, T0+c))
            pe("ds_write_b128 v%d, v[%d:%d] offset:%d" % (V_T1, T0+8, T0+11, TAB+512)); pe("ds_write_b128 v%d, v[%d:%d] offset:%d" % (V_T1, T0+12, T0+15, TAB+528))
            if fm:
                for c in range(8): pe("v_mul_f32 v%d, 0x4b800000, v%d" % (T0+c, T0+c))
                pe("ds_write_b128 v%d, v[%d:%d] offset:%d" % (V_T1, T0, T0+3, TAB)); pe("ds_write_b128 v%d, v[%d:%d] offset:%d" % (V_T1, T0+4, T0+7, TAB+16))
            pe("s_waitcnt lgkmcnt(0)")
            if rh == 1:
                pe("s_mov_b32 exec_hi, -1")
                a.lab("L_notab")
                p.vmdone = sv
        if not (pro and rh): tab_build(24, 32)
        else: pstamp(rh)
        if pro and xlate and not (xd0 & 4):
            for f in l0[4:]: f()
        pe("s_barrier")
        if pro and xlate and (xd0 & 4):
            for f in l0[4:]: f()
        pstamp(rh)
        def tab_reads(t):
            p.lds("ds_read_b128 v[%d:%d], v%d offset:%d" % (V_S, V_S+3, V_TAB, t*2048), ("t", t))
            p.lds("ds_read_b128 v[%d:%d], v%d offset:%d" % (V_NZ, V_NZ+3, V_TAB, t*2048+512), ("t", t))
        def dequant(t):
            R = V_W + 16*t
            ops = []
            for j in range(4):
                ops.append((0, lambda j=j: p.wait(vm=lambda x: x == ("q", t, j))))
                if fm:
                    if fm & 1:
                        if j == 0:
                            ops.append((1, lambda: pe("v_or3_b32 v%d, v%d, v%d, v%d" % (V_T0, R, R+1, R+2))))
                            ops.append((1, lambda: pe("v_or_b32 v%d, v%d, v%d" % (V_T0, V_T0, R+3))))
                        else:
                            for c in (0, 2): ops.append((1, lambda x=4*j+c: pe("v_or3_b32 v%d, v%d, v%d, v%d" % (V_T0, V_T0, R+x, R+x+1))))
                        if j == 3:
                            ops.append((1, lambda: pe("v_cmp_lt_u32 vcc, 0x3ff, v%d" % V_T0)))
                            ops.append((0, lambda: pe("s_cbranch_vccnz L_done")))
                elif not (abl & 129):
                    for c in range(4): ops.append((1, lambda x=4*j+c: pe("v_cvt_f32_i32 v%d, v%d" % (R+x, R+x))))
            def wt():
                assert ("t", t) in p.lg or (abl & 16)
                p.wait(lg=lambda x: x == ("t", t))
            ops.append((0, wt))
            for c in range(4):
                if abl & 1:
                    if not (abl & 2): ops.append((0, lambda c=c: p.lds("ds_write_b64 v%d, v[%d:%d] offset:%d" % (V_WA0, V_PK+2*c, V_PK+2*c+1, WS[t % 2] + c*512), ("w", t))))
                    continue
                if pk:
                    if c % 2 == 0:
                        for j in range(4): ops.append((1, lambda x=4*j+c: pe("v_pk_fma_f32 v[%d:%d], v[%d:%d], v[%d:%d], v[%d:%d]" % (R+x, R+x+1, R+x, R+x+1, V_S+(x & 3), V_S+(x & 3)+1, V_NZ+(x & 3), V_NZ+(x & 3)+1))))
                elif fm:
                    if (fm & 4) and t < fck:
                        for j in (0, 2): ops.append((1, lambda x=4*j+c: pe("v_or3_b32 v%d, v%d, v%d, v%d" % (V_T0, V_T0, R+x, R+x+4))))
                    for j in range(4): ops.append((1, lambda x=4*j+c: pe("v_fma_mix_f32 v%d, v%d, v%d, v%d op_sel_hi:[1,0,0]" % (R+x, R+x, V_S+(x & 3), V_NZ+(x & 3)))))
                else:
                    for j in range(4): ops.append((1, lambda x=4*j+c: pe("v_fma_f32 v%d, v%d, v%d, v%d" % (R+x, R+x, V_S+(x & 3), V_NZ+(x & 3)))))
                ops.append((1, lambda c=c: pe("v_cvt_pk_bf16_f32 v%d, v%d, v%d" % (V_PK+2*c, R+c, R+4+c))))
                ops.append((1, lambda c=c: pe("v_cvt_pk_bf16_f32 v%d, v%d, v%d" % (V_PK+2*c+1, R+8+c, R+12+c))))
                if not (abl & 2): ops.append((0, lambda c=c: p.lds("ds_write_b64 v%d, v[%d:%d] offset:%d" % (V_WA0, V_PK+2*c, V_PK+2*c+1, WS[t % 2] + c*512), ("w", t)), "w"))
            if wdel:
                o2 = []; held = []
                for o in ops:
                    if len(o) == 3: held.append([wdel, o[:2]]); continue
                    o2.append(o)
                    if o[0]:
                        for h in held: h[0] -= 1
                        while held and held[0][0] <= 0: o2.append(held.pop(0)[1])
                o2 += [h[1] for h in held]
                ops = o2
            ops = [o[:2] for o in ops]
            return ops
        def epilogue(acc, idx):
            ops = []
            V_D, V_E, V_O = (acc, acc+4, acc) if ipe else (48, 52, 56)
            def firstop():
                p.need_mfma_done(acc); p.need_mfma_done(acc+4)
                pe("v_cvt_pk_bf16_f32 v%d, v%d, v%d" % (V_D, acc, acc+4))
            ops.append((1, firstop))
            for r in range(1, 4): ops.append((1, lambda r=r: pe("v_cvt_pk_bf16_f32 v%d, v%d, v%d" % (V_D+r, acc+r, acc+4+r))))
            if epi == 1:
                ops = []
                dd = V_D if idx % 4 < 2 else V_O
                def firstop():
                    p.need_mfma_done(acc); p.need_mfma_done(acc+4)
                    pe("s_add_u32 s%d, s%d, %d" % (S_EO, S_BASE, idx*18432)); pe("s_cmp_ge_u32 s%d, s%d" % (S_EO, S_END)); pe("s_cselect_b32 s%d, s%d, 0" % (S_INV, S_SPAN))
                    pe("v_cvt_pk_bf16_f32 v%d, v%d, v%d" % (dd, acc, acc+4))
                    pe("s_sub_u32 s%d, s%d, s%d" % (S_EO, S_EO, S_INV)); pe("s_lshl_b32 s%d, s%d, 3" % (S_EO, S_EO))
                ops.append((1, firstop))
                for r in range(1, 4): ops.append((1, lambda r=r: pe("v_cvt_pk_bf16_f32 v%d, v%d, v%d" % (dd+r, acc+r, acc+4+r))))
                for r in range(4): ops.append((stc, lambda r=r: p.vmem("buffer_store_dword v%d, v%d, s[%d:%d], s%d offen %s" % (dd+r, V_E+r, S_O, S_O+3, S_EO, spol), "st")))
                return ops
            if sw:
                ops.insert(1, (0, lambda: (pe("s_add_u32 s%d, s%d, %d" % (S_EO, S_BASE, idx*18432)), pe("s_cmp_ge_u32 s%d, s%d" % (S_EO, S_END)), pe("s_cselect_b32 s%d, s%d, 0" % (S_INV, S_SPAN)))))
                ops.insert(3, (0, lambda: (pe("s_sub_u32 s%d, s%d, s%d" % (S_EO, S_EO, S_INV)), pe("s_lshl_b32 s%d, s%d, 3" % (S_EO, S_EO)))))
                ops.append((0, lambda: p.vmem("buffer_store_dwordx4 v[%d:%d], v%d, s[%d:%d], s%d offen %s" % (V_D, V_D+3, V_OUT, S_O, S_O+3, S_EO, spol), "st")))
                return ops
            def dpp(d, s0, s1, ror): pe("v_cndmask_b32_dpp v%d, v%d, v%d, vcc row_ror:%d row_mask:0xf bank_mask:0xf" % (d, s0, s1, ror))
            ops.append((0, lambda: (pe("s_mov_b64 vcc, s[%d:%d]" % (S_M8, S_M8+1)), pe("s_add_u32 s%d, s%d, %d" % (S_EO, S_BASE, idx*18432)))))
            ops.append((1, lambda: dpp(V_E+0, V_D+2, V_D+0, 8)))
            ops.append((1, lambda: dpp(V_E+1, V_D+3, V_D+1, 8)))
            ops.append((0, lambda: (pe("s_mov_b64 vcc, s[%d:%d]" % (S_M8N, S_M8N+1)), pe("s_cmp_ge_u32 s%d, s%d" % (S_EO, S_END)), pe("s_cselect_b32 s%d, s%d, 0" % (S_INV, S_SPAN)))))
            ops.append((1, lambda: dpp(V_E+2, V_D+0, V_D+2, 8)))
            ops.append((1, lambda: dpp(V_E+3, V_D+1, V_D+3, 8)))
            ops.append((0, lambda: (pe("s_mov_b64 vcc, s[%d:%d]" % (S_M4, S_M4+1)), pe("s_sub_u32 s%d, s%d, s%d" % (S_EO, S_EO, S_INV)))))
            ops.append((1, lambda: dpp(V_O+0, V_E+1, V_E+0, 4)))
            ops.append((1, lambda: dpp(V_O+2, V_E+3, V_E+2, 4)))
            ops.append((0, lambda: (pe("s_mov_b64 vcc, s[%d:%d]" % (S_M4N, S_M4N+1)), pe("s_lshl_b32 s%d, s%d, 3" % (S_EO, S_EO)))))
            ops.append((1, lambda: dpp(V_O+1, V_E+0, V_E+1, 12)))
            ops.append((1, lambda: dpp(V_O+3, V_E+2, V_E+3, 12)))
            if abl & 1024: ops = [(c_, (lambda: None) if c_ else f_) for c_, f_ in ops]
            if not (abl & 256) or ((abl & 512) and idx >= 12): ops.append((0, lambda: p.vmem("buffer_store_dwordx4 v[%d:%d], v%d, s[%d:%d], s%d offen %s" % (V_O, V_O+3, V_OUT, S_O, S_O+3, S_EO, spol), "st")))
            return ops
        def guarantees(ep):
            p.wait(vm=lambda x: x[0] == "x" and x[1] <= ep, lg=lambda x: x == ("w", ep))
        tab_reads(0)
        lds_ = load_ops(-1)
        dq = dequant(0)
        k = 0
        for i, (c, f) in enumerate(dq):
            f()
            if i in (0, 15): pstamp(rh)
            if c and i % mid == mid0 and k < len(lds_): lds_[k](); k += 1
        if pro == 2 and rh: tab_build(48, 60)
        while k < len(lds_): lds_[k](); k += 1
        if pro == 1 and rh: tab_build(48, 60)
        nF = len(frag_list) - (18 if rh else 0)
        def acc_of(j): return V_A1 + 8*j if j < P1 else V_S + 8*((j - P1) % 2)
        freg = {}
        def frag_read(f, b=None):
            j, t, e_ = frag_list[f]
            if b is None: b = XF[f % len(XF)]
            r, o = xaddr(gran[(j, t)]*4096, e_)
            if not ((abl & 32) and f > 4): p.lds("ds_read_b128 v[%d:%d], v%d offset:%d" % (b, b+3, r, o), ("f", f))
            freg[f] = b
        dqq = []; dq_at = 0
        epq = []
        ldq = []; ld_at = 0
        m = 0; ntr = 0; cur_ep = -1; m_tr = 0; hq = []
        def run_fill(budget):
            while dqq and m >= dq_at and (budget > 0 or dqq[0][0] == 0):
                c, f = dqq.pop(0); f(); budget -= c
            return budget
        def run_ep(budget):
            while epq and m >= epq[0][0] and (budget > 0 or epq[0][2][0][0] == 0):
                c, f = epq[0][2].pop(0); f(); budget -= c
                if not epq[0][2]: epq.pop(0)
        def flush_ep(upto_acc=None):
            k_ = 0
            while epq and (upto_acc is None or any(x[1] == upto_acc for x in epq)):
                c, f = epq[0][2].pop(0); f(); k_ += 1
                if not epq[0][2]: epq.pop(0)
            if k_ and ipe and upto_acc is not None: pe("s_nop 1")
        def seq_of(f):
            o_ = od if frag_list[f][0] < P1 else od2
            if o_ == 0: return [(0, 0), (1, 0), (0, 1), (1, 1)]
            if o_ == 1: return [(0, 0), (0, 1), (1, 0), (1, 1)]
            if o_ == 3 or (f // 2) % 2 == 0: return [(0, 0), (0, 1), (1, 1), (1, 0)]
            return [(1, 0), (1, 1), (0, 1), (0, 0)]
        acc_used = set()
        for f in range(nF):
            j, t, e_ = frag_list[f]
            if f in bpos:
                ep = bpos.index(f)
                while ldq: ldq.pop(0)()
                while dqq: dqq.pop(0)[1]()
                if rh == trh and ep == trace + 1 and trace >= 0: a.cstamp(ntr, TR); ntr += 1
                if ep == 0: pstamp(rh)
                guarantees(ep)
                if rh == trh and ep == trace + 1 and trace >= 0: a.cstamp(ntr, TR); ntr += 1
                if not ((abl & 64) and 1 <= ep <= 8): pe("s_barrier")
                if rh == trh and ep in (trace, trace + 1) and trace >= 0: a.cstamp(ntr, TR); ntr += 1; m_tr = m
                cur_ep = ep; m_ep = m
                if ep <= 2 and pst == rh: pstamp(rh); p.lg_all()
                if rh == 1 and (pt1 if ep < 9 else pt2): pe("s_setprio %d" % pth); cur_pr = pth
                elif rh == 1 and ep == 9 and pt1: pe("s_setprio %d" % prio)
                if SL and ep in SL and rh == 0:
                    a.stamp(1 + SL.index(ep)); p.lg_all()
                if stamps and stamps < 3 and ep in (0, smid, 9) and not SL:
                    a.stamp({0: 2, smid: 3, 9: 4}[ep]); p.lg_all()
                hq = []
                h_ = hw if (rh == 0 or hw1 < 0) else hw1
                if ep <= 8 and not ((abl & 16) and ep >= 1):
                    for i_, (c, ks) in enumerate(seq_of(first[ep])):
                        if 1:
                            def wr(ks=ks, c=c, ep=ep):
                                r = V_W + 16*ep + 8*ks + 4*c
                                p.lds("ds_read_b128 v[%d:%d], v%d offset:%d" % (r, r+3, V_WR, WS[ep % 2] + ks*8192 + c*512), ("W", ep, ks, c))
                            if h_ and ep >= 1: hq.append([m + h_ + wst*i_, wr])
                            else: wr()
                if ep == 0:
                    for f2 in range(pf + (1 if od else 0)): frag_read(f2)
                if ep + 1 <= 8:
                    if not (abl & 16) and not (tabe == 1 and ep >= 1):
                        if tabe == 2 and ep >= 1: hq.append([m + h_ + 4*wst, lambda ep=ep: tab_reads(ep+1)])
                        else: tab_reads(ep+1)
                    dqq = dequant(ep+1); dq_at = m + (dq1 if rh else dq0)
                    if tabe == 1 and ep + 2 <= 8:
                        k_ = max(i for i, (c_, f_) in enumerate(dqq) if c_) - 2
                        dqq.insert(k_ + 1, (0, lambda ep=ep: tab_reads(ep+2)))
                ldq = load_ops(ep)
                nM = 2*((bpos[ep+1] if ep+1 < NE else nF) - f)
                n_ = len(ldq)
                l0_ = ld0
                if ep == 7 and e7 >= 0: l0_ = e7
                if ep == 8 and e8 >= 0: l0_ = e8
                ldpos = [m + l0_ + int((i + 0.5*rh + 0.25) * (nM - l0_ - ldm) / max(n_, 1)) for i in range(n_)]
                if xl0 >= 0 and ep <= 6 and n_ > 4:
                    if xfirst:
                        ldq = ldq[4:] + ldq[:4]; na = n_ - 4
                    else: na = 4
                    ldpos = [m + ld0 + int((i + 0.5*rh + 0.25) * (xl0 - ld0) / na) for i in range(na)] + [m + xl0 + int((i + 0.5*rh + 0.25) * (nM - xl0 - ldm) / (n_ - na)) for i in range(n_ - na)]
            if rh == 0 and f == fidx[(9, 0, 0)]:
                pe("s_cmp_eq_u32 s%d, 18" % S_NB); pe("s_cbranch_scc1 L_skip")
                skip_state = ([(x[1], x[3]) for x in epq], [len(x[2]) for x in epq], dict(p.lastmf), p.n)
            late = (hw and f in bpos and f > 0)
            if f + pf < nF and not late and not od: frag_read(f + pf)
            acc = acc_of(j)
            if j >= P1 and t == 0 and e_ == 0: flush_ep(acc)
            for i_, (c, e2) in enumerate(seq_of(f)[2*e_:2*e_+2]):
                ff = f - e_ + e2
                W0 = V_W + 16*t + 8*e2 + 4*c
                if j < P1 and not (abl & 16): assert ("W", t, e2, c) in p.lg
                p.wait(lg=lambda x: x == ("f", ff) or x == ("W", t, e2, c))
                p.mfma(acc + 4*c, freg[ff], W0, (j, c) not in acc_used)
                acc_used.add((j, c))
                m += 1
                pt_ = pt1 if cur_ep < 9 else pt2
                if rh == 1 and pt_ and (m - m_ep) % pt_ == 0: cur_pr = 1 - cur_pr; pe("s_setprio %d" % cur_pr)
                if od:
                    if e_ == 1 and f + pf + i_ < nF: frag_read(f + pf + i_, freg[ff])
                elif late and i_ == 0 and f + pf < nF: frag_read(f + pf)
                while hq and m >= hq[0][0]: hq.pop(0)[1]()
                while ldq and m >= ldpos[0]: ldq.pop(0)(); ldpos.pop(0)
                if rh == trh and cur_ep == trace and (m - m_tr) % tstep == 0 and ntr < len(TR) - 3: a.cstamp(ntr, TR); ntr += 1
                b = run_fill(per1)
                if not dqq:
                    if er: run_ep(min(b, (er*(m+1))//12 - (er*m)//12))
                    else: run_ep(min(b, per2))
            if t == 8 and e_ == 1:
                epq.append([m + epd, acc, epilogue(acc, 2*j + rh), 2*j + rh])
        assert not ldq and not dqq
        flush_ep()
        if rh == 0:
            pe("s_branch L_end")
            a.lab("L_skip")
            lst, lens, lm, n_ = skip_state
            p.lastmf = {k: p.n - (n_ - v) for k, v in lm.items()}
            for (acc, idx), ln in zip(lst, lens):
                ops = epilogue(acc, idx)
                for c, f in ops[len(ops)-ln:]: f()
            a.lab("L_end")
        if pst == rh:
            pstamp(rh)
            sys.stderr.write("pstamps: %d\n" % psn[0])
            a.dump_regs(PS[:psn[0]], 36, 256*rh)
        if stamps == 3 and rh == trh:
            sys.stderr.write("trace stamps: %d\n" % ntr)
            a.dump_regs(TR[:ntr], 36, 256*trh)
        if SL and rh == 0:
            a.stamp(1 + len(SL))
            a.dump_stamps(2 + len(SL), 36, vtmp=0)
        elif stamps and stamps < 3 and rh == 0:
            a.stamp(5)
            pe("s_waitcnt vmcnt(0)")
            a.stamp(6)
            if stamps == 2: a.dbg_stamps(7, 36)
            else: a.dump_stamps(7, 36, vtmp=0)
        pe("s_endpgm")
    a.lab("L_done")
    e("s_endpgm")
    a.descriptor(KN, 256, 102, 256)
    a.write(path)

if __name__ == "__main__":
    kw = dict(s.split("=") for s in sys.argv[2:])
    for k in kw:
        if k in ("sl", "kst", "xo", "ro"): pass
        elif k in ("spol", "qpol", "xpol", "tpol"): kw[k] = kw[k].replace("+", " ").replace("plain", "")
        else: kw[k] = int(kw[k])
    build(sys.argv[1], **kw)
```

```python
import sys, random
from asmlib import *
def build(path, nread=18, ndma=0, nst=0, nvalu=0, iters=10, bar=1, half=1, spol="nt", order=0, depth=2, barpos=36, stag=0, zero=0, wpos=0, rnd=0):
    a = Asm(); e = a.e
    KN = NAME + "_kernel"
    nw = 8
    a.header(["; @launch grid=(256,1,1) block=(%d,1,1) lds=%d" % (64*nw, 160*1024)])
    a.kernel_start(KN)
    a.stamp(0)
    e("s_cmp_ge_u32 s2, 256"); e("s_cbranch_scc1 L_done")
    e("s_load_dwordx8 s[4:11], s[0:1], 0")
    e("s_load_dwordx4 s[12:15], s[0:1], 32")
    e("s_load_dwordx2 s[40:41], s[0:1], 48")
    e("s_lshr_b32 s43, s2, 3"); e("s_and_b32 s44, s43, 7")
    e("s_and_b32 s45, s2, 7"); e("s_lshl_b32 s45, s45, 2"); e("s_lshr_b32 s46, s43, 3"); e("s_add_u32 s45, s45, s46")
    e("v_lshrrev_b32 v1, 6, v0"); e("v_and_b32 v2, 63, v0"); e("v_and_b32 v3, 15, v2"); e("v_lshrrev_b32 v4, 4, v2")
    e("s_nop 0"); e("v_readfirstlane_b32 s47, v1")
    e("s_waitcnt lgkmcnt(0)")
    a.srd(16, 4, M*K*2); a.srd(32, 12, M*N*2)
    e("s_mov_b32 s36, s40"); e("s_and_b32 s37, s41, 0xffff"); e("s_mov_b32 s38, 0x10000000"); e("s_mov_b32 s39, 0x00020000")
    e("v_lshrrev_b32 v5, 1, v3"); e("v_xor_b32 v5, v5, v4"); e("v_lshlrev_b32 v5, 4, v5"); e("v_and_b32 v6, 7, v3"); e("v_lshlrev_b32 v6, 7, v6"); e("v_add_u32 v5, v5, v6")
    e("v_lshrrev_b32 v6, 3, v3"); e("v_mul_u32_u24 v6, 9216, v6"); e("v_add_u32 v5, v5, v6")
    e("s_lshr_b32 s53, s47, 2"); e("s_mul_i32 s54, s53, 18432"); e("v_add_u32 v5, s54, v5"); e("v_xor_b32 v11, 64, v5")
    e("v_lshrrev_b32 v8, 3, v2"); e("v_mul_u32_u24 v8, 1152, v8"); e("v_and_b32 v6, 7, v2"); e("v_lshlrev_b32 v6, 4, v6"); e("v_add_u32 v8, v8, v6")
    e("s_mul_i32 s48, s44, %d" % (256*1152)); e("s_lshr_b32 s49, s47, 1"); e("s_mul_i32 s55, s49, 9216"); e("s_add_u32 s48, s48, s55"); e("s_and_b32 s49, s47, 1"); e("s_lshl_b32 s56, s49, 7"); e("s_add_u32 s48, s48, s56"); e("v_add_u32 v8, s48, v8")
    e("s_lshl_b32 s56, s49, 10"); e("s_add_u32 s55, s55, s56")
    if half:
        e("v_lshrrev_b32 v9, 2, v2"); e("v_mul_u32_u24 v9, 9216, v9"); e("v_and_b32 v10, 3, v2"); e("v_lshlrev_b32 v10, 4, v10"); e("v_add_u32 v9, v9, v10")
        e("s_and_b32 s49, s47, 3"); e("s_lshl_b32 s49, s49, 6"); e("s_mul_i32 s57, s53, %d" % (16*9216)); e("s_add_u32 s49, s49, s57")
    else:
        e("v_lshrrev_b32 v9, 3, v2"); e("v_mul_u32_u24 v9, 9216, v9"); e("v_and_b32 v10, 7, v2"); e("v_lshlrev_b32 v10, 4, v10"); e("v_add_u32 v9, v9, v10")
        e("s_and_b32 s49, s47, 1"); e("s_lshl_b32 s49, s49, 7"); e("s_lshr_b32 s57, s47, 1"); e("s_mul_i32 s57, s57, %d" % (8*9216)); e("s_add_u32 s49, s49, s57")
    e("s_mul_i32 s48, s44, %d" % (256*9216)); e("s_add_u32 s48, s48, s49"); e("s_lshl_b32 s49, s45, 8"); e("s_add_u32 s48, s48, s49"); e("v_add_u32 v9, s48, v9")
    for r in range(16, 128): e("v_mov_b32 v%d, 0x3c003c00" % r)
    e("s_mov_b32 s50, 0"); e("s_mov_b32 s51, 0"); e("s_mov_b32 s52, 0")
    if zero:
        e("v_lshlrev_b32 v12, 4, v0")
        if zero == 2:
            for r in range(4): e("v_mov_b32 v%d, 0" % (16+r))
        for j in range(20): e("ds_write_b128 v12, v[16:19] offset:%d" % (j*8192 % 65536)) if j < 8 else None
        e("s_waitcnt lgkmcnt(0)")
    if rnd:
        for r in range(40, 56):
            e("v_mul_u32_u24 v%d, %d, v0" % (r, 2654435 + 7919*r)); e("v_and_b32 v%d, 0x3fff3fff, v%d" % (r, r)); e("v_or_b32 v%d, 0x38003800, v%d" % (r, r))
    e("s_barrier")
    a.stamp(1)
    e("s_memtime s[90:91]")
    NM = 36
    for t in range(iters):
        fill = []
        nd = ndma if ndma != 45 else (4 + (t & 1))
        for j in range(nd):
            fill.append(["s_add_u32 m0, s55, %d" % ((t % 4)*36864 + 2*j*1024), "s_mov_b32 s51, %d" % ((t % 8)*32*1152 + j*256), "buffer_load_dwordx4 v8, s[16:19], s51 offen lds"])
        v = []
        for j in range(nvalu): v.append(["v_add_f32 v%d, v%d, v%d" % (120+j % 8, 100+j % 8, 108+j % 8)])
        st = []
        for j in range(nst):
            st.append(["s_mov_b32 s52, %d" % (((t*nst+j) % 8)*32*9216), "buffer_store_dwordx4 v[100:103], v9, s[32:35], s52 offen %s" % spol])
        if order == 0: fill = fill + v + st
        elif order == 1: fill = v + st + fill
        else:
            fill = fill + v + st; random.Random(1).shuffle(fill)
        nf = len(fill); k = 0
        for m in range(NM):
            acc = 64 + 4*(m % 2) + 8*(t & 1)
            fr = 16+4*((m//2) % 6)
            if m % 2 == 0 and nread:
                kk = (m//2 + 4) % 18
                e("ds_read_b128 v[%d:%d], v%d offset:%d" % (16+4*((m//2+4) % 6), 19+4*((m//2+4) % 6), 5 if kk % 2 == 0 else 11, ((t+1) % 2)*36864*0 + (kk//2)*1024))
                if wpos == 0: e("s_waitcnt lgkmcnt(4)")
                elif m % 4 == 0: e("s_waitcnt lgkmcnt(3)")
            e("v_mfma_f32_16x16x32_bf16 v[%d:%d], v[%d:%d], v[%d:%d], v[%d:%d]" % (acc, acc+3, fr, fr+3, 40+4*(m % 4), 43+4*(m % 4), acc, acc+3))
            while k < nf and k*NM < (m+1)*nf:
                for s in fill[k]: e(s)
                k += 1
            if m + 1 == barpos:
                if nd or nst: e("s_waitcnt vmcnt(%d)" % min(63, depth*(nd+nst)))
                if bar: e("s_barrier")
    a.stamp(2)
    e("s_waitcnt vmcnt(0) lgkmcnt(0)")
    e("s_barrier")
    a.stamp(3)
    e("s_memtime s[92:93]")
    e("s_waitcnt lgkmcnt(0)")
    e("s_sub_u32 s92, s92, s90"); e("s_add_u32 s78, s70, s92"); e("s_addc_u32 s79, s71, 0")
    a.dump_stamps(5, 36, vtmp=0)
    a.lab("L_done")
    e("s_endpgm")
    a.descriptor(KN, 128, 102, 128)
    a.write(path)
if __name__ == "__main__":
    kw = dict(s.split("=") for s in sys.argv[2:])
    for k in kw:
        if k in ("spol",): kw[k] = kw[k].replace("+", " ").replace("plain", "")
        else: kw[k] = int(kw[k])
    build(sys.argv[1], **kw)
```

```python
import sys
from asmlib import *

V_Q, V_XD, V_OUT, V_WR, V_WA0, V_WA1, V_TAB = 1, 2, 3, 4, 5, 6, 7
V_X = 8
V_T0, V_T1 = 14, 15
V_QJ = [1, 109, 110, 111]
V_S, V_NZ, V_PK = 32, 36, 40
V_D, V_E, V_O = 48, 52, 56
V_A1 = 60
V_W = 112
S_X, S_Q, S_S, S_Z, S_O, S_WS = 16, 20, 24, 28, 32, 36
S_P = 40
S_INV = 49
S_BASE, S_END, S_SPAN, S_B2, S_W3L, S_NB, S_W = 50, 51, 52, 53, 54, 55, 56
S_T, S_U, S_QO, S_EO = 57, 58, 59, 14
S_DJ = 60
S_M8, S_M8N, S_M4, S_M4N = 90, 92, 94, 96
S_PAN, S_CH, S_JH, S_RH, S_ROT = 3, 98, 99, 100, 101

class Prog:
    def __init__(self, a):
        self.a = a; self.vm = []; self.lg = []; self.vmdone = 0; self.lgdone = 0; self.n = 0
        self.lastmf = {}
    def e(self, s):
        self.a.e(s); self.n += 1
    def vmem(self, s, tag): self.e(s); self.vm.append(tag)
    def lds(self, s, tag): self.e(s); self.lg.append(tag)
    def _cnt(self, lst, done, pred):
        for i in range(len(lst)-1, done-1, -1):
            if pred(lst[i]): return i
        return -1
    def wait(self, vm=None, lg=None):
        parts = []
        if vm is not None:
            idx = self._cnt(self.vm, self.vmdone, vm)
            if idx >= 0:
                n = min(len(self.vm)-1-idx, 63)
                parts.append("vmcnt(%d)" % n); self.vmdone = len(self.vm) - n
        if lg is not None:
            idx = self._cnt(self.lg, self.lgdone, lg)
            if idx >= 0:
                n = min(len(self.lg)-1-idx, 15)
                parts.append("lgkmcnt(%d)" % n); self.lgdone = len(self.lg) - n
        if parts: self.e("s_waitcnt " + " ".join(parts))
    def lg_all(self):
        self.e("s_waitcnt lgkmcnt(0)"); self.lgdone = len(self.lg)
    def mfma(self, d, x, w, first):
        c = "0" if first else "v[%d:%d]" % (d, d+3)
        if self.sw: x, w = w, x
        self.e("v_mfma_f32_16x16x32_bf16 v[%d:%d], v[%d:%d], v[%d:%d], %s" % (d, d+3, x, x+3, w, w+3, c))
        self.lastmf[d] = self.n
    def need_mfma_done(self, d):
        if d in self.lastmf:
            gap = self.n - self.lastmf[d]
            if gap < 8: self.e("s_nop %d" % (8-gap-1))

def build(path, b1=12, D=3, n0=1, spol="nt", stamps=0, krot=1, rrot=4, dq0=0, dq1=0, per1=2, per2=2, cap=12, prio=0, pf=3,
          ld0=0, ldm=2, n1=2, epd=4, smid=4, qpol="", xpol="", abl=0, trace=-1, trh=0, tstep=4, early=0, qa=0, fseg=0, r9=0, hw=0, hw1=-1, tabe=0, xs=0, xs2=0, wst=1, cyc=0, sl="", p2s=0, wdel=0, epi=0, stc=1, pt1=0, pt2=0, pth=1, sk12=0, od=0, od2=-1, ipe=0, er=0, pk=0, sw=0, kst="", plm=1, xl0=-1, e7=-1, e8=-1, xfirst=0, pst=-1, pro=0, mid=3, mid0=2, tl=0, tg=128, tw=4, th=1, tp=-1, tpos=0, tn=1, tpol="", xd0=0, t0=2, xo="", ro="", fm=0, fck=9, xe7=-1, caps='', xe8=-1, xs7=-1, xs8=-1):
    a = Asm(); e = a.e
    SL = [int(x) for x in sl.split("_")] if sl else []
    if cyc: a.stamp = lambda i, base=70: a.e("s_memtime s[%d:%d]" % (base+2*i, base+2*i+1))
    KN = NAME + "_kernel"
    P1 = b1 // 2
    assert b1 % 2 == 0 and (P1 <= 6 or (P1 == 7 and ipe and pf <= 3))
    V_A1 = 48 if P1 == 7 else 60
    assert pf <= 3 or (ipe and pf <= 6)
    if od2 < 0: od2 = od
    assert (od > 0) == (od2 > 0) and (not od or pf % 2 == 1)
    XF = [16, 20, 24, 28, 48, 52, 56][:pf+1]
    a.header(["; @launch grid=(256,1,1) block=(512,1,1) lds=%d" % (160*1024)])
    a.kernel_start(KN)
    TR = [70, 72, 74, 76, 78, 80, 82, 84, 86, 88, 4, 6, 8, 10, 12]
    if trace >= 0: stamps = 3
    PS = [70, 72, 74, 76, 78, 80, 82, 84, 86, 88, 4, 6, 8, 10, 12]
    psn = [0]
    def pstamp(rh_=None):
        if pst < 0 or (rh_ is not None and rh_ != pst): return
        e("s_memrealtime s[%d:%d]" % (PS[psn[0]], PS[psn[0]]+1)); psn[0] += 1
    if pst >= 0: stamps = 4
    pstamp()
    if stamps and stamps < 3: a.stamp(0)
    e("s_cmp_ge_u32 s2, 256"); e("s_cbranch_scc1 L_done")
    L, I, G = 20, 21, 22
    def late_scalars():
        pe_ = e
        pe_("s_cmp_lt_u32 s%d, 2" % S_R); pe_("s_cselect_b32 s%d, 19, 18" % S_NB)
        pe_("v_and_b32 v%d, 15, v0" % I)
        pe_("s_min_u32 s100, s%d, 2" % S_R); pe_("s_mul_i32 s%d, s%d, 18" % (S_T, S_R)); pe_("s_add_u32 s100, s100, s%d" % S_T)
        pe_("v_bfe_u32 v%d, v0, 4, 2" % G)
        pe_("s_add_u32 s%d, s100, s%d" % (S_T, S_NB)); pe_("s_mul_i32 s%d, s%d, 18432" % (S_END, S_T))
        pe_("s_mul_i32 s%d, s%d, 18432" % (S_SPAN, S_NB))
        pe_("s_and_b32 s98, s%d, 1" % S_W)
        pe_("s_bfe_u32 s99, s%d, 0x10001" % S_W)
        pe_("s_lshl_b32 s%d, s98, 2" % S_T); pe_("v_add_u32 v23, s%d, v%d" % (S_T, G)); pe_("v_and_b32 v24, 7, v%d" % L); pe_("v_xor_b32 v23, v23, v24")
        if ro:
            pe_("s_and_b32 s%d, s2, 7" % S_T); pe_("s_lshl_b32 s%d, s%d, 2" % (S_T, S_T)); pe_("s_lshr_b32 s%d, 0x%x, s%d" % (S_T, sum(int(ch, 16) << (4*i) for i, ch in enumerate(ro)), S_T)); pe_("s_and_b32 s%d, s%d, 15" % (S_T, S_T))
            pe_("s_add_u32 s100, s100, s%d" % S_T)
        elif rrot:
            pe_("s_sub_u32 s%d, s%d, 5" % (S_T, S_PL)); pe_("s_cmp_ge_u32 s%d, 5" % S_PL); pe_("s_cselect_b32 s%d, s%d, s%d" % (S_T, S_T, S_PL)); pe_("s_mul_i32 s%d, s%d, %d" % (S_T, S_T, rrot))
            pe_("s_add_u32 s100, s100, s%d" % S_T)
        pe_("v_lshrrev_b32 v24, 3, v%d" % L); pe_("v_mul_u32_u24 v24, 1152, v24"); pe_("v_lshl_add_u32 v%d, v23, 4, v24" % V_XD)
        pe_("s_mul_i32 s%d, s100, 18432" % S_BASE)
        pe_("s_mul_i32 s%d, s98, 9216" % S_T); pe_("v_add_u32 v%d, s%d, v%d" % (V_XD, S_T, V_XD))
        pe_("s_mul_i32 s%d, s99, 18432" % S_T); pe_("s_add_u32 s%d, s%d, s%d" % (S_B2, S_BASE, S_T))
        pe_("s_lshl_b32 s%d, s%d, 10" % (S_W3L, S_W)); pe_("s_and_b32 s%d, s%d, 0xc00" % (S_W3L, S_W3L))
        pe_("s_mov_b32 s%d, %d" % (S_X+2, M*K*2)); pe_("s_mov_b32 s%d, 0x00020000" % (S_X+3))
    def late2():
        for t in range(1, 9):
            e("s_add_u32 s%d, s%d, 128" % (S_P+t, S_P+t-1)); e("s_cmp_eq_u32 s%d, 1152" % (S_P+t)); e("s_cselect_b32 s%d, 0, s%d" % (S_P+t, S_P+t))
        e("s_mov_b32 s%d, %d" % (S_O+2, M*N*2)); e("s_mov_b32 s%d, 0x00020000" % (S_O+3))
        if stamps:
            e("s_mov_b32 s38, %s" % ("256" if stamps == 2 else "0x10000000")); e("s_mov_b32 s39, 0x00020000")
    def tab_addr():
        e("v_lshrrev_b32 v23, 5, v0"); e("v_add_u32 v23, s101, v23"); e("v_subrev_u32 v24, 9, v23"); e("v_min_u32 v23, v23, v24")
        e("v_bfe_u32 v24, v0, 4, 1"); e("v_lshl_add_u32 v23, v23, 1, v24"); e("v_mul_u32_u24 v23, 9216, v23")
        e("v_and_b32 v24, 15, v0"); e("v_lshl_add_u32 v23, v24, 4, v23"); e("s_lshl_b32 s%d, s3, 8" % S_T); e("v_add_u32 v%d, s%d, v23" % (V_T0, S_T))
        for sr in (S_S, S_Z):
            e("s_mov_b32 s%d, %d" % (sr+2, 18*N*2)); e("s_mov_b32 s%d, 0x00020000" % (sr+3))
    if pro:
        assert kst and plm == 1 and not early
        S_R, S_PL, S_NC = 15, 13, 12
        if pst >= 0 and tl: PS.remove(4)
        if pst >= 0: PS.remove(12)
        e("s_load_dwordx2 s[%d:%d], s[0:1], 8" % (S_Q, S_Q+1))
        e("s_load_dwordx2 s[%d:%d], s[0:1], 16" % (S_S, S_S+1))
        e("s_load_dwordx2 s[%d:%d], s[0:1], 24" % (S_Z, S_Z+1))
        e("s_load_dwordx2 s[%d:%d], s[0:1], 0" % (S_X, S_X+1))
        e("s_load_dwordx2 s[%d:%d], s[0:1], 32" % (S_O, S_O+1))
        if stamps: e("s_load_dwordx2 s[36:37], s[0:1], %d" % (40 if stamps == 2 else 48))
        e("v_lshrrev_b32 v1, 6, v0")
        e("s_and_b32 s3, s2, 1"); e("s_lshl_b32 s3, s3, 5"); e("s_lshr_b32 s98, s2, 3"); e("s_add_u32 s3, s3, s98")
        e("v_readfirstlane_b32 s%d, v1" % S_W)
        e("s_cmp_eq_u32 s3, 63"); e("s_cbranch_scc1 L_done")
        e("v_and_b32 v%d, 63, v0" % L)
        e("s_mul_i32 s%d, s3, 37" % S_PL); e("s_lshr_b32 s%d, s%d, 8" % (S_PL, S_PL))
        e("v_lshrrev_b32 v23, 3, v%d" % L)
        e("s_mul_i32 s%d, s%d, 7" % (S_R, S_PL)); e("s_sub_u32 s%d, s3, s%d" % (S_R, S_R))
        e("v_mul_u32_u24 v23, %d, v23" % (4*18432))
        e("s_bfe_u32 s3, s2, 0x20001"); e("s_mul_i32 s3, s3, 9"); e("s_add_u32 s3, s3, s%d" % S_PL)
        e("v_and_b32 v24, 7, v0")
        cst = sum(int(ch) << (4*i) for i, ch in enumerate(kst))
        e("s_lshl_b32 s101, s%d, 2" % S_R); e("s_lshr_b32 s101, 0x%x, s101" % cst); e("s_and_b32 s101, s101, 15")
        e("v_lshl_add_u32 v23, v24, 4, v23")
        if xo:
            e("s_and_b32 s100, s2, 7"); e("s_lshl_b32 s100, s100, 2"); e("s_lshr_b32 s100, 0x%x, s100" % sum(int(ch) << (4*i) for i, ch in enumerate(xo))); e("s_and_b32 s100, s100, 15")
            e("s_add_u32 s101, s101, s100")
        else: e("s_add_u32 s101, s101, s%d" % S_PL)
        e("s_sub_u32 s100, s101, 9"); e("s_min_u32 s101, s100, s101")
        e("s_lshl_b32 s%d, s101, 7" % S_P)
        e("s_lshr_b32 s100, s%d, 2" % S_W)
        e("s_mul_i32 s%d, s100, %d" % (S_T, 32*18432)); e("s_lshl_b32 s%d, s3, 9" % S_U); e("s_add_u32 s%d, s%d, s%d" % (S_T, S_T, S_U))
        e("s_and_b32 s%d, s%d, 3" % (S_U, S_W)); e("s_lshl_b32 s%d, s%d, 7" % (S_U, S_U)); e("s_add_u32 s%d, s%d, s%d" % (S_T, S_T, S_U))
        e("v_add_u32 v%d, s%d, v23" % (V_QJ[0], S_T))
        e("s_mov_b32 s%d, %d" % (S_Q+2, K*N*4)); e("s_mov_b32 s%d, 0x00020000" % (S_Q+3))
        for j in range(1, 4): e("v_add_u32 v%d, %d, v%d" % (V_QJ[j], 18432*j, V_QJ[0]))
        tab_addr()
        pstamp()
        e("s_cmp_lg_u32 s100, 0"); e("s_cbranch_scc1 L_rh1")
    else:
        e("s_load_dwordx2 s[%d:%d], s[0:1], 16" % (S_S, S_S+1))
        e("s_load_dwordx2 s[%d:%d], s[0:1], 24" % (S_Z, S_Z+1))
        e("s_load_dwordx2 s[%d:%d], s[0:1], 8" % (S_Q, S_Q+1))
        e("s_load_dwordx2 s[%d:%d], s[0:1], 0" % (S_X, S_X+1))
        e("s_load_dwordx2 s[%d:%d], s[0:1], 32" % (S_O, S_O+1))
        if stamps: e("s_load_dwordx2 s[36:37], s[0:1], %d" % (40 if stamps == 2 else 48))
        e("s_and_b32 s3, s2, 1"); e("s_lshl_b32 s3, s3, 5"); e("s_lshr_b32 s98, s2, 3"); e("s_add_u32 s3, s3, s98")
        e("s_cmp_eq_u32 s3, 63"); e("s_cbranch_scc1 L_done")
        e("v_lshrrev_b32 v1, 6, v0")
        e("s_mul_i32 s98, s3, 37"); e("s_lshr_b32 s98, s98, 8")
        e("v_readfirstlane_b32 s%d, v1" % S_W)
        e("s_mul_i32 s99, s98, 7"); e("s_sub_u32 s99, s3, s99")
        e("s_bfe_u32 s3, s2, 0x20001"); e("s_mul_i32 s3, s3, 9"); e("s_add_u32 s3, s3, s98")
        e("s_cmp_lt_u32 s99, 2"); e("s_cselect_b32 s%d, 19, 18" % S_NB)
        e("s_min_u32 s100, s99, 2"); e("s_mul_i32 s101, s99, 18"); e("s_add_u32 s100, s100, s101")
        e("s_add_u32 s101, s100, s%d" % S_NB); e("s_mul_i32 s%d, s101, 18432" % S_END)
        e("s_mul_i32 s%d, s%d, 18432" % (S_SPAN, S_NB))
        if rrot:
            e("s_sub_u32 s101, s98, 5"); e("s_cmp_ge_u32 s98, 5"); e("s_cselect_b32 s101, s101, s98"); e("s_mul_i32 s101, s101, %d" % rrot)
            e("s_add_u32 s100, s100, s101")
        e("s_mul_i32 s%d, s100, 18432" % S_BASE)
        if early:
            e("s_add_u32 s101, s99, s3"); e("s_mul_i32 s100, s101, 37"); e("s_lshr_b32 s100, s100, 8"); e("s_mul_i32 s100, s100, 7")
            e("s_sub_u32 s101, s101, s100"); e("s_add_u32 s101, s101, 2")
            e("s_mov_b32 s%d, 0" % S_P); e("s_movk_i32 s%d, 128" % (S_P+1))
            for t in range(2, 8):
                e("s_cmp_le_u32 s101, %d" % t); e("s_cselect_b32 s%d, %d, %d" % (S_P+t, 64*(t+1), 64*t) if 0 else "s_cselect_b32 s%d, 128, 0" % (S_P+t)); e("s_add_u32 s%d, s%d, %d" % (S_P+t, S_P+t, 128*t))
            e("s_lshl_b32 s%d, s101, 7" % (S_P+8))
        else:
          if kst:
            cst = sum(int(ch) << (4*i) for i, ch in enumerate(kst))
            e("s_lshl_b32 s101, s99, 2"); e("s_lshr_b32 s101, 0x%x, s101" % cst); e("s_and_b32 s101, s101, 15")
            pc = sum(((plm*i) % 9) << (4*i) for i in range(8))
            e("s_lshl_b32 s100, s98, 2"); e("s_lshr_b32 s100, 0x%x, s100" % pc); e("s_and_b32 s100, s100, 15"); e("s_cmp_eq_u32 s98, 8"); e("s_cselect_b32 s100, %d, s100" % ((plm*8) % 9))
            e("s_add_u32 s101, s101, s100")
            e("s_sub_u32 s100, s101, 9"); e("s_cmp_ge_u32 s101, 9"); e("s_cselect_b32 s101, s100, s101")
          elif krot == 3:
            e("s_mul_i32 s101, s99, 11"); e("s_lshr_b32 s101, s101, 5"); e("s_mul_i32 s101, s101, 3"); e("s_sub_u32 s101, s99, s101"); e("s_mul_i32 s101, s101, 3"); e("s_add_u32 s101, s101, s98")
            e("s_sub_u32 s100, s101, 9"); e("s_cmp_ge_u32 s101, 9"); e("s_cselect_b32 s101, s100, s101")
          elif krot == 4:
            e("s_and_b32 s101, s99, 6"); e("s_add_u32 s101, s101, s98")
            e("s_sub_u32 s100, s101, 9"); e("s_cmp_ge_u32 s101, 9"); e("s_cselect_b32 s101, s100, s101")
          elif krot == 5:
            e("s_and_b32 s101, s99, 6"); e("s_cmp_eq_u32 s99, 5"); e("s_cselect_b32 s101, 6, s101"); e("s_cmp_eq_u32 s99, 6"); e("s_cselect_b32 s101, 8, s101"); e("s_add_u32 s101, s101, s98")
            e("s_sub_u32 s100, s101, 9"); e("s_cmp_ge_u32 s101, 9"); e("s_cselect_b32 s101, s100, s101")
          elif krot == 2:
            e("s_mov_b32 s101, s98")
          elif krot:
            e("s_lshl_b32 s101, s98, 1"); e("s_add_u32 s101, s101, s99")
            if r9:
                e("s_cmp_ge_u32 s99, 4"); e("s_addc_u32 s101, s101, 0")
            for _ in range(2):
                e("s_sub_u32 s100, s101, 9"); e("s_cmp_ge_u32 s101, 9"); e("s_cselect_b32 s101, s100, s101")
          else:
            e("s_mov_b32 s101, 0")
          e("s_lshl_b32 s%d, s101, 7" % S_P)
          for t in range(1, 9):
            e("s_add_u32 s%d, s%d, 128" % (S_P+t, S_P+t-1)); e("s_cmp_eq_u32 s%d, 1152" % (S_P+t)); e("s_cselect_b32 s%d, 0, s%d" % (S_P+t, S_P+t))
        for (sr, nb_) in ((S_S, 18*N*2), (S_Z, 18*N*2), (S_Q, K*N*4), (S_X, M*K*2), (S_O, M*N*2)):
            e("s_mov_b32 s%d, %d" % (sr+2, nb_)); e("s_mov_b32 s%d, 0x00020000" % (sr+3))
        if stamps:
            e("s_mov_b32 s38, %s" % ("256" if stamps == 2 else "0x10000000")); e("s_mov_b32 s39, 0x00020000")
        L, I, G = 20, 21, 22
        e("v_and_b32 v%d, 63, v0" % L); e("v_and_b32 v%d, 15, v0" % I); e("v_bfe_u32 v%d, v0, 4, 2" % G)
        e("s_and_b32 s98, s%d, 1" % S_W)
        e("s_bfe_u32 s99, s%d, 0x10001" % S_W)
        e("s_lshr_b32 s100, s%d, 2" % S_W)
        if early:
            e("v_lshrrev_b32 v23, 5, v0"); e("v_mov_b32 v25, s101"); e("v_cmp_le_u32 vcc, s101, v23"); e("v_add_u32 v24, 1, v23"); e("s_nop 0")
            e("v_cndmask_b32 v24, v23, v24, vcc"); e("v_cmp_eq_u32 vcc, 8, v23"); e("s_nop 1"); e("v_cndmask_b32 v23, v24, v25, vcc")
        else:
            e("v_lshrrev_b32 v23, 5, v0"); e("v_add_u32 v23, s101, v23"); e("v_subrev_u32 v24, 9, v23"); e("v_min_u32 v23, v23, v24")
        e("v_and_b32 v24, 1, v%d" % G); e("v_lshl_add_u32 v23, v23, 1, v24"); e("v_mul_u32_u24 v23, 9216, v23")
        e("v_lshl_add_u32 v23, v%d, 4, v23" % I); e("s_lshl_b32 s%d, s3, 8" % S_T); e("v_add_u32 v%d, s%d, v23" % (V_T0, S_T))
        e("s_mul_i32 s%d, s100, %d" % (S_T, 32*18432)); e("s_lshl_b32 s%d, s3, 9" % S_U); e("s_add_u32 s%d, s%d, s%d" % (S_T, S_T, S_U))
        e("s_and_b32 s%d, s%d, 3" % (S_U, S_W)); e("s_lshl_b32 s%d, s%d, 7" % (S_U, S_U)); e("s_add_u32 s%d, s%d, s%d" % (S_T, S_T, S_U))
        e("v_lshrrev_b32 v23, 3, v%d" % L); e("v_mul_u32_u24 v23, %d, v23" % (4*18432)); e("v_and_b32 v24, 7, v%d" % L)
        e("v_lshl_add_u32 v23, v24, 4, v23"); e("v_add_u32 v%d, s%d, v23" % (V_QJ[0], S_T))
        for j in range(1, 4): e("v_add_u32 v%d, %d, v%d" % (V_QJ[j], 18432*j, V_QJ[0]))
        e("s_lshl_b32 s%d, s98, 2" % S_T); e("v_add_u32 v23, s%d, v%d" % (S_T, G)); e("v_and_b32 v24, 7, v%d" % L); e("v_xor_b32 v23, v23, v24")
        e("v_lshrrev_b32 v24, 3, v%d" % L); e("v_mul_u32_u24 v24, 1152, v24"); e("v_lshl_add_u32 v%d, v23, 4, v24" % V_XD)
        e("s_mul_i32 s%d, s98, 9216" % S_T); e("v_add_u32 v%d, s%d, v%d" % (V_XD, S_T, V_XD))
        e("s_mul_i32 s%d, s99, 18432" % S_T); e("s_add_u32 s%d, s%d, s%d" % (S_B2, S_BASE, S_T))
        e("s_lshl_b32 s%d, s%d, 10" % (S_W3L, S_W)); e("s_and_b32 s%d, s%d, 0xc00" % (S_W3L, S_W3L))
        pstamp()
        e("s_cmp_lg_u32 s100, 0"); e("s_cbranch_scc1 L_rh1")


    TAB = 0
    WS = [5*4096, 9*4096]
    frag_list = [(j, t, e_) for t in range(9) for j in range(P1) for e_ in range(2)] + [(j, t, e_) for j in range(P1, 10) for t in range(9) for e_ in range(2)]
    fidx = {k: i for i, k in enumerate(frag_list)}
    NE = 9 + (10 - P1)
    first = [fidx[(0, t, 0)] for t in range(9)] + [fidx[(j, 0, 0)] for j in range(P1, 10)]
    bpos = [0] + [first[ep] - pf for ep in range(1, NE)]
    def ep_of(f): return max(ep for ep in range(NE) if bpos[ep] <= f)
    need = {(j, t): (t if j < P1 else 9 + j - P1) for j in range(10) for t in range(9)}
    free_at = {g: -99 for g in range(13, 40)}
    for g in range(0, 5): free_at[g] = 8
    for g in range(5, 9): free_at[g] = 9
    for g in range(9, 13): free_at[g] = 8
    order = []
    for t in range(9 + qa if qa else 0):
        if t - qa >= 0: order += [("x", j, t - qa) for j in range(P1)]
        if t < 9: order.append(("q", t))
    if qa:
        order.remove(("q", 0)); order.insert(0, ("q", 0))
        i0 = [("x", j, 0) for j in range(P1)]
        for it in i0: order.remove(it)
        order[1:1] = i0
    for t in range(0 if qa else 9):
        if t == 2 and early:
            order.append(("q", 8))
            if early >= 2: order += [("x", j, 8) for j in range(P1)]
        if not (early and t == 8): order.append(("q", t))
        if not (early >= 2 and t == 8): order += [("x", j, t) for j in range(P1)]
    order += [("x", j, t) for j in range(P1, 10) for t in range(9)]
    def pos_of(it):
        t = it[-1]
        if qa: return t if it[0] == "x" else (0 if t == 0 else max(t - qa, 1 if n0 == 1 else 0))
        if not early: return t
        if t == 8 and (it[0] == "q" or early >= 2): return 2
        return t if t < 2 else t + 1
    issue = {}; gran = {}
    pend = list(order)
    for ep in [-2, -1] + list(range(NE)):
        n = 0
        while pend:
            it = pend[0]
            step = pos_of(it) if (it[0] == "q" or it[1] < P1) else 99
            lim = n0 if ep == -2 else (n1 if ep == -1 else min(ep + D + 1 + (1 if early else 0), n1 + 2*(ep+1)))
            if step < 99 and step >= lim: break
            cap_ = int(caps[ep-6], 16) if (caps and 0 <= ep-6 < len(caps)) else cap
            if step == 99: n2 = len([1 for k_ in issue if k_[0] == 'x' and k_[1] >= P1 and issue[k_] == ep])
            if step == 99 and (lim < 9 or (n2 if caps else n) >= cap_ or ep < p2s): break
            if it[0] == "x":
                cands = sorted(g for g in free_at if free_at[g] <= ep)
                if not cands: break
                g = cands[0]; gran[it[1:]] = g
                free_at[g] = ep_of(fidx[(it[1], it[2], 1)]) + 1
                assert ep < need[it[1:]], (it, ep)
                n += 1
            else:
                assert ep < it[1] - 1 or it[1] == 0 or (it[1] == 1 and ep <= -1), (it, ep)
            issue[it] = ep; pend.pop(0)
    assert not pend
    if stamps or 1:
        sys.stderr.write("issue: " + " ".join("%d:[%s]" % (ep, ",".join(("q%d" % k[1] if k[0] == "q" else "%d.%d" % k[1:]) for k in order if issue[k] == ep)) for ep in [-2, -1] + list(range(NE))) + "\n")

    def xowner(j, t):
        ep = issue[("x", j, t)]
        if ep < 0: return (j + t) % 2
        lst = [it for it in order if it[0] == "x" and issue[it] == ep]
        i = lst.index(("x", j, t)); n = len(lst)
        x_ = xs if ep < 9 else xs2
        if ep == 7 and xs7 >= 0: x_ = xs7
        if ep == 8 and xs8 >= 0: x_ = xs8
        if x_ == 0: return (j + t) % 2
        return 0 if ((i+1)*x_)//6 != (i*x_)//6 else 1
    def xaddr(off, e_):
        return V_X + 2*(off >> 16) + e_, off & 0xffff

    lbl = [0]
    for rh in range(2):
        p = Prog(a); pe = p.e; p.sw = sw
        if rh: a.lab("L_rh1")
        if prio and rh == 1: pe("s_setprio %d" % prio)
        dj_done = set()
        def mk_dj(j):
            if j in dj_done: return
            dj_done.add(j)
            d = S_DJ + j
            pe("s_add_u32 s%d, s%d, %d" % (d, S_B2, 2*j*18432)); pe("s_cmp_ge_u32 s%d, s%d" % (d, S_END))
            pe("s_cselect_b32 s%d, s%d, 0" % (S_U, S_SPAN)); pe("s_sub_u32 s%d, s%d, s%d" % (d, d, S_U))
            if j == 9:
                pe("s_add_u32 s%d, s%d, 18" % (S_U, S_JH)); pe("s_cmp_ge_u32 s%d, s%d" % (S_U, S_NB)); pe("s_cselect_b32 s%d, 0x40000000, s%d" % (d, d))
        def load_ops(ep):
            ops = []
            for it in order:
                if issue[it] != ep: continue
                if it[0] == "q":
                    t = it[1]
                    if (abl & 4) and t >= 1: continue
                    for j in range(4):
                        def f(j=j, t=t):
                            if j == 0: pe("s_mul_i32 s%d, s%d, 9216" % (S_QO, S_P+t))
                            r = V_W + 16*t + 4*j
                            p.vmem("buffer_load_dwordx4 v[%d:%d], v%d, s[%d:%d], s%d offen %s" % (r, r+3, V_QJ[j], S_Q, S_Q+3, S_QO, qpol), ("q", t, j))
                        ops.append(f)
                else:
                    j, t = it[1:]
                    if xowner(j, t) != rh: continue
                    if (abl & 8) and t >= 1 and j < P1: continue
                    if (abl & 2048) and j >= P1: continue
                    def f(j=j, t=t):
                        mk_dj(j)
                        pe("s_add_u32 m0, s%d, %d" % (S_W3L, gran[(j, t)]*4096))
                        pe("s_add_u32 s%d, s%d, s%d" % (S_T, S_DJ+j, S_P+t))
                        p.vmem("buffer_load_dwordx4 v%d, s[%d:%d], s%d offen lds %s" % (V_XD, S_X, S_X+3, S_T, xpol), ("x", need[(j, t)]))
                    ops.append(f)
            if tl and rh == th:
                ks_ = sorted(set(int(ch) for ch in kst)); ncl = [((ks_[(i + 1) % len(ks_)] - ks_[i] - 1) % 9) + 1 for i in range(len(ks_))]
                ts = [t for t in range(t0, max(ncl)) if (max(tp, (t - tl) // tn) if t - tl >= 0 else tp) == ep]
                tops = []
                for t in ts:
                    def f(t=t):
                        pe("s_mul_i32 s%d, s%d, 9216" % (S_U, S_P+t))
                        if t >= min(ncl): pe("s_cmp_gt_u32 s%d, %d" % (S_NC, t)); pe("s_cselect_b32 s%d, s%d, 0x40000000" % (S_U, S_U))
                        p.vmem("buffer_load_dword v%d, v%d, s[%d:%d], s%d offen %s" % (V_T0, V_WA1, S_Q, S_Q+3, S_U, tpol), ("tch", t))
                    tops.append(f)
                k_ = len(ops) if (tpos == 0 or ep < 0) else tpos - 1
                ops = ops[:k_] + tops + ops[k_:]
            return ops
        def touch_addr():
            n_ = 64*512 // tg; sh = 2 if tg == 128 else 3
            ks = [int(ch) for ch in kst]; st = sorted(set(ks))
            rank = [ks[:r].count(ks[r]) for r in range(7)]
            cw4 = [-(-n_ // (ks.count(k_) * tw * 4)) for k_ in ks]
            ncs = [((st[(st.index(k_) + 1) % len(st)] - k_ - 1) % 9) + 1 for k_ in ks]
            assert max(cw4) <= 16
            nib = lambda l_: sum(v << (4*i) for i, v in enumerate(l_))
            pe("s_lshl_b32 s%d, s%d, 2" % (S_U, S_R))
            pe("s_lshr_b32 s%d, 0x%x, s%d" % (S_NC, nib(ncs), S_U)); pe("s_and_b32 s%d, s%d, 15" % (S_NC, S_NC))
            pe("s_lshr_b32 s4, 0x%x, s%d" % (nib([c - 1 for c in cw4]), S_U)); pe("s_and_b32 s4, s4, 15"); pe("s_lshl_b32 s4, s4, 2"); pe("s_add_u32 s4, s4, 4")
            pe("s_lshr_b32 s5, 0x%x, s%d" % (nib(rank), S_U)); pe("s_and_b32 s5, s5, 15"); pe("s_mul_i32 s5, s5, %d" % tw)
            pe("s_and_b32 s%d, s%d, 3" % (S_T, S_W)); pe("s_add_u32 s5, s5, s%d" % S_T); pe("s_mul_i32 s5, s5, s4")
            pe("s_cmp_lt_u32 s%d, %d" % (S_T, tw)); pe("s_cselect_b32 s4, s4, 0")
            pe("v_add_u32 v17, s5, v%d" % L)
            pe("v_lshrrev_b32 v18, %d, v17" % sh); pe("v_mul_u32_u24 v18, 18432, v18"); pe("v_and_b32 v19, %d, v17" % ((1 << sh) - 1))
            pe("v_lshl_add_u32 v18, v19, %d, v18" % (9 - sh)); pe("s_lshl_b32 s%d, s3, 9" % S_T); pe("v_add_u32 v18, s%d, v18" % S_T)
            pe("v_mov_b32 v19, 0x40000000")
            pe("v_cmp_gt_u32 vcc, s4, v%d" % L); pe("s_movk_i32 s%d, %d" % (S_U, n_)); pe("s_nop 0"); pe("v_cndmask_b32 v18, v19, v18, vcc")
            pe("v_cmp_gt_u32 vcc, s%d, v17" % S_U); pe("s_nop 1"); pe("v_cndmask_b32 v%d, v19, v18, vcc" % V_WA1)
        if pro:
            if rh == 1:
                pe("s_cmp_eq_u32 s%d, 4" % S_W); pe("s_cselect_b32 exec_lo, -1, 0"); pe("s_mov_b32 exec_hi, 0")
            pstamp(rh)
            pe("s_waitcnt lgkmcnt(0)")
            pstamp(rh)
            tb = 48 if rh else 24
            p.vmem("buffer_load_dwordx4 v[%d:%d], v%d, s[%d:%d], 0 offen" % (tb, tb+3, V_T0, S_S, S_S+3), "tab")
            p.vmem("buffer_load_dwordx4 v[%d:%d], v%d, s[%d:%d], 0 offen" % (tb+4, tb+7, V_T0, S_Z, S_Z+3), "tab")
            if rh == 1: pe("s_mov_b64 exec, -1")
            l0 = load_ops(-2)
            for f in l0[:4]: f()
            sv_out = len(a.out)
            late_scalars()
            a.out[sv_out:] = [l.replace("v23", "v16").replace("v24", "v17") for l in a.out[sv_out:]]
            nx0 = len([1 for it in order if issue[it] == -2 and it[0] == "x" and xowner(it[1], it[2]) == rh])
            xlate = []
            if xd0 & (1 << rh): xlate = l0[4:4+nx0]
            else:
                for f in l0[4:4+nx0]: f()
            pstamp(rh)
            late2()
            if tl and rh == th: touch_addr()
            if not xlate:
                for f in l0[4+nx0:]: f()
        else:
            for it in order:
                if issue[it] == -2 and it[0] == "x" and xowner(it[1], it[2]) == rh: mk_dj(it[1])
            if rh == 1:
                pe("v_mov_b32 v%d, 0x7fffffff" % V_T1); pe("v_cmp_gt_u32 vcc, 288, v0"); pe("s_nop 1"); pe("v_cndmask_b32 v%d, v%d, v%d, vcc" % (V_T0, V_T1, V_T0))
            pstamp(rh)
            pe("s_waitcnt lgkmcnt(0)")
            pstamp(rh)
            p.vmem("buffer_load_dwordx4 v[24:27], v%d, s[%d:%d], 0 offen" % (V_T0, S_S, S_S+3), "tab")
            p.vmem("buffer_load_dwordx4 v[28:31], v%d, s[%d:%d], 0 offen" % (V_T0, S_Z, S_Z+3), "tab")
            for f in load_ops(-2): f()
            if stamps and stamps < 3 and not SL: a.stamp(1)
            pstamp(rh)
        pe("v_lshrrev_b32 v16, 2, v%d" % L); pe("v_mul_u32_u24 v16, 9216, v16"); pe("v_and_b32 v17, 3, v%d" % L); pe("v_lshl_add_u32 v16, v17, 4, v16")
        pe("s_lshr_b32 s%d, s%d, 4" % (S_T, S_W3L)); pe("s_lshl_b32 s%d, s3, 8" % S_U); pe("s_add_u32 s%d, s%d, s%d" % (S_T, S_T, S_U)); pe("v_add_u32 v%d, s%d, v16" % (V_OUT, S_T))
        if sw:
            pe("v_mul_u32_u24 v16, 9216, v%d" % I); pe("v_lshl_add_u32 v16, v%d, 4, v16" % G); pe("v_add_u32 v%d, s%d, v16" % (V_OUT, S_T))
        if epi == 1:
            pe("v_and_b32 v16, 3, v%d" % I); pe("v_lshlrev_b32 v16, 4, v16"); pe("v_lshrrev_b32 v17, 3, v%d" % I); pe("v_lshl_add_u32 v16, v17, 3, v16")
            pe("v_bfe_u32 v17, v%d, 2, 1" % I); pe("v_lshl_add_u32 v16, v17, 2, v16"); pe("v_mul_u32_u24 v17, %d, v%d" % (4*9216, G)); pe("v_add_u32 v16, v16, v17")
            pe("v_add_u32 v%d, s%d, v16" % (V_E, S_T))
            for r in range(1, 4): pe("v_add_u32 v%d, %d, v%d" % (V_E+r, 9216*r, V_E))
        if fseg == 128:
            pe("v_lshrrev_b32 v16, 3, v%d" % L); pe("v_mul_u32_u24 v16, 9216, v16"); pe("v_and_b32 v17, 7, v%d" % L); pe("v_lshl_add_u32 v16, v17, 4, v16")
            pe("s_and_b32 s%d, s%d, 1" % (S_T, S_W)); pe("s_lshl_b32 s%d, s%d, 7" % (S_T, S_T)); pe("s_add_u32 s%d, s%d, s%d" % (S_U, S_T, S_U))
            pe("s_bfe_u32 s%d, s%d, 0x10001" % (S_T, S_W)); pe("s_mul_i32 s%d, s%d, %d" % (S_T, S_T, 8*9216)); pe("s_add_u32 s%d, s%d, s%d" % (S_T, S_T, S_U)); pe("v_add_u32 v%d, s%d, v16" % (V_OUT, S_T))
        if fseg == 256:
            pe("v_lshrrev_b32 v16, 4, v%d" % L); pe("v_mul_u32_u24 v16, 9216, v16"); pe("v_and_b32 v17, 15, v%d" % L); pe("v_lshl_add_u32 v16, v17, 4, v16")
            pe("s_and_b32 s%d, s%d, 3" % (S_T, S_W)); pe("s_mul_i32 s%d, s%d, %d" % (S_T, S_T, 4*9216)); pe("s_add_u32 s%d, s%d, s%d" % (S_T, S_T, S_U)); pe("v_add_u32 v%d, s%d, v16" % (V_OUT, S_T))
        pe("v_bfe_u32 v16, v%d, 2, 1" % I); pe("v_and_b32 v17, 3, v%d" % I); pe("v_lshlrev_b32 v17, 1, v17"); pe("v_lshrrev_b32 v18, 3, v%d" % I); pe("v_add_u32 v17, v17, v18")
        if sw: pe("v_and_b32 v16, 1, v%d" % I); pe("v_lshrrev_b32 v17, 1, v%d" % I)
        pe("v_lshlrev_b32 v17, 4, v17"); pe("v_lshl_add_u32 v17, v16, 10, v17"); pe("v_lshl_add_u32 v17, v%d, 7, v17" % G)
        pe("s_lshl_b32 s%d, s%d, 1" % (S_T, S_W3L)); pe("v_add_u32 v%d, s%d, v17" % (V_WR, S_T))
        pe("v_and_b32 v16, 7, v%d" % I); pe("v_lshlrev_b32 v16, 4, v16"); pe("v_lshl_add_u32 v17, v18, 3, v16"); pe("v_lshl_add_u32 v17, v%d, 7, v17" % G)
        pe("s_add_u32 s%d, s%d, %d" % (S_T, S_T, rh*8192)); pe("v_add_u32 v%d, s%d, v17" % (V_WA0, S_T))
        pe("s_lshr_b32 s%d, s%d, 3" % (S_T, S_W3L)); pe("s_add_u32 s%d, s%d, %d" % (S_T, S_T, rh*1024 + TAB)); pe("v_add_u32 v%d, s%d, v16" % (V_TAB, S_T))
        pe("v_lshrrev_b32 v16, 1, v%d" % I); pe("v_xor_b32 v16, v16, v%d" % G); pe("v_lshlrev_b32 v16, 4, v16"); pe("v_lshl_add_u32 v%d, v%d, 7, v16" % (V_X, I))
        if rh: pe("v_add_u32 v%d, 2048, v%d" % (V_X, V_X))
        pe("v_xor_b32 v%d, 64, v%d" % (V_X+1, V_X))
        for w_ in (1, 2):
            pe("v_add_u32 v%d, %d, v%d" % (V_X+2*w_, w_ << 16, V_X)); pe("v_add_u32 v%d, %d, v%d" % (V_X+2*w_+1, w_ << 16, V_X+1))
        pe("v_lshrrev_b32 v16, 4, v0"); pe("v_lshlrev_b32 v16, 10, v16"); pe("v_lshl_add_u32 v%d, v%d, 5, v16" % (V_T1, I))
        pe("s_mov_b32 s%d, 0x00ff00ff" % S_M8); pe("s_mov_b32 s%d, 0x00ff00ff" % (S_M8+1)); pe("s_not_b64 s[%d:%d], s[%d:%d]" % (S_M8N, S_M8N+1, S_M8, S_M8+1))
        pe("s_mov_b32 s%d, 0x0f0f0f0f" % S_M4); pe("s_mov_b32 s%d, 0x0f0f0f0f" % (S_M4+1)); pe("s_not_b64 s[%d:%d], s[%d:%d]" % (S_M4N, S_M4N+1, S_M4, S_M4+1))
        def tab_build(tb, T0):
            if rh == 1:
                pe("s_cmp_lg_u32 s%d, 4" % S_W); pe("s_cbranch_scc1 L_notab")
                pe("s_mov_b32 exec_hi, 0")
            sv = p.vmdone
            p.wait(vm=lambda x: x == "tab")
            if not (pro and rh): pstamp(rh)
            for c in range(4):
                pe("v_lshlrev_b32 v%d, 16, v%d" % (T0+2*c, tb+c)); pe("v_and_b32 v%d, 0xffff0000, v%d" % (T0+1+2*c, tb+c))
                pe("v_lshlrev_b32 v%d, 16, v%d" % (T0+8+2*c, tb+4+c)); pe("v_and_b32 v%d, 0xffff0000, v%d" % (T0+9+2*c, tb+4+c))
            if not fm: pe("ds_write_b128 v%d, v[%d:%d] offset:%d" % (V_T1, T0, T0+3, TAB)); pe("ds_write_b128 v%d, v[%d:%d] offset:%d" % (V_T1, T0+4, T0+7, TAB+16))
            for c in range(8): pe("v_mul_f32 v%d, -v%d, v%d" % (T0+8+c, T0+8+c, T0+c))
            pe("ds_write_b128 v%d, v[%d:%d] offset:%d" % (V_T1, T0+8, T0+11, TAB+512)); pe("ds_write_b128 v%d, v[%d:%d] offset:%d" % (V_T1, T0+12, T0+15, TAB+528))
            if fm:
                for c in range(8): pe("v_mul_f32 v%d, 0x4b800000, v%d" % (T0+c, T0+c))
                pe("ds_write_b128 v%d, v[%d:%d] offset:%d" % (V_T1, T0, T0+3, TAB)); pe("ds_write_b128 v%d, v[%d:%d] offset:%d" % (V_T1, T0+4, T0+7, TAB+16))
            pe("s_waitcnt lgkmcnt(0)")
            if rh == 1:
                pe("s_mov_b32 exec_hi, -1")
                a.lab("L_notab")
                p.vmdone = sv
        if not (pro and rh): tab_build(24, 32)
        else: pstamp(rh)
        if pro and xlate and not (xd0 & 4):
            for f in l0[4:]: f()
        pe("s_barrier")
        if pro and xlate and (xd0 & 4):
            for f in l0[4:]: f()
        pstamp(rh)
        def tab_reads(t):
            p.lds("ds_read_b128 v[%d:%d], v%d offset:%d" % (V_S, V_S+3, V_TAB, t*2048), ("t", t))
            p.lds("ds_read_b128 v[%d:%d], v%d offset:%d" % (V_NZ, V_NZ+3, V_TAB, t*2048+512), ("t", t))
        def dequant(t):
            R = V_W + 16*t
            ops = []
            for j in range(4):
                ops.append((0, lambda j=j: p.wait(vm=lambda x: x == ("q", t, j))))
                if fm:
                    if fm & 1:
                        if j == 0:
                            ops.append((1, lambda: pe("v_or3_b32 v%d, v%d, v%d, v%d" % (V_T0, R, R+1, R+2))))
                            ops.append((1, lambda: pe("v_or_b32 v%d, v%d, v%d" % (V_T0, V_T0, R+3))))
                        else:
                            for c in (0, 2): ops.append((1, lambda x=4*j+c: pe("v_or3_b32 v%d, v%d, v%d, v%d" % (V_T0, V_T0, R+x, R+x+1))))
                        if j == 3:
                            ops.append((1, lambda: pe("v_cmp_lt_u32 vcc, 0x3ff, v%d" % V_T0)))
                            ops.append((0, lambda: pe("s_cbranch_vccnz L_done")))
                elif not (abl & 129):
                    for c in range(4): ops.append((1, lambda x=4*j+c: pe("v_cvt_f32_i32 v%d, v%d" % (R+x, R+x))))
            def wt():
                assert ("t", t) in p.lg or abl
                p.wait(lg=lambda x: x == ("t", t))
            ops.append((0, wt))
            for c in range(4):
                if abl & 1:
                    if not (abl & 2): ops.append((0, lambda c=c: p.lds("ds_write_b64 v%d, v[%d:%d] offset:%d" % (V_WA0, V_PK+2*c, V_PK+2*c+1, WS[t % 2] + c*512), ("w", t))))
                    continue
                if pk:
                    if c % 2 == 0:
                        for j in range(4): ops.append((1, lambda x=4*j+c: pe("v_pk_fma_f32 v[%d:%d], v[%d:%d], v[%d:%d], v[%d:%d]" % (R+x, R+x+1, R+x, R+x+1, V_S+(x & 3), V_S+(x & 3)+1, V_NZ+(x & 3), V_NZ+(x & 3)+1))))
                elif fm:
                    if (fm & 4) and t < fck:
                        for j in (0, 2): ops.append((1, lambda x=4*j+c: pe("v_or3_b32 v%d, v%d, v%d, v%d" % (V_T0, V_T0, R+x, R+x+4))))
                    for j in range(4): ops.append((1, lambda x=4*j+c: pe("v_fma_mix_f32 v%d, v%d, v%d, v%d op_sel_hi:[1,0,0]" % (R+x, R+x, V_S+(x & 3), V_NZ+(x & 3)))))
                else:
                    for j in range(4): ops.append((1, lambda x=4*j+c: pe("v_fma_f32 v%d, v%d, v%d, v%d" % (R+x, R+x, V_S+(x & 3), V_NZ+(x & 3)))))
                ops.append((1, lambda c=c: pe("v_cvt_pk_bf16_f32 v%d, v%d, v%d" % (V_PK+2*c, R+c, R+4+c))))
                ops.append((1, lambda c=c: pe("v_cvt_pk_bf16_f32 v%d, v%d, v%d" % (V_PK+2*c+1, R+8+c, R+12+c))))
                if not (abl & 2) and not ((abl & 4096) and rh == 0 and t >= 1): ops.append((0, lambda c=c: p.lds("ds_write_b64 v%d, v[%d:%d] offset:%d" % (V_WA0, V_PK+2*c, V_PK+2*c+1, WS[t % 2] + c*512), ("w", t)), "w"))
            if wdel:
                o2 = []; held = []
                for o in ops:
                    if len(o) == 3: held.append([wdel, o[:2]]); continue
                    o2.append(o)
                    if o[0]:
                        for h in held: h[0] -= 1
                        while held and held[0][0] <= 0: o2.append(held.pop(0)[1])
                o2 += [h[1] for h in held]
                ops = o2
            ops = [o[:2] for o in ops]
            return ops
        def epilogue(acc, idx):
            ops = []
            V_D, V_E, V_O = (acc, acc+4, acc) if ipe else (48, 52, 56)
            def firstop():
                p.need_mfma_done(acc); p.need_mfma_done(acc+4)
                pe("v_cvt_pk_bf16_f32 v%d, v%d, v%d" % (V_D, acc, acc+4))
            ops.append((1, firstop))
            for r in range(1, 4): ops.append((1, lambda r=r: pe("v_cvt_pk_bf16_f32 v%d, v%d, v%d" % (V_D+r, acc+r, acc+4+r))))
            if epi == 1:
                ops = []
                dd = V_D if idx % 4 < 2 else V_O
                def firstop():
                    p.need_mfma_done(acc); p.need_mfma_done(acc+4)
                    pe("s_add_u32 s%d, s%d, %d" % (S_EO, S_BASE, idx*18432)); pe("s_cmp_ge_u32 s%d, s%d" % (S_EO, S_END)); pe("s_cselect_b32 s%d, s%d, 0" % (S_INV, S_SPAN))
                    pe("v_cvt_pk_bf16_f32 v%d, v%d, v%d" % (dd, acc, acc+4))
                    pe("s_sub_u32 s%d, s%d, s%d" % (S_EO, S_EO, S_INV)); pe("s_lshl_b32 s%d, s%d, 3" % (S_EO, S_EO))
                ops.append((1, firstop))
                for r in range(1, 4): ops.append((1, lambda r=r: pe("v_cvt_pk_bf16_f32 v%d, v%d, v%d" % (dd+r, acc+r, acc+4+r))))
                for r in range(4): ops.append((stc, lambda r=r: p.vmem("buffer_store_dword v%d, v%d, s[%d:%d], s%d offen %s" % (dd+r, V_E+r, S_O, S_O+3, S_EO, spol), "st")))
                return ops
            if sw:
                ops.insert(1, (0, lambda: (pe("s_add_u32 s%d, s%d, %d" % (S_EO, S_BASE, idx*18432)), pe("s_cmp_ge_u32 s%d, s%d" % (S_EO, S_END)), pe("s_cselect_b32 s%d, s%d, 0" % (S_INV, S_SPAN)))))
                ops.insert(3, (0, lambda: (pe("s_sub_u32 s%d, s%d, s%d" % (S_EO, S_EO, S_INV)), pe("s_lshl_b32 s%d, s%d, 3" % (S_EO, S_EO)))))
                ops.append((0, lambda: p.vmem("buffer_store_dwordx4 v[%d:%d], v%d, s[%d:%d], s%d offen %s" % (V_D, V_D+3, V_OUT, S_O, S_O+3, S_EO, spol), "st")))
                return ops
            def dpp(d, s0, s1, ror): pe("v_cndmask_b32_dpp v%d, v%d, v%d, vcc row_ror:%d row_mask:0xf bank_mask:0xf" % (d, s0, s1, ror))
            ops.append((0, lambda: (pe("s_mov_b64 vcc, s[%d:%d]" % (S_M8, S_M8+1)), pe("s_add_u32 s%d, s%d, %d" % (S_EO, S_BASE, idx*18432)))))
            ops.append((1, lambda: dpp(V_E+0, V_D+2, V_D+0, 8)))
            ops.append((1, lambda: dpp(V_E+1, V_D+3, V_D+1, 8)))
            ops.append((0, lambda: (pe("s_mov_b64 vcc, s[%d:%d]" % (S_M8N, S_M8N+1)), pe("s_cmp_ge_u32 s%d, s%d" % (S_EO, S_END)), pe("s_cselect_b32 s%d, s%d, 0" % (S_INV, S_SPAN)))))
            ops.append((1, lambda: dpp(V_E+2, V_D+0, V_D+2, 8)))
            ops.append((1, lambda: dpp(V_E+3, V_D+1, V_D+3, 8)))
            ops.append((0, lambda: (pe("s_mov_b64 vcc, s[%d:%d]" % (S_M4, S_M4+1)), pe("s_sub_u32 s%d, s%d, s%d" % (S_EO, S_EO, S_INV)))))
            ops.append((1, lambda: dpp(V_O+0, V_E+1, V_E+0, 4)))
            ops.append((1, lambda: dpp(V_O+2, V_E+3, V_E+2, 4)))
            ops.append((0, lambda: (pe("s_mov_b64 vcc, s[%d:%d]" % (S_M4N, S_M4N+1)), pe("s_lshl_b32 s%d, s%d, 3" % (S_EO, S_EO)))))
            ops.append((1, lambda: dpp(V_O+1, V_E+0, V_E+1, 12)))
            ops.append((1, lambda: dpp(V_O+3, V_E+2, V_E+3, 12)))
            if abl & 1024: ops = [(c_, (lambda: None) if c_ else f_) for c_, f_ in ops]
            if abl & 8192:
                def st_():
                    lbl[0] += 1
                    pe("s_cmp_lg_u32 s%d, 0" % S_W3L); pe("s_cbranch_scc1 L_s%d" % lbl[0])
                    pe("buffer_store_dwordx4 v[%d:%d], v%d, s[%d:%d], s%d offen %s" % (V_O, V_O+3, V_OUT, S_O, S_O+3, S_EO, spol))
                    a.lab("L_s%d" % lbl[0])
                ops.append((0, st_))
            elif not (abl & 256) or ((abl & 512) and idx >= 12): ops.append((0, lambda: p.vmem("buffer_store_dwordx4 v[%d:%d], v%d, s[%d:%d], s%d offen %s" % (V_O, V_O+3, V_OUT, S_O, S_O+3, S_EO, spol), "st")))
            return ops
        def guarantees(ep):
            p.wait(vm=lambda x: x[0] == "x" and x[1] <= ep, lg=lambda x: x == ("w", ep))
        tab_reads(0)
        lds_ = load_ops(-1)
        dq = dequant(0)
        k = 0
        for i, (c, f) in enumerate(dq):
            f()
            if i in (0, 15): pstamp(rh)
            if c and i % mid == mid0 and k < len(lds_): lds_[k](); k += 1
        if pro == 2 and rh: tab_build(48, 60)
        while k < len(lds_): lds_[k](); k += 1
        if pro == 1 and rh: tab_build(48, 60)
        nF = len(frag_list) - (18 if rh else 0)
        def acc_of(j): return V_A1 + 8*j if j < P1 else V_S + 8*((j - P1) % 2)
        freg = {}
        def frag_read(f, b=None):
            j, t, e_ = frag_list[f]
            if b is None: b = XF[f % len(XF)]
            r, o = xaddr(gran[(j, t)]*4096, e_)
            if not ((abl & 32) and f > 4): p.lds("ds_read_b128 v[%d:%d], v%d offset:%d" % (b, b+3, r, o), ("f", f))
            freg[f] = b
        dqq = []; dq_at = 0
        epq = []
        ldq = []; ld_at = 0
        m = 0; ntr = 0; cur_ep = -1; m_tr = 0; hq = []
        def run_fill(budget):
            while dqq and m >= dq_at and (budget > 0 or dqq[0][0] == 0):
                c, f = dqq.pop(0); f(); budget -= c
            return budget
        def run_ep(budget):
            while epq and m >= epq[0][0] and (budget > 0 or epq[0][2][0][0] == 0):
                c, f = epq[0][2].pop(0); f(); budget -= c
                if not epq[0][2]: epq.pop(0)
        def flush_ep(upto_acc=None):
            k_ = 0
            while epq and (upto_acc is None or any(x[1] == upto_acc for x in epq)):
                c, f = epq[0][2].pop(0); f(); k_ += 1
                if not epq[0][2]: epq.pop(0)
            if k_ and ipe and upto_acc is not None: pe("s_nop 1")
        def seq_of(f):
            o_ = od if frag_list[f][0] < P1 else od2
            if o_ == 0: return [(0, 0), (1, 0), (0, 1), (1, 1)]
            if o_ == 1: return [(0, 0), (0, 1), (1, 0), (1, 1)]
            if o_ == 3 or (f // 2) % 2 == 0: return [(0, 0), (0, 1), (1, 1), (1, 0)]
            return [(1, 0), (1, 1), (0, 1), (0, 0)]
        acc_used = set()
        for f in range(nF):
            j, t, e_ = frag_list[f]
            if f in bpos:
                ep = bpos.index(f)
                while ldq: ldq.pop(0)()
                while dqq: dqq.pop(0)[1]()
                if rh == trh and ep == trace + 1 and trace >= 0: a.cstamp(ntr, TR); ntr += 1
                if ep == 0: pstamp(rh)
                guarantees(ep)
                if rh == trh and ep == trace + 1 and trace >= 0: a.cstamp(ntr, TR); ntr += 1
                if not ((abl & 64) and 1 <= ep <= 8): pe("s_barrier")
                if rh == trh and ep in (trace, trace + 1) and trace >= 0: a.cstamp(ntr, TR); ntr += 1; m_tr = m
                cur_ep = ep; m_ep = m
                if ep <= 2 and pst == rh: pstamp(rh); p.lg_all()
                if rh == 1 and (pt1 if ep < 9 else pt2): pe("s_setprio %d" % pth); cur_pr = pth
                elif rh == 1 and ep == 9 and pt1: pe("s_setprio %d" % prio)
                if SL and ep in SL and rh == 0:
                    a.stamp(1 + SL.index(ep)); p.lg_all()
                if stamps and stamps < 3 and ep in (0, smid, 9) and not SL:
                    a.stamp({0: 2, smid: 3, 9: 4}[ep]); p.lg_all()
                hq = []
                h_ = hw if (rh == 0 or hw1 < 0) else hw1
                if ep <= 8 and not ((abl & 16) and ep >= 1):
                    for i_, (c, ks) in enumerate(seq_of(first[ep])):
                        if 1:
                            def wr(ks=ks, c=c, ep=ep):
                                r = V_W + 16*ep + 8*ks + 4*c
                                p.lds("ds_read_b128 v[%d:%d], v%d offset:%d" % (r, r+3, V_WR, WS[ep % 2] + ks*8192 + c*512), ("W", ep, ks, c))
                            if h_ and ep >= 1: hq.append([m + h_ + wst*i_, wr])
                            else: wr()
                if ep == 0:
                    for f2 in range(pf + (1 if od else 0)): frag_read(f2)
                if ep + 1 <= 8:
                    if not (abl & 16) and not (tabe == 1 and ep >= 1):
                        if tabe == 2 and ep >= 1: hq.append([m + h_ + 4*wst, lambda ep=ep: tab_reads(ep+1)])
                        else: tab_reads(ep+1)
                    dqq = dequant(ep+1); dq_at = m + (dq1 if rh else dq0)
                    if tabe == 1 and ep + 2 <= 8:
                        k_ = max(i for i, (c_, f_) in enumerate(dqq) if c_) - 2
                        dqq.insert(k_ + 1, (0, lambda ep=ep: tab_reads(ep+2)))
                ldq = load_ops(ep)
                nM = 2*((bpos[ep+1] if ep+1 < NE else nF) - f)
                n_ = len(ldq)
                l0_ = ld0
                if ep == 7 and e7 >= 0: l0_ = e7
                if ep == 8 and e8 >= 0: l0_ = e8
                ldpos = [m + l0_ + int((i + 0.5*rh + 0.25) * (nM - l0_ - ldm) / max(n_, 1)) for i in range(n_)]
                if ep == 7 and xe7 >= 0: ldpos = [m + l0_ + int((i + 0.5*rh + 0.25) * (xe7 - l0_) / max(n_, 1)) for i in range(n_)]
                if ep == 8 and xe8 >= 0: ldpos = [m + l0_ + int((i + 0.5*rh + 0.25) * (xe8 - l0_) / max(n_, 1)) for i in range(n_)]
                if xl0 >= 0 and ep <= 6 and n_ > 4:
                    if xfirst:
                        ldq = ldq[4:] + ldq[:4]; na = n_ - 4
                    else: na = 4
                    ldpos = [m + ld0 + int((i + 0.5*rh + 0.25) * (xl0 - ld0) / na) for i in range(na)] + [m + xl0 + int((i + 0.5*rh + 0.25) * (nM - xl0 - ldm) / (n_ - na)) for i in range(n_ - na)]
            if rh == 0 and f == fidx[(9, 0, 0)]:
                pe("s_cmp_eq_u32 s%d, 18" % S_NB); pe("s_cbranch_scc1 L_skip")
                skip_state = ([(x[1], x[3]) for x in epq], [len(x[2]) for x in epq], dict(p.lastmf), p.n)
            late = (hw and f in bpos and f > 0)
            if f + pf < nF and not late and not od: frag_read(f + pf)
            acc = acc_of(j)
            if j >= P1 and t == 0 and e_ == 0: flush_ep(acc)
            for i_, (c, e2) in enumerate(seq_of(f)[2*e_:2*e_+2]):
                ff = f - e_ + e2
                W0 = V_W + 16*t + 8*e2 + 4*c
                if j < P1 and not (abl & 16): assert ("W", t, e2, c) in p.lg
                p.wait(lg=lambda x: x == ("f", ff) or x == ("W", t, e2, c))
                p.mfma(acc + 4*c, freg[ff], W0, (j, c) not in acc_used)
                acc_used.add((j, c))
                m += 1
                pt_ = pt1 if cur_ep < 9 else pt2
                if rh == 1 and pt_ and (m - m_ep) % pt_ == 0: cur_pr = 1 - cur_pr; pe("s_setprio %d" % cur_pr)
                if od:
                    if e_ == 1 and f + pf + i_ < nF: frag_read(f + pf + i_, freg[ff])
                elif late and i_ == 0 and f + pf < nF: frag_read(f + pf)
                while hq and m >= hq[0][0]: hq.pop(0)[1]()
                while ldq and m >= ldpos[0]: ldq.pop(0)(); ldpos.pop(0)
                if rh == trh and cur_ep == trace and (m - m_tr) % tstep == 0 and ntr < len(TR) - 3: a.cstamp(ntr, TR); ntr += 1
                b = run_fill(per1)
                if not dqq:
                    if er: run_ep(min(b, (er*(m+1))//12 - (er*m)//12))
                    else: run_ep(min(b, per2))
            if t == 8 and e_ == 1:
                epq.append([m + epd, acc, epilogue(acc, 2*j + rh), 2*j + rh])
        assert not ldq and not dqq
        flush_ep()
        if rh == 0:
            pe("s_branch L_end")
            a.lab("L_skip")
            lst, lens, lm, n_ = skip_state
            p.lastmf = {k: p.n - (n_ - v) for k, v in lm.items()}
            for (acc, idx), ln in zip(lst, lens):
                ops = epilogue(acc, idx)
                for c, f in ops[len(ops)-ln:]: f()
            a.lab("L_end")
        if pst == rh:
            pstamp(rh)
            sys.stderr.write("pstamps: %d\n" % psn[0])
            a.dump_regs(PS[:psn[0]], 36, 256*rh)
        if stamps == 3 and rh == trh:
            sys.stderr.write("trace stamps: %d\n" % ntr)
            a.dump_regs(TR[:ntr], 36, 256*trh)
        if SL and rh == 0:
            a.stamp(1 + len(SL))
            a.dump_stamps(2 + len(SL), 36, vtmp=0)
        elif stamps and stamps < 3 and rh == 0:
            a.stamp(5)
            pe("s_waitcnt vmcnt(0)")
            a.stamp(6)
            if stamps == 2: a.dbg_stamps(7, 36)
            else: a.dump_stamps(7, 36, vtmp=0)
        pe("s_endpgm")
    a.lab("L_done")
    e("s_endpgm")
    a.descriptor(KN, 256, 102, 256)
    a.write(path)

if __name__ == "__main__":
    kw = dict(s.split("=") for s in sys.argv[2:])
    for k in kw:
        if k in ("sl", "kst", "xo", "ro", "caps"): pass
        elif k in ("spol", "qpol", "xpol", "tpol"): kw[k] = kw[k].replace("+", " ").replace("plain", "")
        else: kw[k] = int(kw[k])
    build(sys.argv[1], **kw)
```

```python
import sys
from asmlib import *

V_Q, V_XD, V_OUT, V_WR, V_WA0, V_WA1, V_TAB = 1, 2, 3, 4, 5, 6, 7
V_X = 8
V_T0, V_T1 = 14, 15
V_QJ = [1, 109, 110, 111]
V_S, V_NZ, V_PK = 32, 36, 40
V_D, V_E, V_O = 48, 52, 56
V_A1 = 60
V_W = 112
S_X, S_Q, S_S, S_Z, S_O, S_WS = 16, 20, 24, 28, 32, 36
S_P = 40
S_INV = 49
S_BASE, S_END, S_SPAN, S_B2, S_W3L, S_NB, S_W = 50, 51, 52, 53, 54, 55, 56
S_T, S_U, S_QO, S_EO = 57, 58, 59, 14
S_DJ = 60
S_M8, S_M8N, S_M4, S_M4N = 90, 92, 94, 96
S_PAN, S_CH, S_JH, S_RH, S_ROT = 3, 98, 99, 100, 101

class Prog:
    def __init__(self, a):
        self.a = a; self.vm = []; self.lg = []; self.vmdone = 0; self.lgdone = 0; self.n = 0
        self.lastmf = {}
    def e(self, s):
        self.a.e(s); self.n += 1
    def vmem(self, s, tag): self.e(s); self.vm.append(tag)
    def lds(self, s, tag): self.e(s); self.lg.append(tag)
    def _cnt(self, lst, done, pred):
        for i in range(len(lst)-1, done-1, -1):
            if pred(lst[i]): return i
        return -1
    def wait(self, vm=None, lg=None):
        parts = []
        if vm is not None:
            idx = self._cnt(self.vm, self.vmdone, vm)
            if idx >= 0:
                n = min(len(self.vm)-1-idx, 63)
                parts.append("vmcnt(%d)" % n); self.vmdone = len(self.vm) - n
        if lg is not None:
            idx = self._cnt(self.lg, self.lgdone, lg)
            if idx >= 0:
                n = min(len(self.lg)-1-idx, 15)
                parts.append("lgkmcnt(%d)" % n); self.lgdone = len(self.lg) - n
        if parts: self.e("s_waitcnt " + " ".join(parts))
    def lg_all(self):
        self.e("s_waitcnt lgkmcnt(0)"); self.lgdone = len(self.lg)
    def mfma(self, d, x, w, first):
        c = "0" if first else "v[%d:%d]" % (d, d+3)
        if self.sw: x, w = w, x
        self.e("v_mfma_f32_16x16x32_bf16 v[%d:%d], v[%d:%d], v[%d:%d], %s" % (d, d+3, x, x+3, w, w+3, c))
        self.lastmf[d] = self.n
    def need_mfma_done(self, d):
        if d in self.lastmf:
            gap = self.n - self.lastmf[d]
            if gap < 8: self.e("s_nop %d" % (8-gap-1))

def build(path, b1=12, D=3, n0=1, spol="nt", stamps=0, krot=1, rrot=4, dq0=0, dq1=0, per1=2, per2=2, cap=12, prio=0, pf=3,
          ld0=0, ldm=2, n1=2, epd=4, smid=4, qpol="", xpol="", abl=0, trace=-1, trh=0, tstep=4, early=0, qa=0, fseg=0, r9=0, hw=0, hw1=-1, tabe=0, xs=0, xs2=0, wst=1, cyc=0, sl="", p2s=0, wdel=0, epi=0, stc=1, pt1=0, pt2=0, pth=1, sk12=0, od=0, od2=-1, ipe=0, er=0, pk=0, sw=0, kst="", plm=1, xl0=-1, e7=-1, e8=-1, xfirst=0, pst=-1, pro=0, mid=3, mid0=2, tl=0, tg=128, tw=4, th=1, tp=-1, tpos=0, tn=1, tpol="", xd0=0, t0=2, xo="", ro="", fm=0, fck=9, xe7=-1, caps='', xe8=-1, xs7=-1, xs8=-1, nob='', stag=0, stb=2, sto=0):
    a = Asm(); e = a.e
    SL = [int(x) for x in sl.split("_")] if sl else []
    if cyc: a.stamp = lambda i, base=70: a.e("s_memtime s[%d:%d]" % (base+2*i, base+2*i+1))
    KN = NAME + "_kernel"
    P1 = b1 // 2
    assert b1 % 2 == 0 and (P1 <= 6 or (P1 == 7 and ipe and pf <= 3))
    V_A1 = 48 if P1 == 7 else 60
    assert pf <= 3 or (ipe and pf <= 6)
    if od2 < 0: od2 = od
    assert (od > 0) == (od2 > 0) and (not od or pf % 2 == 1)
    XF = [16, 20, 24, 28, 48, 52, 56][:pf+1]
    a.header(["; @launch grid=(256,1,1) block=(512,1,1) lds=%d" % (160*1024)])
    a.kernel_start(KN)
    TR = [70, 72, 74, 76, 78, 80, 82, 84, 86, 88, 4, 6, 8, 10, 12]
    if trace >= 0: stamps = 3
    PS = [70, 72, 74, 76, 78, 80, 82, 84, 86, 88, 4, 6, 8, 10, 12]
    psn = [0]
    def pstamp(rh_=None):
        if pst < 0 or (rh_ is not None and rh_ != pst): return
        e("s_memrealtime s[%d:%d]" % (PS[psn[0]], PS[psn[0]]+1)); psn[0] += 1
    if pst >= 0: stamps = 4
    pstamp()
    if stamps and stamps < 3: a.stamp(0)
    e("s_cmp_ge_u32 s2, 256"); e("s_cbranch_scc1 L_done")
    L, I, G = 20, 21, 22
    def late_scalars():
        pe_ = e
        pe_("s_cmp_lt_u32 s%d, 2" % S_R); pe_("s_cselect_b32 s%d, 19, 18" % S_NB)
        pe_("v_and_b32 v%d, 15, v0" % I)
        pe_("s_min_u32 s100, s%d, 2" % S_R); pe_("s_mul_i32 s%d, s%d, 18" % (S_T, S_R)); pe_("s_add_u32 s100, s100, s%d" % S_T)
        pe_("v_bfe_u32 v%d, v0, 4, 2" % G)
        pe_("s_add_u32 s%d, s100, s%d" % (S_T, S_NB)); pe_("s_mul_i32 s%d, s%d, 18432" % (S_END, S_T))
        pe_("s_mul_i32 s%d, s%d, 18432" % (S_SPAN, S_NB))
        pe_("s_and_b32 s98, s%d, 1" % S_W)
        pe_("s_bfe_u32 s99, s%d, 0x10001" % S_W)
        pe_("s_lshl_b32 s%d, s98, 2" % S_T); pe_("v_add_u32 v23, s%d, v%d" % (S_T, G)); pe_("v_and_b32 v24, 7, v%d" % L); pe_("v_xor_b32 v23, v23, v24")
        if ro:
            pe_("s_and_b32 s%d, s2, 7" % S_T); pe_("s_lshl_b32 s%d, s%d, 2" % (S_T, S_T)); pe_("s_lshr_b32 s%d, 0x%x, s%d" % (S_T, sum(int(ch, 16) << (4*i) for i, ch in enumerate(ro)), S_T)); pe_("s_and_b32 s%d, s%d, 15" % (S_T, S_T))
            pe_("s_add_u32 s100, s100, s%d" % S_T)
        elif rrot:
            pe_("s_sub_u32 s%d, s%d, 5" % (S_T, S_PL)); pe_("s_cmp_ge_u32 s%d, 5" % S_PL); pe_("s_cselect_b32 s%d, s%d, s%d" % (S_T, S_T, S_PL)); pe_("s_mul_i32 s%d, s%d, %d" % (S_T, S_T, rrot))
            pe_("s_add_u32 s100, s100, s%d" % S_T)
        pe_("v_lshrrev_b32 v24, 3, v%d" % L); pe_("v_mul_u32_u24 v24, 1152, v24"); pe_("v_lshl_add_u32 v%d, v23, 4, v24" % V_XD)
        pe_("s_mul_i32 s%d, s100, 18432" % S_BASE)
        pe_("s_mul_i32 s%d, s98, 9216" % S_T); pe_("v_add_u32 v%d, s%d, v%d" % (V_XD, S_T, V_XD))
        pe_("s_mul_i32 s%d, s99, 18432" % S_T); pe_("s_add_u32 s%d, s%d, s%d" % (S_B2, S_BASE, S_T))
        pe_("s_lshl_b32 s%d, s%d, 10" % (S_W3L, S_W)); pe_("s_and_b32 s%d, s%d, 0xc00" % (S_W3L, S_W3L))
        pe_("s_mov_b32 s%d, %d" % (S_X+2, M*K*2)); pe_("s_mov_b32 s%d, 0x00020000" % (S_X+3))
    def late2():
        for t in range(1, 9):
            e("s_add_u32 s%d, s%d, 128" % (S_P+t, S_P+t-1)); e("s_cmp_eq_u32 s%d, 1152" % (S_P+t)); e("s_cselect_b32 s%d, 0, s%d" % (S_P+t, S_P+t))
        e("s_mov_b32 s%d, %d" % (S_O+2, M*N*2)); e("s_mov_b32 s%d, 0x00020000" % (S_O+3))
        if stamps:
            e("s_mov_b32 s38, %s" % ("256" if stamps == 2 else "0x10000000")); e("s_mov_b32 s39, 0x00020000")
    def tab_addr():
        e("v_lshrrev_b32 v23, 5, v0"); e("v_add_u32 v23, s101, v23"); e("v_subrev_u32 v24, 9, v23"); e("v_min_u32 v23, v23, v24")
        e("v_bfe_u32 v24, v0, 4, 1"); e("v_lshl_add_u32 v23, v23, 1, v24"); e("v_mul_u32_u24 v23, 9216, v23")
        e("v_and_b32 v24, 15, v0"); e("v_lshl_add_u32 v23, v24, 4, v23"); e("s_lshl_b32 s%d, s3, 8" % S_T); e("v_add_u32 v%d, s%d, v23" % (V_T0, S_T))
        for sr in (S_S, S_Z):
            e("s_mov_b32 s%d, %d" % (sr+2, 18*N*2)); e("s_mov_b32 s%d, 0x00020000" % (sr+3))
    if pro:
        assert kst and plm == 1 and not early
        S_R, S_PL, S_NC = 15, 13, 12
        if pst >= 0 and tl: PS.remove(4)
        if pst >= 0: PS.remove(12)
        e("s_load_dwordx2 s[%d:%d], s[0:1], 8" % (S_Q, S_Q+1))
        e("s_load_dwordx2 s[%d:%d], s[0:1], 16" % (S_S, S_S+1))
        e("s_load_dwordx2 s[%d:%d], s[0:1], 24" % (S_Z, S_Z+1))
        e("s_load_dwordx2 s[%d:%d], s[0:1], 0" % (S_X, S_X+1))
        e("s_load_dwordx2 s[%d:%d], s[0:1], 32" % (S_O, S_O+1))
        if stamps: e("s_load_dwordx2 s[36:37], s[0:1], %d" % (40 if stamps == 2 else 48))
        e("v_lshrrev_b32 v1, 6, v0")
        e("s_and_b32 s3, s2, 1"); e("s_lshl_b32 s3, s3, 5"); e("s_lshr_b32 s98, s2, 3"); e("s_add_u32 s3, s3, s98")
        e("v_readfirstlane_b32 s%d, v1" % S_W)
        e("s_cmp_eq_u32 s3, 63"); e("s_cbranch_scc1 L_done")
        e("v_and_b32 v%d, 63, v0" % L)
        e("s_mul_i32 s%d, s3, 37" % S_PL); e("s_lshr_b32 s%d, s%d, 8" % (S_PL, S_PL))
        e("v_lshrrev_b32 v23, 3, v%d" % L)
        e("s_mul_i32 s%d, s%d, 7" % (S_R, S_PL)); e("s_sub_u32 s%d, s3, s%d" % (S_R, S_R))
        e("v_mul_u32_u24 v23, %d, v23" % (4*18432))
        e("s_bfe_u32 s3, s2, 0x20001"); e("s_mul_i32 s3, s3, 9"); e("s_add_u32 s3, s3, s%d" % S_PL)
        e("v_and_b32 v24, 7, v0")
        cst = sum(int(ch) << (4*i) for i, ch in enumerate(kst))
        e("s_lshl_b32 s101, s%d, 2" % S_R); e("s_lshr_b32 s101, 0x%x, s101" % cst); e("s_and_b32 s101, s101, 15")
        e("v_lshl_add_u32 v23, v24, 4, v23")
        if xo:
            e("s_and_b32 s100, s2, 7"); e("s_lshl_b32 s100, s100, 2"); e("s_lshr_b32 s100, 0x%x, s100" % sum(int(ch) << (4*i) for i, ch in enumerate(xo))); e("s_and_b32 s100, s100, 15")
            e("s_add_u32 s101, s101, s100")
        else: e("s_add_u32 s101, s101, s%d" % S_PL)
        e("s_sub_u32 s100, s101, 9"); e("s_min_u32 s101, s100, s101")
        e("s_lshl_b32 s%d, s101, 7" % S_P)
        e("s_lshr_b32 s100, s%d, 2" % S_W)
        e("s_mul_i32 s%d, s100, %d" % (S_T, 32*18432)); e("s_lshl_b32 s%d, s3, 9" % S_U); e("s_add_u32 s%d, s%d, s%d" % (S_T, S_T, S_U))
        e("s_and_b32 s%d, s%d, 3" % (S_U, S_W)); e("s_lshl_b32 s%d, s%d, 7" % (S_U, S_U)); e("s_add_u32 s%d, s%d, s%d" % (S_T, S_T, S_U))
        e("v_add_u32 v%d, s%d, v23" % (V_QJ[0], S_T))
        e("s_mov_b32 s%d, %d" % (S_Q+2, K*N*4)); e("s_mov_b32 s%d, 0x00020000" % (S_Q+3))
        for j in range(1, 4): e("v_add_u32 v%d, %d, v%d" % (V_QJ[j], 18432*j, V_QJ[0]))
        tab_addr()
        pstamp()
        e("s_cmp_lg_u32 s100, 0"); e("s_cbranch_scc1 L_rh1")
    else:
        e("s_load_dwordx2 s[%d:%d], s[0:1], 16" % (S_S, S_S+1))
        e("s_load_dwordx2 s[%d:%d], s[0:1], 24" % (S_Z, S_Z+1))
        e("s_load_dwordx2 s[%d:%d], s[0:1], 8" % (S_Q, S_Q+1))
        e("s_load_dwordx2 s[%d:%d], s[0:1], 0" % (S_X, S_X+1))
        e("s_load_dwordx2 s[%d:%d], s[0:1], 32" % (S_O, S_O+1))
        if stamps: e("s_load_dwordx2 s[36:37], s[0:1], %d" % (40 if stamps == 2 else 48))
        e("s_and_b32 s3, s2, 1"); e("s_lshl_b32 s3, s3, 5"); e("s_lshr_b32 s98, s2, 3"); e("s_add_u32 s3, s3, s98")
        e("s_cmp_eq_u32 s3, 63"); e("s_cbranch_scc1 L_done")
        e("v_lshrrev_b32 v1, 6, v0")
        e("s_mul_i32 s98, s3, 37"); e("s_lshr_b32 s98, s98, 8")
        e("v_readfirstlane_b32 s%d, v1" % S_W)
        e("s_mul_i32 s99, s98, 7"); e("s_sub_u32 s99, s3, s99")
        e("s_bfe_u32 s3, s2, 0x20001"); e("s_mul_i32 s3, s3, 9"); e("s_add_u32 s3, s3, s98")
        e("s_cmp_lt_u32 s99, 2"); e("s_cselect_b32 s%d, 19, 18" % S_NB)
        e("s_min_u32 s100, s99, 2"); e("s_mul_i32 s101, s99, 18"); e("s_add_u32 s100, s100, s101")
        e("s_add_u32 s101, s100, s%d" % S_NB); e("s_mul_i32 s%d, s101, 18432" % S_END)
        e("s_mul_i32 s%d, s%d, 18432" % (S_SPAN, S_NB))
        if rrot:
            e("s_sub_u32 s101, s98, 5"); e("s_cmp_ge_u32 s98, 5"); e("s_cselect_b32 s101, s101, s98"); e("s_mul_i32 s101, s101, %d" % rrot)
            e("s_add_u32 s100, s100, s101")
        e("s_mul_i32 s%d, s100, 18432" % S_BASE)
        if early:
            e("s_add_u32 s101, s99, s3"); e("s_mul_i32 s100, s101, 37"); e("s_lshr_b32 s100, s100, 8"); e("s_mul_i32 s100, s100, 7")
            e("s_sub_u32 s101, s101, s100"); e("s_add_u32 s101, s101, 2")
            e("s_mov_b32 s%d, 0" % S_P); e("s_movk_i32 s%d, 128" % (S_P+1))
            for t in range(2, 8):
                e("s_cmp_le_u32 s101, %d" % t); e("s_cselect_b32 s%d, %d, %d" % (S_P+t, 64*(t+1), 64*t) if 0 else "s_cselect_b32 s%d, 128, 0" % (S_P+t)); e("s_add_u32 s%d, s%d, %d" % (S_P+t, S_P+t, 128*t))
            e("s_lshl_b32 s%d, s101, 7" % (S_P+8))
        else:
          if kst:
            cst = sum(int(ch) << (4*i) for i, ch in enumerate(kst))
            e("s_lshl_b32 s101, s99, 2"); e("s_lshr_b32 s101, 0x%x, s101" % cst); e("s_and_b32 s101, s101, 15")
            pc = sum(((plm*i) % 9) << (4*i) for i in range(8))
            e("s_lshl_b32 s100, s98, 2"); e("s_lshr_b32 s100, 0x%x, s100" % pc); e("s_and_b32 s100, s100, 15"); e("s_cmp_eq_u32 s98, 8"); e("s_cselect_b32 s100, %d, s100" % ((plm*8) % 9))
            e("s_add_u32 s101, s101, s100")
            e("s_sub_u32 s100, s101, 9"); e("s_cmp_ge_u32 s101, 9"); e("s_cselect_b32 s101, s100, s101")
          elif krot == 3:
            e("s_mul_i32 s101, s99, 11"); e("s_lshr_b32 s101, s101, 5"); e("s_mul_i32 s101, s101, 3"); e("s_sub_u32 s101, s99, s101"); e("s_mul_i32 s101, s101, 3"); e("s_add_u32 s101, s101, s98")
            e("s_sub_u32 s100, s101, 9"); e("s_cmp_ge_u32 s101, 9"); e("s_cselect_b32 s101, s100, s101")
          elif krot == 4:
            e("s_and_b32 s101, s99, 6"); e("s_add_u32 s101, s101, s98")
            e("s_sub_u32 s100, s101, 9"); e("s_cmp_ge_u32 s101, 9"); e("s_cselect_b32 s101, s100, s101")
          elif krot == 5:
            e("s_and_b32 s101, s99, 6"); e("s_cmp_eq_u32 s99, 5"); e("s_cselect_b32 s101, 6, s101"); e("s_cmp_eq_u32 s99, 6"); e("s_cselect_b32 s101, 8, s101"); e("s_add_u32 s101, s101, s98")
            e("s_sub_u32 s100, s101, 9"); e("s_cmp_ge_u32 s101, 9"); e("s_cselect_b32 s101, s100, s101")
          elif krot == 2:
            e("s_mov_b32 s101, s98")
          elif krot:
            e("s_lshl_b32 s101, s98, 1"); e("s_add_u32 s101, s101, s99")
            if r9:
                e("s_cmp_ge_u32 s99, 4"); e("s_addc_u32 s101, s101, 0")
            for _ in range(2):
                e("s_sub_u32 s100, s101, 9"); e("s_cmp_ge_u32 s101, 9"); e("s_cselect_b32 s101, s100, s101")
          else:
            e("s_mov_b32 s101, 0")
          e("s_lshl_b32 s%d, s101, 7" % S_P)
          for t in range(1, 9):
            e("s_add_u32 s%d, s%d, 128" % (S_P+t, S_P+t-1)); e("s_cmp_eq_u32 s%d, 1152" % (S_P+t)); e("s_cselect_b32 s%d, 0, s%d" % (S_P+t, S_P+t))
        for (sr, nb_) in ((S_S, 18*N*2), (S_Z, 18*N*2), (S_Q, K*N*4), (S_X, M*K*2), (S_O, M*N*2)):
            e("s_mov_b32 s%d, %d" % (sr+2, nb_)); e("s_mov_b32 s%d, 0x00020000" % (sr+3))
        if stamps:
            e("s_mov_b32 s38, %s" % ("256" if stamps == 2 else "0x10000000")); e("s_mov_b32 s39, 0x00020000")
        L, I, G = 20, 21, 22
        e("v_and_b32 v%d, 63, v0" % L); e("v_and_b32 v%d, 15, v0" % I); e("v_bfe_u32 v%d, v0, 4, 2" % G)
        e("s_and_b32 s98, s%d, 1" % S_W)
        e("s_bfe_u32 s99, s%d, 0x10001" % S_W)
        e("s_lshr_b32 s100, s%d, 2" % S_W)
        if early:
            e("v_lshrrev_b32 v23, 5, v0"); e("v_mov_b32 v25, s101"); e("v_cmp_le_u32 vcc, s101, v23"); e("v_add_u32 v24, 1, v23"); e("s_nop 0")
            e("v_cndmask_b32 v24, v23, v24, vcc"); e("v_cmp_eq_u32 vcc, 8, v23"); e("s_nop 1"); e("v_cndmask_b32 v23, v24, v25, vcc")
        else:
            e("v_lshrrev_b32 v23, 5, v0"); e("v_add_u32 v23, s101, v23"); e("v_subrev_u32 v24, 9, v23"); e("v_min_u32 v23, v23, v24")
        e("v_and_b32 v24, 1, v%d" % G); e("v_lshl_add_u32 v23, v23, 1, v24"); e("v_mul_u32_u24 v23, 9216, v23")
        e("v_lshl_add_u32 v23, v%d, 4, v23" % I); e("s_lshl_b32 s%d, s3, 8" % S_T); e("v_add_u32 v%d, s%d, v23" % (V_T0, S_T))
        e("s_mul_i32 s%d, s100, %d" % (S_T, 32*18432)); e("s_lshl_b32 s%d, s3, 9" % S_U); e("s_add_u32 s%d, s%d, s%d" % (S_T, S_T, S_U))
        e("s_and_b32 s%d, s%d, 3" % (S_U, S_W)); e("s_lshl_b32 s%d, s%d, 7" % (S_U, S_U)); e("s_add_u32 s%d, s%d, s%d" % (S_T, S_T, S_U))
        e("v_lshrrev_b32 v23, 3, v%d" % L); e("v_mul_u32_u24 v23, %d, v23" % (4*18432)); e("v_and_b32 v24, 7, v%d" % L)
        e("v_lshl_add_u32 v23, v24, 4, v23"); e("v_add_u32 v%d, s%d, v23" % (V_QJ[0], S_T))
        for j in range(1, 4): e("v_add_u32 v%d, %d, v%d" % (V_QJ[j], 18432*j, V_QJ[0]))
        e("s_lshl_b32 s%d, s98, 2" % S_T); e("v_add_u32 v23, s%d, v%d" % (S_T, G)); e("v_and_b32 v24, 7, v%d" % L); e("v_xor_b32 v23, v23, v24")
        e("v_lshrrev_b32 v24, 3, v%d" % L); e("v_mul_u32_u24 v24, 1152, v24"); e("v_lshl_add_u32 v%d, v23, 4, v24" % V_XD)
        e("s_mul_i32 s%d, s98, 9216" % S_T); e("v_add_u32 v%d, s%d, v%d" % (V_XD, S_T, V_XD))
        e("s_mul_i32 s%d, s99, 18432" % S_T); e("s_add_u32 s%d, s%d, s%d" % (S_B2, S_BASE, S_T))
        e("s_lshl_b32 s%d, s%d, 10" % (S_W3L, S_W)); e("s_and_b32 s%d, s%d, 0xc00" % (S_W3L, S_W3L))
        pstamp()
        e("s_cmp_lg_u32 s100, 0"); e("s_cbranch_scc1 L_rh1")


    TAB = 0
    WS = [5*4096, 9*4096]
    frag_list = [(j, t, e_) for t in range(9) for j in range(P1) for e_ in range(2)] + [(j, t, e_) for j in range(P1, 10) for t in range(9) for e_ in range(2)]
    fidx = {k: i for i, k in enumerate(frag_list)}
    NE = 9 + (10 - P1)
    first = [fidx[(0, t, 0)] for t in range(9)] + [fidx[(j, 0, 0)] for j in range(P1, 10)]
    bpos = [0] + [first[ep] - pf for ep in range(1, NE)]
    def ep_of(f): return max(ep for ep in range(NE) if bpos[ep] <= f)
    NOB = set(int(ch, 16) for ch in nob)
    kept = [ep for ep in range(NE) if ep not in NOB]
    need = {(j, t): (t if j < P1 else max(k_ for k_ in kept if k_ <= 9 + j - P1)) for j in range(10) for t in range(9)}
    free_at = {g: -99 for g in range(13, 40)}
    for g in range(0, 5): free_at[g] = 8
    for g in range(5, 9): free_at[g] = 9
    for g in range(9, 13): free_at[g] = 8
    order = []
    for t in range(9 + qa if qa else 0):
        if t - qa >= 0: order += [("x", j, t - qa) for j in range(P1)]
        if t < 9: order.append(("q", t))
    if qa:
        order.remove(("q", 0)); order.insert(0, ("q", 0))
        i0 = [("x", j, 0) for j in range(P1)]
        for it in i0: order.remove(it)
        order[1:1] = i0
    for t in range(0 if qa else 9):
        if t == 2 and early:
            order.append(("q", 8))
            if early >= 2: order += [("x", j, 8) for j in range(P1)]
        if not (early and t == 8): order.append(("q", t))
        if not (early >= 2 and t == 8): order += [("x", j, t) for j in range(P1)]
    order += [("x", j, t) for j in range(P1, 10) for t in range(9)]
    def pos_of(it):
        t = it[-1]
        if qa: return t if it[0] == "x" else (0 if t == 0 else max(t - qa, 1 if n0 == 1 else 0))
        if not early: return t
        if t == 8 and (it[0] == "q" or early >= 2): return 2
        return t if t < 2 else t + 1
    issue = {}; gran = {}
    pend = list(order)
    for ep in [-2, -1] + list(range(NE)):
        n = 0
        while pend:
            it = pend[0]
            step = pos_of(it) if (it[0] == "q" or it[1] < P1) else 99
            lim = n0 if ep == -2 else (n1 if ep == -1 else min(ep + D + 1 + (1 if early else 0), n1 + 2*(ep+1)))
            if step < 99 and step >= lim: break
            cap_ = int(caps[ep-6], 36) if (caps and 0 <= ep-6 < len(caps)) else cap
            if step == 99: n2 = len([1 for k_ in issue if k_[0] == 'x' and k_[1] >= P1 and issue[k_] == ep])
            if step == 99 and (lim < 9 or (n2 if caps else n) >= cap_ or ep < p2s): break
            if it[0] == "x":
                cands = sorted(g for g in free_at if free_at[g] <= ep)
                if not cands: break
                g = cands[0]; gran[it[1:]] = g
                free_at[g] = min([k_ for k_ in kept if k_ >= ep_of(fidx[(it[1], it[2], 1)]) + 1] + [99])
                assert ep < need[it[1:]], (it, ep)
                n += 1
            else:
                assert ep < it[1] - 1 or it[1] == 0 or (it[1] == 1 and ep <= -1), (it, ep)
            issue[it] = ep; pend.pop(0)
    assert not pend
    if stamps or 1:
        sys.stderr.write("issue: " + " ".join("%d:[%s]" % (ep, ",".join(("q%d" % k[1] if k[0] == "q" else "%d.%d" % k[1:]) for k in order if issue[k] == ep)) for ep in [-2, -1] + list(range(NE))) + "\n")

    def xowner(j, t):
        ep = issue[("x", j, t)]
        if ep < 0: return (j + t) % 2
        lst = [it for it in order if it[0] == "x" and issue[it] == ep]
        i = lst.index(("x", j, t)); n = len(lst)
        x_ = xs if ep < 9 else xs2
        if ep == 7 and xs7 >= 0: x_ = xs7
        if ep == 8 and xs8 >= 0: x_ = xs8
        if x_ == 0: return (j + t) % 2
        return 0 if ((i+1)*x_)//6 != (i*x_)//6 else 1
    def xaddr(off, e_):
        return V_X + 2*(off >> 16) + e_, off & 0xffff

    lbl = [0]
    for rh in range(2):
        p = Prog(a); pe = p.e; p.sw = sw
        if rh: a.lab("L_rh1")
        if prio and rh == 1: pe("s_setprio %d" % prio)
        dj_done = set()
        def mk_dj(j):
            if j in dj_done: return
            dj_done.add(j)
            d = S_DJ + j
            pe("s_add_u32 s%d, s%d, %d" % (d, S_B2, 2*j*18432)); pe("s_cmp_ge_u32 s%d, s%d" % (d, S_END))
            pe("s_cselect_b32 s%d, s%d, 0" % (S_U, S_SPAN)); pe("s_sub_u32 s%d, s%d, s%d" % (d, d, S_U))
            if j == 9:
                pe("s_add_u32 s%d, s%d, 18" % (S_U, S_JH)); pe("s_cmp_ge_u32 s%d, s%d" % (S_U, S_NB)); pe("s_cselect_b32 s%d, 0x40000000, s%d" % (d, d))
        def load_ops(ep):
            ops = []
            for it in order:
                if issue[it] != ep: continue
                if it[0] == "q":
                    t = it[1]
                    if (abl & 4) and t >= 1: continue
                    for j in range(4):
                        def f(j=j, t=t):
                            if j == 0: pe("s_mul_i32 s%d, s%d, 9216" % (S_QO, S_P+t))
                            r = V_W + 16*t + 4*j
                            p.vmem("buffer_load_dwordx4 v[%d:%d], v%d, s[%d:%d], s%d offen %s" % (r, r+3, V_QJ[j], S_Q, S_Q+3, S_QO, qpol), ("q", t, j))
                        ops.append(f)
                else:
                    j, t = it[1:]
                    if xowner(j, t) != rh: continue
                    if (abl & 8) and t >= 1 and j < P1: continue
                    if (abl & 2048) and j >= P1: continue
                    def f(j=j, t=t):
                        mk_dj(j)
                        pe("s_add_u32 m0, s%d, %d" % (S_W3L, gran[(j, t)]*4096))
                        pe("s_add_u32 s%d, s%d, s%d" % (S_T, S_DJ+j, S_P+t))
                        p.vmem("buffer_load_dwordx4 v%d, s[%d:%d], s%d offen lds %s" % (V_XD, S_X, S_X+3, S_T, xpol), ("x", need[(j, t)]))
                    ops.append(f)
            if tl and rh == th:
                ks_ = sorted(set(int(ch) for ch in kst)); ncl = [((ks_[(i + 1) % len(ks_)] - ks_[i] - 1) % 9) + 1 for i in range(len(ks_))]
                ts = [t for t in range(t0, max(ncl)) if (max(tp, (t - tl) // tn) if t - tl >= 0 else tp) == ep]
                tops = []
                for t in ts:
                    def f(t=t):
                        pe("s_mul_i32 s%d, s%d, 9216" % (S_U, S_P+t))
                        if t >= min(ncl): pe("s_cmp_gt_u32 s%d, %d" % (S_NC, t)); pe("s_cselect_b32 s%d, s%d, 0x40000000" % (S_U, S_U))
                        p.vmem("buffer_load_dword v%d, v%d, s[%d:%d], s%d offen %s" % (V_T0, V_WA1, S_Q, S_Q+3, S_U, tpol), ("tch", t))
                    tops.append(f)
                k_ = len(ops) if (tpos == 0 or ep < 0) else tpos - 1
                ops = ops[:k_] + tops + ops[k_:]
            return ops
        def touch_addr():
            n_ = 64*512 // tg; sh = 2 if tg == 128 else 3
            ks = [int(ch) for ch in kst]; st = sorted(set(ks))
            rank = [ks[:r].count(ks[r]) for r in range(7)]
            cw4 = [-(-n_ // (ks.count(k_) * tw * 4)) for k_ in ks]
            ncs = [((st[(st.index(k_) + 1) % len(st)] - k_ - 1) % 9) + 1 for k_ in ks]
            assert max(cw4) <= 16
            nib = lambda l_: sum(v << (4*i) for i, v in enumerate(l_))
            pe("s_lshl_b32 s%d, s%d, 2" % (S_U, S_R))
            pe("s_lshr_b32 s%d, 0x%x, s%d" % (S_NC, nib(ncs), S_U)); pe("s_and_b32 s%d, s%d, 15" % (S_NC, S_NC))
            pe("s_lshr_b32 s4, 0x%x, s%d" % (nib([c - 1 for c in cw4]), S_U)); pe("s_and_b32 s4, s4, 15"); pe("s_lshl_b32 s4, s4, 2"); pe("s_add_u32 s4, s4, 4")
            pe("s_lshr_b32 s5, 0x%x, s%d" % (nib(rank), S_U)); pe("s_and_b32 s5, s5, 15"); pe("s_mul_i32 s5, s5, %d" % tw)
            pe("s_and_b32 s%d, s%d, 3" % (S_T, S_W)); pe("s_add_u32 s5, s5, s%d" % S_T); pe("s_mul_i32 s5, s5, s4")
            pe("s_cmp_lt_u32 s%d, %d" % (S_T, tw)); pe("s_cselect_b32 s4, s4, 0")
            pe("v_add_u32 v17, s5, v%d" % L)
            pe("v_lshrrev_b32 v18, %d, v17" % sh); pe("v_mul_u32_u24 v18, 18432, v18"); pe("v_and_b32 v19, %d, v17" % ((1 << sh) - 1))
            pe("v_lshl_add_u32 v18, v19, %d, v18" % (9 - sh)); pe("s_lshl_b32 s%d, s3, 9" % S_T); pe("v_add_u32 v18, s%d, v18" % S_T)
            pe("v_mov_b32 v19, 0x40000000")
            pe("v_cmp_gt_u32 vcc, s4, v%d" % L); pe("s_movk_i32 s%d, %d" % (S_U, n_)); pe("s_nop 0"); pe("v_cndmask_b32 v18, v19, v18, vcc")
            pe("v_cmp_gt_u32 vcc, s%d, v17" % S_U); pe("s_nop 1"); pe("v_cndmask_b32 v%d, v19, v18, vcc" % V_WA1)
        if pro:
            if rh == 1:
                pe("s_cmp_eq_u32 s%d, 4" % S_W); pe("s_cselect_b32 exec_lo, -1, 0"); pe("s_mov_b32 exec_hi, 0")
            pstamp(rh)
            pe("s_waitcnt lgkmcnt(0)")
            pstamp(rh)
            tb = 48 if rh else 24
            p.vmem("buffer_load_dwordx4 v[%d:%d], v%d, s[%d:%d], 0 offen" % (tb, tb+3, V_T0, S_S, S_S+3), "tab")
            p.vmem("buffer_load_dwordx4 v[%d:%d], v%d, s[%d:%d], 0 offen" % (tb+4, tb+7, V_T0, S_Z, S_Z+3), "tab")
            if rh == 1: pe("s_mov_b64 exec, -1")
            l0 = load_ops(-2)
            for f in l0[:4]: f()
            sv_out = len(a.out)
            late_scalars()
            a.out[sv_out:] = [l.replace("v23", "v16").replace("v24", "v17") for l in a.out[sv_out:]]
            nx0 = len([1 for it in order if issue[it] == -2 and it[0] == "x" and xowner(it[1], it[2]) == rh])
            xlate = []
            if xd0 & (1 << rh): xlate = l0[4:4+nx0]
            else:
                for f in l0[4:4+nx0]: f()
            pstamp(rh)
            late2()
            if tl and rh == th: touch_addr()
            if not xlate:
                for f in l0[4+nx0:]: f()
        else:
            for it in order:
                if issue[it] == -2 and it[0] == "x" and xowner(it[1], it[2]) == rh: mk_dj(it[1])
            if rh == 1:
                pe("v_mov_b32 v%d, 0x7fffffff" % V_T1); pe("v_cmp_gt_u32 vcc, 288, v0"); pe("s_nop 1"); pe("v_cndmask_b32 v%d, v%d, v%d, vcc" % (V_T0, V_T1, V_T0))
            pstamp(rh)
            pe("s_waitcnt lgkmcnt(0)")
            pstamp(rh)
            p.vmem("buffer_load_dwordx4 v[24:27], v%d, s[%d:%d], 0 offen" % (V_T0, S_S, S_S+3), "tab")
            p.vmem("buffer_load_dwordx4 v[28:31], v%d, s[%d:%d], 0 offen" % (V_T0, S_Z, S_Z+3), "tab")
            for f in load_ops(-2): f()
            if stamps and stamps < 3 and not SL: a.stamp(1)
            pstamp(rh)
        pe("v_lshrrev_b32 v16, 2, v%d" % L); pe("v_mul_u32_u24 v16, 9216, v16"); pe("v_and_b32 v17, 3, v%d" % L); pe("v_lshl_add_u32 v16, v17, 4, v16")
        pe("s_lshr_b32 s%d, s%d, 4" % (S_T, S_W3L)); pe("s_lshl_b32 s%d, s3, 8" % S_U); pe("s_add_u32 s%d, s%d, s%d" % (S_T, S_T, S_U)); pe("v_add_u32 v%d, s%d, v16" % (V_OUT, S_T))
        if sw:
            pe("v_mul_u32_u24 v16, 9216, v%d" % I); pe("v_lshl_add_u32 v16, v%d, 4, v16" % G); pe("v_add_u32 v%d, s%d, v16" % (V_OUT, S_T))
        if epi == 1:
            pe("v_and_b32 v16, 3, v%d" % I); pe("v_lshlrev_b32 v16, 4, v16"); pe("v_lshrrev_b32 v17, 3, v%d" % I); pe("v_lshl_add_u32 v16, v17, 3, v16")
            pe("v_bfe_u32 v17, v%d, 2, 1" % I); pe("v_lshl_add_u32 v16, v17, 2, v16"); pe("v_mul_u32_u24 v17, %d, v%d" % (4*9216, G)); pe("v_add_u32 v16, v16, v17")
            pe("v_add_u32 v%d, s%d, v16" % (V_E, S_T))
            for r in range(1, 4): pe("v_add_u32 v%d, %d, v%d" % (V_E+r, 9216*r, V_E))
        if fseg == 128:
            pe("v_lshrrev_b32 v16, 3, v%d" % L); pe("v_mul_u32_u24 v16, 9216, v16"); pe("v_and_b32 v17, 7, v%d" % L); pe("v_lshl_add_u32 v16, v17, 4, v16")
            pe("s_and_b32 s%d, s%d, 1" % (S_T, S_W)); pe("s_lshl_b32 s%d, s%d, 7" % (S_T, S_T)); pe("s_add_u32 s%d, s%d, s%d" % (S_U, S_T, S_U))
            pe("s_bfe_u32 s%d, s%d, 0x10001" % (S_T, S_W)); pe("s_mul_i32 s%d, s%d, %d" % (S_T, S_T, 8*9216)); pe("s_add_u32 s%d, s%d, s%d" % (S_T, S_T, S_U)); pe("v_add_u32 v%d, s%d, v16" % (V_OUT, S_T))
        if fseg == 256:
            pe("v_lshrrev_b32 v16, 4, v%d" % L); pe("v_mul_u32_u24 v16, 9216, v16"); pe("v_and_b32 v17, 15, v%d" % L); pe("v_lshl_add_u32 v16, v17, 4, v16")
            pe("s_and_b32 s%d, s%d, 3" % (S_T, S_W)); pe("s_mul_i32 s%d, s%d, %d" % (S_T, S_T, 4*9216)); pe("s_add_u32 s%d, s%d, s%d" % (S_T, S_T, S_U)); pe("v_add_u32 v%d, s%d, v16" % (V_OUT, S_T))
        pe("v_bfe_u32 v16, v%d, 2, 1" % I); pe("v_and_b32 v17, 3, v%d" % I); pe("v_lshlrev_b32 v17, 1, v17"); pe("v_lshrrev_b32 v18, 3, v%d" % I); pe("v_add_u32 v17, v17, v18")
        if sw: pe("v_and_b32 v16, 1, v%d" % I); pe("v_lshrrev_b32 v17, 1, v%d" % I)
        pe("v_lshlrev_b32 v17, 4, v17"); pe("v_lshl_add_u32 v17, v16, 10, v17"); pe("v_lshl_add_u32 v17, v%d, 7, v17" % G)
        pe("s_lshl_b32 s%d, s%d, 1" % (S_T, S_W3L)); pe("v_add_u32 v%d, s%d, v17" % (V_WR, S_T))
        pe("v_and_b32 v16, 7, v%d" % I); pe("v_lshlrev_b32 v16, 4, v16"); pe("v_lshl_add_u32 v17, v18, 3, v16"); pe("v_lshl_add_u32 v17, v%d, 7, v17" % G)
        pe("s_add_u32 s%d, s%d, %d" % (S_T, S_T, rh*8192)); pe("v_add_u32 v%d, s%d, v17" % (V_WA0, S_T))
        pe("s_lshr_b32 s%d, s%d, 3" % (S_T, S_W3L)); pe("s_add_u32 s%d, s%d, %d" % (S_T, S_T, rh*1024 + TAB)); pe("v_add_u32 v%d, s%d, v16" % (V_TAB, S_T))
        pe("v_lshrrev_b32 v16, 1, v%d" % I); pe("v_xor_b32 v16, v16, v%d" % G); pe("v_lshlrev_b32 v16, 4, v16"); pe("v_lshl_add_u32 v%d, v%d, 7, v16" % (V_X, I))
        if rh: pe("v_add_u32 v%d, 2048, v%d" % (V_X, V_X))
        pe("v_xor_b32 v%d, 64, v%d" % (V_X+1, V_X))
        for w_ in (1, 2):
            pe("v_add_u32 v%d, %d, v%d" % (V_X+2*w_, w_ << 16, V_X)); pe("v_add_u32 v%d, %d, v%d" % (V_X+2*w_+1, w_ << 16, V_X+1))
        pe("v_lshrrev_b32 v16, 4, v0"); pe("v_lshlrev_b32 v16, 10, v16"); pe("v_lshl_add_u32 v%d, v%d, 5, v16" % (V_T1, I))
        pe("s_mov_b32 s%d, 0x00ff00ff" % S_M8); pe("s_mov_b32 s%d, 0x00ff00ff" % (S_M8+1)); pe("s_not_b64 s[%d:%d], s[%d:%d]" % (S_M8N, S_M8N+1, S_M8, S_M8+1))
        pe("s_mov_b32 s%d, 0x0f0f0f0f" % S_M4); pe("s_mov_b32 s%d, 0x0f0f0f0f" % (S_M4+1)); pe("s_not_b64 s[%d:%d], s[%d:%d]" % (S_M4N, S_M4N+1, S_M4, S_M4+1))
        def tab_build(tb, T0):
            if rh == 1:
                pe("s_cmp_lg_u32 s%d, 4" % S_W); pe("s_cbranch_scc1 L_notab")
                pe("s_mov_b32 exec_hi, 0")
            sv = p.vmdone
            p.wait(vm=lambda x: x == "tab")
            if not (pro and rh): pstamp(rh)
            for c in range(4):
                pe("v_lshlrev_b32 v%d, 16, v%d" % (T0+2*c, tb+c)); pe("v_and_b32 v%d, 0xffff0000, v%d" % (T0+1+2*c, tb+c))
                pe("v_lshlrev_b32 v%d, 16, v%d" % (T0+8+2*c, tb+4+c)); pe("v_and_b32 v%d, 0xffff0000, v%d" % (T0+9+2*c, tb+4+c))
            if not fm: pe("ds_write_b128 v%d, v[%d:%d] offset:%d" % (V_T1, T0, T0+3, TAB)); pe("ds_write_b128 v%d, v[%d:%d] offset:%d" % (V_T1, T0+4, T0+7, TAB+16))
            for c in range(8): pe("v_mul_f32 v%d, -v%d, v%d" % (T0+8+c, T0+8+c, T0+c))
            pe("ds_write_b128 v%d, v[%d:%d] offset:%d" % (V_T1, T0+8, T0+11, TAB+512)); pe("ds_write_b128 v%d, v[%d:%d] offset:%d" % (V_T1, T0+12, T0+15, TAB+528))
            if fm:
                for c in range(8): pe("v_mul_f32 v%d, 0x4b800000, v%d" % (T0+c, T0+c))
                pe("ds_write_b128 v%d, v[%d:%d] offset:%d" % (V_T1, T0, T0+3, TAB)); pe("ds_write_b128 v%d, v[%d:%d] offset:%d" % (V_T1, T0+4, T0+7, TAB+16))
            pe("s_waitcnt lgkmcnt(0)")
            if rh == 1:
                pe("s_mov_b32 exec_hi, -1")
                a.lab("L_notab")
                p.vmdone = sv
        if not (pro and rh): tab_build(24, 32)
        else: pstamp(rh)
        if pro and xlate and not (xd0 & 4):
            for f in l0[4:]: f()
        pe("s_barrier")
        if pro and xlate and (xd0 & 4):
            for f in l0[4:]: f()
        pstamp(rh)
        def tab_reads(t):
            p.lds("ds_read_b128 v[%d:%d], v%d offset:%d" % (V_S, V_S+3, V_TAB, t*2048), ("t", t))
            p.lds("ds_read_b128 v[%d:%d], v%d offset:%d" % (V_NZ, V_NZ+3, V_TAB, t*2048+512), ("t", t))
        def dequant(t):
            R = V_W + 16*t
            ops = []
            for j in range(4):
                ops.append((0, lambda j=j: p.wait(vm=lambda x: x == ("q", t, j))))
                if fm:
                    if fm & 1:
                        if j == 0:
                            ops.append((1, lambda: pe("v_or3_b32 v%d, v%d, v%d, v%d" % (V_T0, R, R+1, R+2))))
                            ops.append((1, lambda: pe("v_or_b32 v%d, v%d, v%d" % (V_T0, V_T0, R+3))))
                        else:
                            for c in (0, 2): ops.append((1, lambda x=4*j+c: pe("v_or3_b32 v%d, v%d, v%d, v%d" % (V_T0, V_T0, R+x, R+x+1))))
                        if j == 3:
                            ops.append((1, lambda: pe("v_cmp_lt_u32 vcc, 0x3ff, v%d" % V_T0)))
                            ops.append((0, lambda: pe("s_cbranch_vccnz L_done")))
                elif not (abl & 129):
                    for c in range(4): ops.append((1, lambda x=4*j+c: pe("v_cvt_f32_i32 v%d, v%d" % (R+x, R+x))))
            def wt():
                assert ("t", t) in p.lg or abl
                p.wait(lg=lambda x: x == ("t", t))
            ops.append((0, wt))
            for c in range(4):
                if abl & 1:
                    if not (abl & 2): ops.append((0, lambda c=c: p.lds("ds_write_b64 v%d, v[%d:%d] offset:%d" % (V_WA0, V_PK+2*c, V_PK+2*c+1, WS[t % 2] + c*512), ("w", t))))
                    continue
                if pk:
                    if c % 2 == 0:
                        for j in range(4): ops.append((1, lambda x=4*j+c: pe("v_pk_fma_f32 v[%d:%d], v[%d:%d], v[%d:%d], v[%d:%d]" % (R+x, R+x+1, R+x, R+x+1, V_S+(x & 3), V_S+(x & 3)+1, V_NZ+(x & 3), V_NZ+(x & 3)+1))))
                elif fm:
                    if (fm & 4) and t < fck:
                        for j in (0, 2): ops.append((1, lambda x=4*j+c: pe("v_or3_b32 v%d, v%d, v%d, v%d" % (V_T0, V_T0, R+x, R+x+4))))
                    for j in range(4): ops.append((1, lambda x=4*j+c: pe("v_fma_mix_f32 v%d, v%d, v%d, v%d op_sel_hi:[1,0,0]" % (R+x, R+x, V_S+(x & 3), V_NZ+(x & 3)))))
                else:
                    for j in range(4): ops.append((1, lambda x=4*j+c: pe("v_fma_f32 v%d, v%d, v%d, v%d" % (R+x, R+x, V_S+(x & 3), V_NZ+(x & 3)))))
                ops.append((1, lambda c=c: pe("v_cvt_pk_bf16_f32 v%d, v%d, v%d" % (V_PK+2*c, R+c, R+4+c))))
                ops.append((1, lambda c=c: pe("v_cvt_pk_bf16_f32 v%d, v%d, v%d" % (V_PK+2*c+1, R+8+c, R+12+c))))
                if not (abl & 2) and not ((abl & 4096) and rh == 0 and t >= 1): ops.append((0, lambda c=c: p.lds("ds_write_b64 v%d, v[%d:%d] offset:%d" % (V_WA0, V_PK+2*c, V_PK+2*c+1, WS[t % 2] + c*512), ("w", t)), "w"))
            if wdel:
                o2 = []; held = []
                for o in ops:
                    if len(o) == 3: held.append([wdel, o[:2]]); continue
                    o2.append(o)
                    if o[0]:
                        for h in held: h[0] -= 1
                        while held and held[0][0] <= 0: o2.append(held.pop(0)[1])
                o2 += [h[1] for h in held]
                ops = o2
            ops = [o[:2] for o in ops]
            return ops
        def epilogue(acc, idx):
            ops = []
            V_D, V_E, V_O = (acc, acc+4, acc) if ipe else (48, 52, 56)
            def firstop():
                p.need_mfma_done(acc); p.need_mfma_done(acc+4)
                pe("v_cvt_pk_bf16_f32 v%d, v%d, v%d" % (V_D, acc, acc+4))
            ops.append((1, firstop))
            for r in range(1, 4): ops.append((1, lambda r=r: pe("v_cvt_pk_bf16_f32 v%d, v%d, v%d" % (V_D+r, acc+r, acc+4+r))))
            if epi == 1:
                ops = []
                dd = V_D if idx % 4 < 2 else V_O
                def firstop():
                    p.need_mfma_done(acc); p.need_mfma_done(acc+4)
                    pe("s_add_u32 s%d, s%d, %d" % (S_EO, S_BASE, idx*18432)); pe("s_cmp_ge_u32 s%d, s%d" % (S_EO, S_END)); pe("s_cselect_b32 s%d, s%d, 0" % (S_INV, S_SPAN))
                    pe("v_cvt_pk_bf16_f32 v%d, v%d, v%d" % (dd, acc, acc+4))
                    pe("s_sub_u32 s%d, s%d, s%d" % (S_EO, S_EO, S_INV)); pe("s_lshl_b32 s%d, s%d, 3" % (S_EO, S_EO))
                ops.append((1, firstop))
                for r in range(1, 4): ops.append((1, lambda r=r: pe("v_cvt_pk_bf16_f32 v%d, v%d, v%d" % (dd+r, acc+r, acc+4+r))))
                for r in range(4): ops.append((stc, lambda r=r: p.vmem("buffer_store_dword v%d, v%d, s[%d:%d], s%d offen %s" % (dd+r, V_E+r, S_O, S_O+3, S_EO, spol), "st")))
                return ops
            if sw:
                ops.insert(1, (0, lambda: (pe("s_add_u32 s%d, s%d, %d" % (S_EO, S_BASE, idx*18432)), pe("s_cmp_ge_u32 s%d, s%d" % (S_EO, S_END)), pe("s_cselect_b32 s%d, s%d, 0" % (S_INV, S_SPAN)))))
                ops.insert(3, (0, lambda: (pe("s_sub_u32 s%d, s%d, s%d" % (S_EO, S_EO, S_INV)), pe("s_lshl_b32 s%d, s%d, 3" % (S_EO, S_EO)))))
                ops.append((0, lambda: p.vmem("buffer_store_dwordx4 v[%d:%d], v%d, s[%d:%d], s%d offen %s" % (V_D, V_D+3, V_OUT, S_O, S_O+3, S_EO, spol), "st")))
                return ops
            def dpp(d, s0, s1, ror): pe("v_cndmask_b32_dpp v%d, v%d, v%d, vcc row_ror:%d row_mask:0xf bank_mask:0xf" % (d, s0, s1, ror))
            ops.append((0, lambda: (pe("s_mov_b64 vcc, s[%d:%d]" % (S_M8, S_M8+1)), pe("s_add_u32 s%d, s%d, %d" % (S_EO, S_BASE, idx*18432)))))
            ops.append((1, lambda: dpp(V_E+0, V_D+2, V_D+0, 8)))
            ops.append((1, lambda: dpp(V_E+1, V_D+3, V_D+1, 8)))
            ops.append((0, lambda: (pe("s_mov_b64 vcc, s[%d:%d]" % (S_M8N, S_M8N+1)), pe("s_cmp_ge_u32 s%d, s%d" % (S_EO, S_END)), pe("s_cselect_b32 s%d, s%d, 0" % (S_INV, S_SPAN)))))
            ops.append((1, lambda: dpp(V_E+2, V_D+0, V_D+2, 8)))
            ops.append((1, lambda: dpp(V_E+3, V_D+1, V_D+3, 8)))
            ops.append((0, lambda: (pe("s_mov_b64 vcc, s[%d:%d]" % (S_M4, S_M4+1)), pe("s_sub_u32 s%d, s%d, s%d" % (S_EO, S_EO, S_INV)))))
            ops.append((1, lambda: dpp(V_O+0, V_E+1, V_E+0, 4)))
            ops.append((1, lambda: dpp(V_O+2, V_E+3, V_E+2, 4)))
            ops.append((0, lambda: (pe("s_mov_b64 vcc, s[%d:%d]" % (S_M4N, S_M4N+1)), pe("s_lshl_b32 s%d, s%d, 3" % (S_EO, S_EO)))))
            ops.append((1, lambda: dpp(V_O+1, V_E+0, V_E+1, 12)))
            ops.append((1, lambda: dpp(V_O+3, V_E+2, V_E+3, 12)))
            if abl & 1024: ops = [(c_, (lambda: None) if c_ else f_) for c_, f_ in ops]
            if abl & 8192:
                def st_():
                    lbl[0] += 1
                    pe("s_cmp_lg_u32 s%d, 0" % S_W3L); pe("s_cbranch_scc1 L_s%d" % lbl[0])
                    pe("buffer_store_dwordx4 v[%d:%d], v%d, s[%d:%d], s%d offen %s" % (V_O, V_O+3, V_OUT, S_O, S_O+3, S_EO, spol))
                    a.lab("L_s%d" % lbl[0])
                ops.append((0, st_))
            elif not (abl & 256) or ((abl & 512) and idx >= 12): ops.append((0, lambda: p.vmem("buffer_store_dwordx4 v[%d:%d], v%d, s[%d:%d], s%d offen %s" % (V_O, V_O+3, V_OUT, S_O, S_O+3, S_EO, spol), "st")))
            return ops
        def guarantees(ep):
            p.wait(vm=lambda x: x[0] == "x" and x[1] <= ep, lg=lambda x: x == ("w", ep))
        tab_reads(0)
        lds_ = load_ops(-1)
        dq = dequant(0)
        k = 0
        for i, (c, f) in enumerate(dq):
            f()
            if i in (0, 15): pstamp(rh)
            if c and i % mid == mid0 and k < len(lds_): lds_[k](); k += 1
        if pro == 2 and rh: tab_build(48, 60)
        while k < len(lds_): lds_[k](); k += 1
        if pro == 1 and rh: tab_build(48, 60)
        nF = len(frag_list) - (18 if rh else 0)
        def acc_of(j): return V_A1 + 8*j if j < P1 else V_S + 8*((j - P1) % 2)
        freg = {}
        def frag_read(f, b=None):
            j, t, e_ = frag_list[f]
            if b is None: b = XF[f % len(XF)]
            r, o = xaddr(gran[(j, t)]*4096, e_)
            if not ((abl & 32) and f > 4): p.lds("ds_read_b128 v[%d:%d], v%d offset:%d" % (b, b+3, r, o), ("f", f))
            freg[f] = b
        dqq = []; dq_at = 0
        epq = []
        ldq = []; ld_at = 0
        m = 0; ntr = 0; cur_ep = -1; m_tr = 0; hq = []
        def run_fill(budget):
            while dqq and m >= dq_at and (budget > 0 or dqq[0][0] == 0):
                c, f = dqq.pop(0); f(); budget -= c
            return budget
        def run_ep(budget):
            while epq and m >= epq[0][0] and (budget > 0 or epq[0][2][0][0] == 0):
                c, f = epq[0][2].pop(0); f(); budget -= c
                if not epq[0][2]: epq.pop(0)
        def flush_ep(upto_acc=None):
            k_ = 0
            while epq and (upto_acc is None or any(x[1] == upto_acc for x in epq)):
                c, f = epq[0][2].pop(0); f(); k_ += 1
                if not epq[0][2]: epq.pop(0)
            if k_ and ipe and upto_acc is not None: pe("s_nop 1")
        def seq_of(f):
            o_ = od if frag_list[f][0] < P1 else od2
            if o_ == 0: return [(0, 0), (1, 0), (0, 1), (1, 1)]
            if o_ == 1: return [(0, 0), (0, 1), (1, 0), (1, 1)]
            if o_ == 3 or (f // 2) % 2 == 0: return [(0, 0), (0, 1), (1, 1), (1, 0)]
            return [(1, 0), (1, 1), (0, 1), (0, 0)]
        acc_used = set()
        for f in range(nF):
            j, t, e_ = frag_list[f]
            if f in bpos:
                ep = bpos.index(f)
                while ldq: ldq.pop(0)()
                while dqq: dqq.pop(0)[1]()
                if rh == trh and ep == trace + 1 and trace >= 0: a.cstamp(ntr, TR); ntr += 1
                if ep == 0: pstamp(rh)
                if ep not in NOB: guarantees(ep)
                if rh == trh and ep == trace + 1 and trace >= 0: a.cstamp(ntr, TR); ntr += 1
                if not ((abl & 64) and 1 <= ep <= 8) and ep not in NOB: pe("s_barrier")
                if rh == trh and ep in (trace, trace + 1) and trace >= 0: a.cstamp(ntr, TR); ntr += 1; m_tr = m
                cur_ep = ep; m_ep = m
                if ep <= 2 and pst == rh: pstamp(rh); p.lg_all()
                if rh == 1 and (pt1 if ep < 9 else pt2): pe("s_setprio %d" % pth); cur_pr = pth
                elif rh == 1 and ep == 9 and pt1: pe("s_setprio %d" % prio)
                if SL and ep in SL and rh == 0:
                    a.stamp(1 + SL.index(ep)); p.lg_all()
                if stamps and stamps < 3 and ep in (0, smid, 9) and not SL:
                    a.stamp({0: 2, smid: 3, 9: 4}[ep]); p.lg_all()
                hq = []
                h_ = hw if (rh == 0 or hw1 < 0) else hw1
                if ep <= 8 and not ((abl & 16) and ep >= 1):
                    for i_, (c, ks) in enumerate(seq_of(first[ep])):
                        if 1:
                            def wr(ks=ks, c=c, ep=ep):
                                r = V_W + 16*ep + 8*ks + 4*c
                                p.lds("ds_read_b128 v[%d:%d], v%d offset:%d" % (r, r+3, V_WR, WS[ep % 2] + ks*8192 + c*512), ("W", ep, ks, c))
                            if h_ and ep >= 1: hq.append([m + h_ + wst*i_, wr])
                            else: wr()
                if ep == 0:
                    for f2 in range(pf + (1 if od else 0)): frag_read(f2)
                if ep + 1 <= 8:
                    if not (abl & 16) and not (tabe == 1 and ep >= 1):
                        if tabe == 2 and ep >= 1: hq.append([m + h_ + 4*wst, lambda ep=ep: tab_reads(ep+1)])
                        else: tab_reads(ep+1)
                    dqq = dequant(ep+1); dq_at = m + (dq1 if rh else dq0)
                    if tabe == 1 and ep + 2 <= 8:
                        k_ = max(i for i, (c_, f_) in enumerate(dqq) if c_) - 2
                        dqq.insert(k_ + 1, (0, lambda ep=ep: tab_reads(ep+2)))
                ldq = load_ops(ep)
                nM = 2*((bpos[ep+1] if ep+1 < NE else nF) - f)
                n_ = len(ldq)
                l0_ = ld0
                if ep == 7 and e7 >= 0: l0_ = e7
                if ep == 8 and e8 >= 0: l0_ = e8
                ldpos = [m + l0_ + int((i + 0.5*rh + 0.25) * (nM - l0_ - ldm) / max(n_, 1)) for i in range(n_)]
                if ep == 7 and xe7 >= 0: ldpos = [m + l0_ + int((i + 0.5*rh + 0.25) * (xe7 - l0_) / max(n_, 1)) for i in range(n_)]
                if ep == 8 and xe8 >= 0: ldpos = [m + l0_ + int((i + 0.5*rh + 0.25) * (xe8 - l0_) / max(n_, 1)) for i in range(n_)]
                if xl0 >= 0 and ep <= 6 and n_ > 4:
                    if xfirst:
                        ldq = ldq[4:] + ldq[:4]; na = n_ - 4
                    else: na = 4
                    ldpos = [m + ld0 + int((i + 0.5*rh + 0.25) * (xl0 - ld0) / na) for i in range(na)] + [m + xl0 + int((i + 0.5*rh + 0.25) * (nM - xl0 - ldm) / (n_ - na)) for i in range(n_ - na)]
            if rh == 0 and f == fidx[(9, 0, 0)]:
                pe("s_cmp_eq_u32 s%d, 18" % S_NB); pe("s_cbranch_scc1 L_skip")
                skip_state = ([(x[1], x[3]) for x in epq], [len(x[2]) for x in epq], dict(p.lastmf), p.n)
            late = (hw and f in bpos and f > 0)
            if f + pf < nF and not late and not od: frag_read(f + pf)
            acc = acc_of(j)
            if j >= P1 and t == 0 and e_ == 0: flush_ep(acc)
            for i_, (c, e2) in enumerate(seq_of(f)[2*e_:2*e_+2]):
                ff = f - e_ + e2
                W0 = V_W + 16*t + 8*e2 + 4*c
                if j < P1 and not (abl & 16): assert ("W", t, e2, c) in p.lg
                p.wait(lg=lambda x: x == ("f", ff) or x == ("W", t, e2, c))
                p.mfma(acc + 4*c, freg[ff], W0, (j, c) not in acc_used)
                acc_used.add((j, c))
                m += 1
                pt_ = pt1 if cur_ep < 9 else pt2
                if rh == 1 and pt_ and (m - m_ep) % pt_ == 0: cur_pr = 1 - cur_pr; pe("s_setprio %d" % cur_pr)
                if od:
                    if e_ == 1 and f + pf + i_ < nF: frag_read(f + pf + i_, freg[ff])
                elif late and i_ == 0 and f + pf < nF: frag_read(f + pf)
                while hq and m >= hq[0][0]: hq.pop(0)[1]()
                while ldq and m >= ldpos[0]: ldq.pop(0)(); ldpos.pop(0)
                if rh == trh and cur_ep == trace and (m - m_tr) % tstep == 0 and ntr < len(TR) - 3: a.cstamp(ntr, TR); ntr += 1
                b = run_fill(per1)
                if not dqq:
                    if stag: run_ep(stb if (((m - m_ep + sto) // stag) % 2 == rh) else 0)
                    elif er: run_ep(min(b, (er*(m+1))//12 - (er*m)//12))
                    else: run_ep(min(b, per2))
            if t == 8 and e_ == 1:
                epq.append([m + epd, acc, epilogue(acc, 2*j + rh), 2*j + rh])
        assert not ldq and not dqq
        flush_ep()
        if rh == 0:
            pe("s_branch L_end")
            a.lab("L_skip")
            lst, lens, lm, n_ = skip_state
            p.lastmf = {k: p.n - (n_ - v) for k, v in lm.items()}
            for (acc, idx), ln in zip(lst, lens):
                ops = epilogue(acc, idx)
                for c, f in ops[len(ops)-ln:]: f()
            a.lab("L_end")
        if pst == rh:
            pstamp(rh)
            sys.stderr.write("pstamps: %d\n" % psn[0])
            a.dump_regs(PS[:psn[0]], 36, 256*rh)
        if stamps == 3 and rh == trh:
            sys.stderr.write("trace stamps: %d\n" % ntr)
            a.dump_regs(TR[:ntr], 36, 256*trh)
        if SL and rh == 0:
            a.stamp(1 + len(SL))
            a.dump_stamps(2 + len(SL), 36, vtmp=0)
        elif stamps and stamps < 3 and rh == 0:
            a.stamp(5)
            pe("s_waitcnt vmcnt(0)")
            a.stamp(6)
            if stamps == 2: a.dbg_stamps(7, 36)
            else: a.dump_stamps(7, 36, vtmp=0)
        pe("s_endpgm")
    a.lab("L_done")
    e("s_endpgm")
    a.descriptor(KN, 256, 102, 256)
    a.write(path)

if __name__ == "__main__":
    kw = dict(s.split("=") for s in sys.argv[2:])
    for k in kw:
        if k in ("sl", "kst", "xo", "ro", "caps", "nob"): pass
        elif k in ("spol", "qpol", "xpol", "tpol"): kw[k] = kw[k].replace("+", " ").replace("plain", "")
        else: kw[k] = int(kw[k])
    build(sys.argv[1], **kw)
```

```python
import sys
from asmlib import *

V_Q, V_XD, V_OUT, V_WR, V_WA0, V_WA1, V_TAB = 1, 2, 3, 4, 5, 6, 7
V_X = 8
V_T0, V_T1 = 14, 15
V_QJ = [1, 109, 110, 111]
V_S, V_NZ, V_PK = 32, 36, 40
V_D, V_E, V_O = 48, 52, 56
V_A1 = 60
V_W = 112
S_X, S_Q, S_S, S_Z, S_O, S_WS = 16, 20, 24, 28, 32, 36
S_P = 40
S_INV = 49
S_BASE, S_END, S_SPAN, S_B2, S_W3L, S_NB, S_W = 50, 51, 52, 53, 54, 55, 56
S_T, S_U, S_QO, S_EO = 57, 58, 59, 14
S_DJ = 60
S_M8, S_M8N, S_M4, S_M4N = 90, 92, 94, 96
S_PAN, S_CH, S_JH, S_RH, S_ROT = 3, 98, 99, 100, 101

class Prog:
    def __init__(self, a):
        self.a = a; self.vm = []; self.lg = []; self.vmdone = 0; self.lgdone = 0; self.n = 0
        self.lastmf = {}
    def e(self, s):
        self.a.e(s); self.n += 1
    def vmem(self, s, tag): self.e(s); self.vm.append(tag)
    def lds(self, s, tag): self.e(s); self.lg.append(tag)
    def _cnt(self, lst, done, pred):
        for i in range(len(lst)-1, done-1, -1):
            if pred(lst[i]): return i
        return -1
    def wait(self, vm=None, lg=None):
        parts = []
        if vm is not None:
            idx = self._cnt(self.vm, self.vmdone, vm)
            if idx >= 0:
                n = min(len(self.vm)-1-idx, 63)
                parts.append("vmcnt(%d)" % n); self.vmdone = len(self.vm) - n
        if lg is not None:
            idx = self._cnt(self.lg, self.lgdone, lg)
            if idx >= 0:
                n = min(len(self.lg)-1-idx, 15)
                parts.append("lgkmcnt(%d)" % n); self.lgdone = len(self.lg) - n
        if parts: self.e("s_waitcnt " + " ".join(parts))
    def lg_all(self):
        self.e("s_waitcnt lgkmcnt(0)"); self.lgdone = len(self.lg)
    def mfma(self, d, x, w, first):
        c = "0" if first else "v[%d:%d]" % (d, d+3)
        if self.sw: x, w = w, x
        self.e("v_mfma_f32_16x16x32_bf16 v[%d:%d], v[%d:%d], v[%d:%d], %s" % (d, d+3, x, x+3, w, w+3, c))
        self.lastmf[d] = self.n
    def need_mfma_done(self, d):
        if d in self.lastmf:
            gap = self.n - self.lastmf[d]
            if gap < 8: self.e("s_nop %d" % (8-gap-1))

def build(path, b1=12, D=3, n0=1, spol="nt", stamps=0, krot=1, rrot=4, dq0=0, dq1=0, per1=2, per2=2, cap=12, prio=0, pf=3,
          ld0=0, ldm=2, n1=2, epd=4, smid=4, qpol="", xpol="", abl=0, trace=-1, trh=0, tstep=4, early=0, qa=0, fseg=0, r9=0, hw=0, hw1=-1, tabe=0, xs=0, xs2=0, wst=1, cyc=0, sl="", p2s=0, wdel=0, epi=0, stc=1, pt1=0, pt2=0, pth=1, sk12=0, od=0, od2=-1, ipe=0, er=0, pk=0, sw=0, kst="", plm=1, xl0=-1, e7=-1, e8=-1, xfirst=0, pst=-1, pro=0, mid=3, mid0=2, tl=0, tg=128, tw=4, th=1, tp=-1, tpos=0, tn=1, tpol="", xd0=0, t0=2, xo="", ro="", fm=0, fck=9, xe7=-1, caps='', xe8=-1, xs7=-1, xs8=-1, nob='', stag=0, stb=2, sto=0, fall=0, spol2='', s2lo=0, s2hi=0):
    a = Asm(); e = a.e
    SL = [int(x) for x in sl.split("_")] if sl else []
    if cyc: a.stamp = lambda i, base=70: a.e("s_memtime s[%d:%d]" % (base+2*i, base+2*i+1))
    KN = NAME + "_kernel"
    P1 = b1 // 2
    assert b1 % 2 == 0 and (P1 <= 6 or (P1 == 7 and ipe and pf <= 3))
    V_A1 = 48 if P1 == 7 else 60
    assert pf <= 3 or (ipe and pf <= 6)
    if od2 < 0: od2 = od
    assert (od > 0) == (od2 > 0) and (not od or pf % 2 == 1)
    XF = [16, 20, 24, 28, 48, 52, 56][:pf+1]
    a.header(["; @launch grid=(256,1,1) block=(512,1,1) lds=%d" % (160*1024)])
    a.kernel_start(KN)
    TR = [70, 72, 74, 76, 78, 80, 82, 84, 86, 88, 4, 6, 8, 10, 12]
    if trace >= 0: stamps = 3
    PS = [70, 72, 74, 76, 78, 80, 82, 84, 86, 88, 4, 6, 8, 10, 12]
    psn = [0]
    def pstamp(rh_=None):
        if pst < 0 or (rh_ is not None and rh_ != pst): return
        e("s_memrealtime s[%d:%d]" % (PS[psn[0]], PS[psn[0]]+1)); psn[0] += 1
    if pst >= 0: stamps = 4
    pstamp()
    if stamps and stamps < 3: a.stamp(0)
    e("s_cmp_ge_u32 s2, 256"); e("s_cbranch_scc1 L_done")
    L, I, G = 20, 21, 22
    def late_scalars():
        pe_ = e
        pe_("s_cmp_lt_u32 s%d, 2" % S_R); pe_("s_cselect_b32 s%d, 19, 18" % S_NB)
        pe_("v_and_b32 v%d, 15, v0" % I)
        pe_("s_min_u32 s100, s%d, 2" % S_R); pe_("s_mul_i32 s%d, s%d, 18" % (S_T, S_R)); pe_("s_add_u32 s100, s100, s%d" % S_T)
        pe_("v_bfe_u32 v%d, v0, 4, 2" % G)
        pe_("s_add_u32 s%d, s100, s%d" % (S_T, S_NB)); pe_("s_mul_i32 s%d, s%d, 18432" % (S_END, S_T))
        pe_("s_mul_i32 s%d, s%d, 18432" % (S_SPAN, S_NB))
        pe_("s_and_b32 s98, s%d, 1" % S_W)
        pe_("s_bfe_u32 s99, s%d, 0x10001" % S_W)
        pe_("s_lshl_b32 s%d, s98, 2" % S_T); pe_("v_add_u32 v23, s%d, v%d" % (S_T, G)); pe_("v_and_b32 v24, 7, v%d" % L); pe_("v_xor_b32 v23, v23, v24")
        if ro:
            pe_("s_and_b32 s%d, s2, 7" % S_T); pe_("s_lshl_b32 s%d, s%d, 2" % (S_T, S_T)); pe_("s_lshr_b32 s%d, 0x%x, s%d" % (S_T, sum(int(ch, 16) << (4*i) for i, ch in enumerate(ro)), S_T)); pe_("s_and_b32 s%d, s%d, 15" % (S_T, S_T))
            pe_("s_add_u32 s100, s100, s%d" % S_T)
        elif rrot:
            pe_("s_sub_u32 s%d, s%d, 5" % (S_T, S_PL)); pe_("s_cmp_ge_u32 s%d, 5" % S_PL); pe_("s_cselect_b32 s%d, s%d, s%d" % (S_T, S_T, S_PL)); pe_("s_mul_i32 s%d, s%d, %d" % (S_T, S_T, rrot))
            pe_("s_add_u32 s100, s100, s%d" % S_T)
        pe_("v_lshrrev_b32 v24, 3, v%d" % L); pe_("v_mul_u32_u24 v24, 1152, v24"); pe_("v_lshl_add_u32 v%d, v23, 4, v24" % V_XD)
        pe_("s_mul_i32 s%d, s100, 18432" % S_BASE)
        pe_("s_mul_i32 s%d, s98, 9216" % S_T); pe_("v_add_u32 v%d, s%d, v%d" % (V_XD, S_T, V_XD))
        pe_("s_mul_i32 s%d, s99, 18432" % S_T); pe_("s_add_u32 s%d, s%d, s%d" % (S_B2, S_BASE, S_T))
        pe_("s_lshl_b32 s%d, s%d, 10" % (S_W3L, S_W)); pe_("s_and_b32 s%d, s%d, 0xc00" % (S_W3L, S_W3L))
        pe_("s_mov_b32 s%d, %d" % (S_X+2, M*K*2)); pe_("s_mov_b32 s%d, 0x00020000" % (S_X+3))
    def late2():
        for t in range(1, 9):
            e("s_add_u32 s%d, s%d, 128" % (S_P+t, S_P+t-1)); e("s_cmp_eq_u32 s%d, 1152" % (S_P+t)); e("s_cselect_b32 s%d, 0, s%d" % (S_P+t, S_P+t))
        e("s_mov_b32 s%d, %d" % (S_O+2, M*N*2)); e("s_mov_b32 s%d, 0x00020000" % (S_O+3))
        if stamps:
            e("s_mov_b32 s38, %s" % ("256" if stamps == 2 else "0x10000000")); e("s_mov_b32 s39, 0x00020000")
    def tab_addr():
        e("v_lshrrev_b32 v23, 5, v0"); e("v_add_u32 v23, s101, v23"); e("v_subrev_u32 v24, 9, v23"); e("v_min_u32 v23, v23, v24")
        e("v_bfe_u32 v24, v0, 4, 1"); e("v_lshl_add_u32 v23, v23, 1, v24"); e("v_mul_u32_u24 v23, 9216, v23")
        e("v_and_b32 v24, 15, v0"); e("v_lshl_add_u32 v23, v24, 4, v23"); e("s_lshl_b32 s%d, s3, 8" % S_T); e("v_add_u32 v%d, s%d, v23" % (V_T0, S_T))
        for sr in (S_S, S_Z):
            e("s_mov_b32 s%d, %d" % (sr+2, 18*N*2)); e("s_mov_b32 s%d, 0x00020000" % (sr+3))
    if pro:
        assert kst and plm == 1 and not early
        S_R, S_PL, S_NC = 15, 13, 12
        if pst >= 0 and tl: PS.remove(4)
        if pst >= 0: PS.remove(12)
        e("s_load_dwordx2 s[%d:%d], s[0:1], 8" % (S_Q, S_Q+1))
        e("s_load_dwordx2 s[%d:%d], s[0:1], 16" % (S_S, S_S+1))
        e("s_load_dwordx2 s[%d:%d], s[0:1], 24" % (S_Z, S_Z+1))
        e("s_load_dwordx2 s[%d:%d], s[0:1], 0" % (S_X, S_X+1))
        e("s_load_dwordx2 s[%d:%d], s[0:1], 32" % (S_O, S_O+1))
        if stamps: e("s_load_dwordx2 s[36:37], s[0:1], %d" % (40 if stamps == 2 else 48))
        e("v_lshrrev_b32 v1, 6, v0")
        e("s_and_b32 s3, s2, 1"); e("s_lshl_b32 s3, s3, 5"); e("s_lshr_b32 s98, s2, 3"); e("s_add_u32 s3, s3, s98")
        e("v_readfirstlane_b32 s%d, v1" % S_W)
        e("s_cmp_eq_u32 s3, 63"); e("s_cbranch_scc1 L_done")
        e("v_and_b32 v%d, 63, v0" % L)
        e("s_mul_i32 s%d, s3, 37" % S_PL); e("s_lshr_b32 s%d, s%d, 8" % (S_PL, S_PL))
        e("v_lshrrev_b32 v23, 3, v%d" % L)
        e("s_mul_i32 s%d, s%d, 7" % (S_R, S_PL)); e("s_sub_u32 s%d, s3, s%d" % (S_R, S_R))
        e("v_mul_u32_u24 v23, %d, v23" % (4*18432))
        e("s_bfe_u32 s3, s2, 0x20001"); e("s_mul_i32 s3, s3, 9"); e("s_add_u32 s3, s3, s%d" % S_PL)
        e("v_and_b32 v24, 7, v0")
        cst = sum(int(ch) << (4*i) for i, ch in enumerate(kst))
        e("s_lshl_b32 s101, s%d, 2" % S_R); e("s_lshr_b32 s101, 0x%x, s101" % cst); e("s_and_b32 s101, s101, 15")
        e("v_lshl_add_u32 v23, v24, 4, v23")
        if xo:
            e("s_and_b32 s100, s2, 7"); e("s_lshl_b32 s100, s100, 2"); e("s_lshr_b32 s100, 0x%x, s100" % sum(int(ch) << (4*i) for i, ch in enumerate(xo))); e("s_and_b32 s100, s100, 15")
            e("s_add_u32 s101, s101, s100")
        else: e("s_add_u32 s101, s101, s%d" % S_PL)
        e("s_sub_u32 s100, s101, 9"); e("s_min_u32 s101, s100, s101")
        e("s_lshl_b32 s%d, s101, 7" % S_P)
        e("s_lshr_b32 s100, s%d, 2" % S_W)
        e("s_mul_i32 s%d, s100, %d" % (S_T, 32*18432)); e("s_lshl_b32 s%d, s3, 9" % S_U); e("s_add_u32 s%d, s%d, s%d" % (S_T, S_T, S_U))
        e("s_and_b32 s%d, s%d, 3" % (S_U, S_W)); e("s_lshl_b32 s%d, s%d, 7" % (S_U, S_U)); e("s_add_u32 s%d, s%d, s%d" % (S_T, S_T, S_U))
        e("v_add_u32 v%d, s%d, v23" % (V_QJ[0], S_T))
        e("s_mov_b32 s%d, %d" % (S_Q+2, K*N*4)); e("s_mov_b32 s%d, 0x00020000" % (S_Q+3))
        for j in range(1, 4): e("v_add_u32 v%d, %d, v%d" % (V_QJ[j], 18432*j, V_QJ[0]))
        tab_addr()
        pstamp()
        e("s_cmp_lg_u32 s100, 0"); e("s_cbranch_scc1 L_rh1")
    else:
        e("s_load_dwordx2 s[%d:%d], s[0:1], 16" % (S_S, S_S+1))
        e("s_load_dwordx2 s[%d:%d], s[0:1], 24" % (S_Z, S_Z+1))
        e("s_load_dwordx2 s[%d:%d], s[0:1], 8" % (S_Q, S_Q+1))
        e("s_load_dwordx2 s[%d:%d], s[0:1], 0" % (S_X, S_X+1))
        e("s_load_dwordx2 s[%d:%d], s[0:1], 32" % (S_O, S_O+1))
        if stamps: e("s_load_dwordx2 s[36:37], s[0:1], %d" % (40 if stamps == 2 else 48))
        e("s_and_b32 s3, s2, 1"); e("s_lshl_b32 s3, s3, 5"); e("s_lshr_b32 s98, s2, 3"); e("s_add_u32 s3, s3, s98")
        e("s_cmp_eq_u32 s3, 63"); e("s_cbranch_scc1 L_done")
        e("v_lshrrev_b32 v1, 6, v0")
        e("s_mul_i32 s98, s3, 37"); e("s_lshr_b32 s98, s98, 8")
        e("v_readfirstlane_b32 s%d, v1" % S_W)
        e("s_mul_i32 s99, s98, 7"); e("s_sub_u32 s99, s3, s99")
        e("s_bfe_u32 s3, s2, 0x20001"); e("s_mul_i32 s3, s3, 9"); e("s_add_u32 s3, s3, s98")
        e("s_cmp_lt_u32 s99, 2"); e("s_cselect_b32 s%d, 19, 18" % S_NB)
        e("s_min_u32 s100, s99, 2"); e("s_mul_i32 s101, s99, 18"); e("s_add_u32 s100, s100, s101")
        e("s_add_u32 s101, s100, s%d" % S_NB); e("s_mul_i32 s%d, s101, 18432" % S_END)
        e("s_mul_i32 s%d, s%d, 18432" % (S_SPAN, S_NB))
        if rrot:
            e("s_sub_u32 s101, s98, 5"); e("s_cmp_ge_u32 s98, 5"); e("s_cselect_b32 s101, s101, s98"); e("s_mul_i32 s101, s101, %d" % rrot)
            e("s_add_u32 s100, s100, s101")
        e("s_mul_i32 s%d, s100, 18432" % S_BASE)
        if early:
            e("s_add_u32 s101, s99, s3"); e("s_mul_i32 s100, s101, 37"); e("s_lshr_b32 s100, s100, 8"); e("s_mul_i32 s100, s100, 7")
            e("s_sub_u32 s101, s101, s100"); e("s_add_u32 s101, s101, 2")
            e("s_mov_b32 s%d, 0" % S_P); e("s_movk_i32 s%d, 128" % (S_P+1))
            for t in range(2, 8):
                e("s_cmp_le_u32 s101, %d" % t); e("s_cselect_b32 s%d, %d, %d" % (S_P+t, 64*(t+1), 64*t) if 0 else "s_cselect_b32 s%d, 128, 0" % (S_P+t)); e("s_add_u32 s%d, s%d, %d" % (S_P+t, S_P+t, 128*t))
            e("s_lshl_b32 s%d, s101, 7" % (S_P+8))
        else:
          if kst:
            cst = sum(int(ch) << (4*i) for i, ch in enumerate(kst))
            e("s_lshl_b32 s101, s99, 2"); e("s_lshr_b32 s101, 0x%x, s101" % cst); e("s_and_b32 s101, s101, 15")
            pc = sum(((plm*i) % 9) << (4*i) for i in range(8))
            e("s_lshl_b32 s100, s98, 2"); e("s_lshr_b32 s100, 0x%x, s100" % pc); e("s_and_b32 s100, s100, 15"); e("s_cmp_eq_u32 s98, 8"); e("s_cselect_b32 s100, %d, s100" % ((plm*8) % 9))
            e("s_add_u32 s101, s101, s100")
            e("s_sub_u32 s100, s101, 9"); e("s_cmp_ge_u32 s101, 9"); e("s_cselect_b32 s101, s100, s101")
          elif krot == 3:
            e("s_mul_i32 s101, s99, 11"); e("s_lshr_b32 s101, s101, 5"); e("s_mul_i32 s101, s101, 3"); e("s_sub_u32 s101, s99, s101"); e("s_mul_i32 s101, s101, 3"); e("s_add_u32 s101, s101, s98")
            e("s_sub_u32 s100, s101, 9"); e("s_cmp_ge_u32 s101, 9"); e("s_cselect_b32 s101, s100, s101")
          elif krot == 4:
            e("s_and_b32 s101, s99, 6"); e("s_add_u32 s101, s101, s98")
            e("s_sub_u32 s100, s101, 9"); e("s_cmp_ge_u32 s101, 9"); e("s_cselect_b32 s101, s100, s101")
          elif krot == 5:
            e("s_and_b32 s101, s99, 6"); e("s_cmp_eq_u32 s99, 5"); e("s_cselect_b32 s101, 6, s101"); e("s_cmp_eq_u32 s99, 6"); e("s_cselect_b32 s101, 8, s101"); e("s_add_u32 s101, s101, s98")
            e("s_sub_u32 s100, s101, 9"); e("s_cmp_ge_u32 s101, 9"); e("s_cselect_b32 s101, s100, s101")
          elif krot == 2:
            e("s_mov_b32 s101, s98")
          elif krot:
            e("s_lshl_b32 s101, s98, 1"); e("s_add_u32 s101, s101, s99")
            if r9:
                e("s_cmp_ge_u32 s99, 4"); e("s_addc_u32 s101, s101, 0")
            for _ in range(2):
                e("s_sub_u32 s100, s101, 9"); e("s_cmp_ge_u32 s101, 9"); e("s_cselect_b32 s101, s100, s101")
          else:
            e("s_mov_b32 s101, 0")
          e("s_lshl_b32 s%d, s101, 7" % S_P)
          for t in range(1, 9):
            e("s_add_u32 s%d, s%d, 128" % (S_P+t, S_P+t-1)); e("s_cmp_eq_u32 s%d, 1152" % (S_P+t)); e("s_cselect_b32 s%d, 0, s%d" % (S_P+t, S_P+t))
        for (sr, nb_) in ((S_S, 18*N*2), (S_Z, 18*N*2), (S_Q, K*N*4), (S_X, M*K*2), (S_O, M*N*2)):
            e("s_mov_b32 s%d, %d" % (sr+2, nb_)); e("s_mov_b32 s%d, 0x00020000" % (sr+3))
        if stamps:
            e("s_mov_b32 s38, %s" % ("256" if stamps == 2 else "0x10000000")); e("s_mov_b32 s39, 0x00020000")
        L, I, G = 20, 21, 22
        e("v_and_b32 v%d, 63, v0" % L); e("v_and_b32 v%d, 15, v0" % I); e("v_bfe_u32 v%d, v0, 4, 2" % G)
        e("s_and_b32 s98, s%d, 1" % S_W)
        e("s_bfe_u32 s99, s%d, 0x10001" % S_W)
        e("s_lshr_b32 s100, s%d, 2" % S_W)
        if early:
            e("v_lshrrev_b32 v23, 5, v0"); e("v_mov_b32 v25, s101"); e("v_cmp_le_u32 vcc, s101, v23"); e("v_add_u32 v24, 1, v23"); e("s_nop 0")
            e("v_cndmask_b32 v24, v23, v24, vcc"); e("v_cmp_eq_u32 vcc, 8, v23"); e("s_nop 1"); e("v_cndmask_b32 v23, v24, v25, vcc")
        else:
            e("v_lshrrev_b32 v23, 5, v0"); e("v_add_u32 v23, s101, v23"); e("v_subrev_u32 v24, 9, v23"); e("v_min_u32 v23, v23, v24")
        e("v_and_b32 v24, 1, v%d" % G); e("v_lshl_add_u32 v23, v23, 1, v24"); e("v_mul_u32_u24 v23, 9216, v23")
        e("v_lshl_add_u32 v23, v%d, 4, v23" % I); e("s_lshl_b32 s%d, s3, 8" % S_T); e("v_add_u32 v%d, s%d, v23" % (V_T0, S_T))
        e("s_mul_i32 s%d, s100, %d" % (S_T, 32*18432)); e("s_lshl_b32 s%d, s3, 9" % S_U); e("s_add_u32 s%d, s%d, s%d" % (S_T, S_T, S_U))
        e("s_and_b32 s%d, s%d, 3" % (S_U, S_W)); e("s_lshl_b32 s%d, s%d, 7" % (S_U, S_U)); e("s_add_u32 s%d, s%d, s%d" % (S_T, S_T, S_U))
        e("v_lshrrev_b32 v23, 3, v%d" % L); e("v_mul_u32_u24 v23, %d, v23" % (4*18432)); e("v_and_b32 v24, 7, v%d" % L)
        e("v_lshl_add_u32 v23, v24, 4, v23"); e("v_add_u32 v%d, s%d, v23" % (V_QJ[0], S_T))
        for j in range(1, 4): e("v_add_u32 v%d, %d, v%d" % (V_QJ[j], 18432*j, V_QJ[0]))
        e("s_lshl_b32 s%d, s98, 2" % S_T); e("v_add_u32 v23, s%d, v%d" % (S_T, G)); e("v_and_b32 v24, 7, v%d" % L); e("v_xor_b32 v23, v23, v24")
        e("v_lshrrev_b32 v24, 3, v%d" % L); e("v_mul_u32_u24 v24, 1152, v24"); e("v_lshl_add_u32 v%d, v23, 4, v24" % V_XD)
        e("s_mul_i32 s%d, s98, 9216" % S_T); e("v_add_u32 v%d, s%d, v%d" % (V_XD, S_T, V_XD))
        e("s_mul_i32 s%d, s99, 18432" % S_T); e("s_add_u32 s%d, s%d, s%d" % (S_B2, S_BASE, S_T))
        e("s_lshl_b32 s%d, s%d, 10" % (S_W3L, S_W)); e("s_and_b32 s%d, s%d, 0xc00" % (S_W3L, S_W3L))
        pstamp()
        e("s_cmp_lg_u32 s100, 0"); e("s_cbranch_scc1 L_rh1")


    TAB = 0
    WS = [5*4096, 9*4096]
    frag_list = [(j, t, e_) for t in range(9) for j in range(P1) for e_ in range(2)] + [(j, t, e_) for j in range(P1, 10) for t in range(9) for e_ in range(2)]
    fidx = {k: i for i, k in enumerate(frag_list)}
    NE = 9 + (10 - P1)
    first = [fidx[(0, t, 0)] for t in range(9)] + [fidx[(j, 0, 0)] for j in range(P1, 10)]
    bpos = [0] + [first[ep] - pf for ep in range(1, NE)]
    def ep_of(f): return max(ep for ep in range(NE) if bpos[ep] <= f)
    NOB = set(int(ch, 16) for ch in nob)
    kept = [ep for ep in range(NE) if ep not in NOB]
    need = {(j, t): (t if j < P1 else max(k_ for k_ in kept if k_ <= 9 + j - P1)) for j in range(10) for t in range(9)}
    free_at = {g: -99 for g in range(13, 40)}
    for g in range(0, 5): free_at[g] = 8
    for g in range(5, 9): free_at[g] = 9
    for g in range(9, 13): free_at[g] = 8
    order = []
    for t in range(9 + qa if qa else 0):
        if t - qa >= 0: order += [("x", j, t - qa) for j in range(P1)]
        if t < 9: order.append(("q", t))
    if qa:
        order.remove(("q", 0)); order.insert(0, ("q", 0))
        i0 = [("x", j, 0) for j in range(P1)]
        for it in i0: order.remove(it)
        order[1:1] = i0
    for t in range(0 if qa else 9):
        if t == 2 and early:
            order.append(("q", 8))
            if early >= 2: order += [("x", j, 8) for j in range(P1)]
        if not (early and t == 8): order.append(("q", t))
        if not (early >= 2 and t == 8): order += [("x", j, t) for j in range(P1)]
    order += [("x", j, t) for j in range(P1, 10) for t in range(9)]
    def pos_of(it):
        t = it[-1]
        if qa: return t if it[0] == "x" else (0 if t == 0 else max(t - qa, 1 if n0 == 1 else 0))
        if not early: return t
        if t == 8 and (it[0] == "q" or early >= 2): return 2
        return t if t < 2 else t + 1
    issue = {}; gran = {}
    pend = list(order)
    for ep in [-2, -1] + list(range(NE)):
        n = 0
        while pend:
            it = pend[0]
            step = pos_of(it) if (it[0] == "q" or it[1] < P1) else 99
            lim = n0 if ep == -2 else (n1 if ep == -1 else min(ep + D + 1 + (1 if early else 0), n1 + 2*(ep+1)))
            if step < 99 and step >= lim: break
            cap_ = int(caps[ep-6], 36) if (caps and 0 <= ep-6 < len(caps)) else cap
            if step == 99: n2 = len([1 for k_ in issue if k_[0] == 'x' and k_[1] >= P1 and issue[k_] == ep])
            if step == 99 and (lim < 9 or (n2 if caps else n) >= cap_ or ep < p2s): break
            if it[0] == "x":
                cands = sorted(g for g in free_at if free_at[g] <= ep)
                if not cands: break
                g = cands[0]; gran[it[1:]] = g
                free_at[g] = min([k_ for k_ in kept if k_ >= ep_of(fidx[(it[1], it[2], 1)]) + 1] + [99])
                assert ep < need[it[1:]], (it, ep)
                n += 1
            else:
                assert ep < it[1] - 1 or it[1] == 0 or (it[1] == 1 and ep <= -1), (it, ep)
            issue[it] = ep; pend.pop(0)
    assert not pend
    if stamps or 1:
        sys.stderr.write("issue: " + " ".join("%d:[%s]" % (ep, ",".join(("q%d" % k[1] if k[0] == "q" else "%d.%d" % k[1:]) for k in order if issue[k] == ep)) for ep in [-2, -1] + list(range(NE))) + "\n")

    def xowner(j, t):
        ep = issue[("x", j, t)]
        if ep < 0: return (j + t) % 2
        lst = [it for it in order if it[0] == "x" and issue[it] == ep]
        i = lst.index(("x", j, t)); n = len(lst)
        x_ = xs if ep < 9 else xs2
        if ep == 7 and xs7 >= 0: x_ = xs7
        if ep == 8 and xs8 >= 0: x_ = xs8
        if x_ == 0: return (j + t) % 2
        return 0 if ((i+1)*x_)//6 != (i*x_)//6 else 1
    def xaddr(off, e_):
        return V_X + 2*(off >> 16) + e_, off & 0xffff

    lbl = [0]
    for rh in range(2):
        p = Prog(a); pe = p.e; p.sw = sw
        if rh: a.lab("L_rh1")
        if prio and rh == 1: pe("s_setprio %d" % prio)
        dj_done = set()
        def mk_dj(j):
            if j in dj_done: return
            dj_done.add(j)
            d = S_DJ + j
            pe("s_add_u32 s%d, s%d, %d" % (d, S_B2, 2*j*18432)); pe("s_cmp_ge_u32 s%d, s%d" % (d, S_END))
            pe("s_cselect_b32 s%d, s%d, 0" % (S_U, S_SPAN)); pe("s_sub_u32 s%d, s%d, s%d" % (d, d, S_U))
            if j == 9:
                pe("s_add_u32 s%d, s%d, 18" % (S_U, S_JH)); pe("s_cmp_ge_u32 s%d, s%d" % (S_U, S_NB)); pe("s_cselect_b32 s%d, 0x40000000, s%d" % (d, d))
        def load_ops(ep):
            ops = []
            for it in order:
                if issue[it] != ep: continue
                if it[0] == "q":
                    t = it[1]
                    if (abl & 4) and t >= 1: continue
                    for j in range(4):
                        def f(j=j, t=t):
                            if j == 0: pe("s_mul_i32 s%d, s%d, 9216" % (S_QO, S_P+t))
                            r = V_W + 16*t + 4*j
                            p.vmem("buffer_load_dwordx4 v[%d:%d], v%d, s[%d:%d], s%d offen %s" % (r, r+3, V_QJ[j], S_Q, S_Q+3, S_QO, qpol), ("q", t, j))
                        ops.append(f)
                else:
                    j, t = it[1:]
                    if xowner(j, t) != rh: continue
                    if (abl & 8) and t >= 1 and j < P1: continue
                    if (abl & 2048) and j >= P1: continue
                    def f(j=j, t=t):
                        mk_dj(j)
                        pe("s_add_u32 m0, s%d, %d" % (S_W3L, gran[(j, t)]*4096))
                        pe("s_add_u32 s%d, s%d, s%d" % (S_T, S_DJ+j, S_P+t))
                        p.vmem("buffer_load_dwordx4 v%d, s[%d:%d], s%d offen lds %s" % (V_XD, S_X, S_X+3, S_T, xpol), ("x", need[(j, t)]))
                    ops.append(f)
            if tl and rh == th:
                ks_ = sorted(set(int(ch) for ch in kst)); ncl = [((ks_[(i + 1) % len(ks_)] - ks_[i] - 1) % 9) + 1 for i in range(len(ks_))]
                ts = [t for t in range(t0, max(ncl)) if (max(tp, (t - tl) // tn) if t - tl >= 0 else tp) == ep]
                tops = []
                for t in ts:
                    def f(t=t):
                        pe("s_mul_i32 s%d, s%d, 9216" % (S_U, S_P+t))
                        if t >= min(ncl): pe("s_cmp_gt_u32 s%d, %d" % (S_NC, t)); pe("s_cselect_b32 s%d, s%d, 0x40000000" % (S_U, S_U))
                        p.vmem("buffer_load_dword v%d, v%d, s[%d:%d], s%d offen %s" % (V_T0, V_WA1, S_Q, S_Q+3, S_U, tpol), ("tch", t))
                    tops.append(f)
                k_ = len(ops) if (tpos == 0 or ep < 0) else tpos - 1
                ops = ops[:k_] + tops + ops[k_:]
            return ops
        def touch_addr():
            n_ = 64*512 // tg; sh = 2 if tg == 128 else 3
            ks = [int(ch) for ch in kst]; st = sorted(set(ks))
            rank = [ks[:r].count(ks[r]) for r in range(7)]
            cw4 = [-(-n_ // (ks.count(k_) * tw * 4)) for k_ in ks]
            ncs = [((st[(st.index(k_) + 1) % len(st)] - k_ - 1) % 9) + 1 for k_ in ks]
            assert max(cw4) <= 16
            nib = lambda l_: sum(v << (4*i) for i, v in enumerate(l_))
            pe("s_lshl_b32 s%d, s%d, 2" % (S_U, S_R))
            pe("s_lshr_b32 s%d, 0x%x, s%d" % (S_NC, nib(ncs), S_U)); pe("s_and_b32 s%d, s%d, 15" % (S_NC, S_NC))
            pe("s_lshr_b32 s4, 0x%x, s%d" % (nib([c - 1 for c in cw4]), S_U)); pe("s_and_b32 s4, s4, 15"); pe("s_lshl_b32 s4, s4, 2"); pe("s_add_u32 s4, s4, 4")
            pe("s_lshr_b32 s5, 0x%x, s%d" % (nib(rank), S_U)); pe("s_and_b32 s5, s5, 15"); pe("s_mul_i32 s5, s5, %d" % tw)
            pe("s_and_b32 s%d, s%d, 3" % (S_T, S_W)); pe("s_add_u32 s5, s5, s%d" % S_T); pe("s_mul_i32 s5, s5, s4")
            pe("s_cmp_lt_u32 s%d, %d" % (S_T, tw)); pe("s_cselect_b32 s4, s4, 0")
            pe("v_add_u32 v17, s5, v%d" % L)
            pe("v_lshrrev_b32 v18, %d, v17" % sh); pe("v_mul_u32_u24 v18, 18432, v18"); pe("v_and_b32 v19, %d, v17" % ((1 << sh) - 1))
            pe("v_lshl_add_u32 v18, v19, %d, v18" % (9 - sh)); pe("s_lshl_b32 s%d, s3, 9" % S_T); pe("v_add_u32 v18, s%d, v18" % S_T)
            pe("v_mov_b32 v19, 0x40000000")
            pe("v_cmp_gt_u32 vcc, s4, v%d" % L); pe("s_movk_i32 s%d, %d" % (S_U, n_)); pe("s_nop 0"); pe("v_cndmask_b32 v18, v19, v18, vcc")
            pe("v_cmp_gt_u32 vcc, s%d, v17" % S_U); pe("s_nop 1"); pe("v_cndmask_b32 v%d, v19, v18, vcc" % V_WA1)
        if pro:
            if rh == 1:
                pe("s_cmp_eq_u32 s%d, 4" % S_W); pe("s_cselect_b32 exec_lo, -1, 0"); pe("s_mov_b32 exec_hi, 0")
            pstamp(rh)
            pe("s_waitcnt lgkmcnt(0)")
            pstamp(rh)
            tb = 48 if rh else 24
            p.vmem("buffer_load_dwordx4 v[%d:%d], v%d, s[%d:%d], 0 offen" % (tb, tb+3, V_T0, S_S, S_S+3), "tab")
            p.vmem("buffer_load_dwordx4 v[%d:%d], v%d, s[%d:%d], 0 offen" % (tb+4, tb+7, V_T0, S_Z, S_Z+3), "tab")
            if rh == 1: pe("s_mov_b64 exec, -1")
            l0 = load_ops(-2)
            for f in l0[:4]: f()
            sv_out = len(a.out)
            late_scalars()
            a.out[sv_out:] = [l.replace("v23", "v16").replace("v24", "v17") for l in a.out[sv_out:]]
            nx0 = len([1 for it in order if issue[it] == -2 and it[0] == "x" and xowner(it[1], it[2]) == rh])
            xlate = []
            if xd0 & (1 << rh): xlate = l0[4:4+nx0]
            else:
                for f in l0[4:4+nx0]: f()
            pstamp(rh)
            late2()
            if tl and rh == th: touch_addr()
            if not xlate:
                for f in l0[4+nx0:]: f()
        else:
            for it in order:
                if issue[it] == -2 and it[0] == "x" and xowner(it[1], it[2]) == rh: mk_dj(it[1])
            if rh == 1:
                pe("v_mov_b32 v%d, 0x7fffffff" % V_T1); pe("v_cmp_gt_u32 vcc, 288, v0"); pe("s_nop 1"); pe("v_cndmask_b32 v%d, v%d, v%d, vcc" % (V_T0, V_T1, V_T0))
            pstamp(rh)
            pe("s_waitcnt lgkmcnt(0)")
            pstamp(rh)
            p.vmem("buffer_load_dwordx4 v[24:27], v%d, s[%d:%d], 0 offen" % (V_T0, S_S, S_S+3), "tab")
            p.vmem("buffer_load_dwordx4 v[28:31], v%d, s[%d:%d], 0 offen" % (V_T0, S_Z, S_Z+3), "tab")
            for f in load_ops(-2): f()
            if stamps and stamps < 3 and not SL: a.stamp(1)
            pstamp(rh)
        pe("v_lshrrev_b32 v16, 2, v%d" % L); pe("v_mul_u32_u24 v16, 9216, v16"); pe("v_and_b32 v17, 3, v%d" % L); pe("v_lshl_add_u32 v16, v17, 4, v16")
        pe("s_lshr_b32 s%d, s%d, 4" % (S_T, S_W3L)); pe("s_lshl_b32 s%d, s3, 8" % S_U); pe("s_add_u32 s%d, s%d, s%d" % (S_T, S_T, S_U)); pe("v_add_u32 v%d, s%d, v16" % (V_OUT, S_T))
        if sw:
            pe("v_mul_u32_u24 v16, 9216, v%d" % I); pe("v_lshl_add_u32 v16, v%d, 4, v16" % G); pe("v_add_u32 v%d, s%d, v16" % (V_OUT, S_T))
        if epi == 1:
            pe("v_and_b32 v16, 3, v%d" % I); pe("v_lshlrev_b32 v16, 4, v16"); pe("v_lshrrev_b32 v17, 3, v%d" % I); pe("v_lshl_add_u32 v16, v17, 3, v16")
            pe("v_bfe_u32 v17, v%d, 2, 1" % I); pe("v_lshl_add_u32 v16, v17, 2, v16"); pe("v_mul_u32_u24 v17, %d, v%d" % (4*9216, G)); pe("v_add_u32 v16, v16, v17")
            pe("v_add_u32 v%d, s%d, v16" % (V_E, S_T))
            for r in range(1, 4): pe("v_add_u32 v%d, %d, v%d" % (V_E+r, 9216*r, V_E))
        if fseg == 128:
            pe("v_lshrrev_b32 v16, 3, v%d" % L); pe("v_mul_u32_u24 v16, 9216, v16"); pe("v_and_b32 v17, 7, v%d" % L); pe("v_lshl_add_u32 v16, v17, 4, v16")
            pe("s_and_b32 s%d, s%d, 1" % (S_T, S_W)); pe("s_lshl_b32 s%d, s%d, 7" % (S_T, S_T)); pe("s_add_u32 s%d, s%d, s%d" % (S_U, S_T, S_U))
            pe("s_bfe_u32 s%d, s%d, 0x10001" % (S_T, S_W)); pe("s_mul_i32 s%d, s%d, %d" % (S_T, S_T, 8*9216)); pe("s_add_u32 s%d, s%d, s%d" % (S_T, S_T, S_U)); pe("v_add_u32 v%d, s%d, v16" % (V_OUT, S_T))
        if fseg == 256:
            pe("v_lshrrev_b32 v16, 4, v%d" % L); pe("v_mul_u32_u24 v16, 9216, v16"); pe("v_and_b32 v17, 15, v%d" % L); pe("v_lshl_add_u32 v16, v17, 4, v16")
            pe("s_and_b32 s%d, s%d, 3" % (S_T, S_W)); pe("s_mul_i32 s%d, s%d, %d" % (S_T, S_T, 4*9216)); pe("s_add_u32 s%d, s%d, s%d" % (S_T, S_T, S_U)); pe("v_add_u32 v%d, s%d, v16" % (V_OUT, S_T))
        pe("v_bfe_u32 v16, v%d, 2, 1" % I); pe("v_and_b32 v17, 3, v%d" % I); pe("v_lshlrev_b32 v17, 1, v17"); pe("v_lshrrev_b32 v18, 3, v%d" % I); pe("v_add_u32 v17, v17, v18")
        if sw: pe("v_and_b32 v16, 1, v%d" % I); pe("v_lshrrev_b32 v17, 1, v%d" % I)
        pe("v_lshlrev_b32 v17, 4, v17"); pe("v_lshl_add_u32 v17, v16, 10, v17"); pe("v_lshl_add_u32 v17, v%d, 7, v17" % G)
        pe("s_lshl_b32 s%d, s%d, 1" % (S_T, S_W3L)); pe("v_add_u32 v%d, s%d, v17" % (V_WR, S_T))
        pe("v_and_b32 v16, 7, v%d" % I); pe("v_lshlrev_b32 v16, 4, v16"); pe("v_lshl_add_u32 v17, v18, 3, v16"); pe("v_lshl_add_u32 v17, v%d, 7, v17" % G)
        pe("s_add_u32 s%d, s%d, %d" % (S_T, S_T, rh*8192)); pe("v_add_u32 v%d, s%d, v17" % (V_WA0, S_T))
        pe("s_lshr_b32 s%d, s%d, 3" % (S_T, S_W3L)); pe("s_add_u32 s%d, s%d, %d" % (S_T, S_T, rh*1024 + TAB)); pe("v_add_u32 v%d, s%d, v16" % (V_TAB, S_T))
        pe("v_lshrrev_b32 v16, 1, v%d" % I); pe("v_xor_b32 v16, v16, v%d" % G); pe("v_lshlrev_b32 v16, 4, v16"); pe("v_lshl_add_u32 v%d, v%d, 7, v16" % (V_X, I))
        if rh: pe("v_add_u32 v%d, 2048, v%d" % (V_X, V_X))
        pe("v_xor_b32 v%d, 64, v%d" % (V_X+1, V_X))
        for w_ in (1, 2):
            pe("v_add_u32 v%d, %d, v%d" % (V_X+2*w_, w_ << 16, V_X)); pe("v_add_u32 v%d, %d, v%d" % (V_X+2*w_+1, w_ << 16, V_X+1))
        pe("v_lshrrev_b32 v16, 4, v0"); pe("v_lshlrev_b32 v16, 10, v16"); pe("v_lshl_add_u32 v%d, v%d, 5, v16" % (V_T1, I))
        pe("s_mov_b32 s%d, 0x00ff00ff" % S_M8); pe("s_mov_b32 s%d, 0x00ff00ff" % (S_M8+1)); pe("s_not_b64 s[%d:%d], s[%d:%d]" % (S_M8N, S_M8N+1, S_M8, S_M8+1))
        pe("s_mov_b32 s%d, 0x0f0f0f0f" % S_M4); pe("s_mov_b32 s%d, 0x0f0f0f0f" % (S_M4+1)); pe("s_not_b64 s[%d:%d], s[%d:%d]" % (S_M4N, S_M4N+1, S_M4, S_M4+1))
        def tab_build(tb, T0):
            if rh == 1:
                pe("s_cmp_lg_u32 s%d, 4" % S_W); pe("s_cbranch_scc1 L_notab")
                pe("s_mov_b32 exec_hi, 0")
            sv = p.vmdone
            p.wait(vm=lambda x: x == "tab")
            if not (pro and rh): pstamp(rh)
            for c in range(4):
                pe("v_lshlrev_b32 v%d, 16, v%d" % (T0+2*c, tb+c)); pe("v_and_b32 v%d, 0xffff0000, v%d" % (T0+1+2*c, tb+c))
                pe("v_lshlrev_b32 v%d, 16, v%d" % (T0+8+2*c, tb+4+c)); pe("v_and_b32 v%d, 0xffff0000, v%d" % (T0+9+2*c, tb+4+c))
            if not fm: pe("ds_write_b128 v%d, v[%d:%d] offset:%d" % (V_T1, T0, T0+3, TAB)); pe("ds_write_b128 v%d, v[%d:%d] offset:%d" % (V_T1, T0+4, T0+7, TAB+16))
            for c in range(8): pe("v_mul_f32 v%d, -v%d, v%d" % (T0+8+c, T0+8+c, T0+c))
            pe("ds_write_b128 v%d, v[%d:%d] offset:%d" % (V_T1, T0+8, T0+11, TAB+512)); pe("ds_write_b128 v%d, v[%d:%d] offset:%d" % (V_T1, T0+12, T0+15, TAB+528))
            if fm:
                for c in range(8): pe("v_mul_f32 v%d, 0x4b800000, v%d" % (T0+c, T0+c))
                pe("ds_write_b128 v%d, v[%d:%d] offset:%d" % (V_T1, T0, T0+3, TAB)); pe("ds_write_b128 v%d, v[%d:%d] offset:%d" % (V_T1, T0+4, T0+7, TAB+16))
            pe("s_waitcnt lgkmcnt(0)")
            if rh == 1:
                pe("s_mov_b32 exec_hi, -1")
                a.lab("L_notab")
                p.vmdone = sv
        if not (pro and rh): tab_build(24, 32)
        else: pstamp(rh)
        if pro and xlate and not (xd0 & 4):
            for f in l0[4:]: f()
        pe("s_barrier")
        if pro and xlate and (xd0 & 4):
            for f in l0[4:]: f()
        pstamp(rh)
        def tab_reads(t):
            p.lds("ds_read_b128 v[%d:%d], v%d offset:%d" % (V_S, V_S+3, V_TAB, t*2048), ("t", t))
            p.lds("ds_read_b128 v[%d:%d], v%d offset:%d" % (V_NZ, V_NZ+3, V_TAB, t*2048+512), ("t", t))
        def dequant(t):
            R = V_W + 16*t
            ops = []
            for j in range(4):
                ops.append((0, lambda j=j: p.wait(vm=lambda x: x == ("q", t, j))))
                if fm:
                    if fm & 1:
                        if j == 0:
                            ops.append((1, lambda: pe("v_or3_b32 v%d, v%d, v%d, v%d" % (V_T0, R, R+1, R+2))))
                            ops.append((1, lambda: pe("v_or_b32 v%d, v%d, v%d" % (V_T0, V_T0, R+3))))
                        else:
                            for c in (0, 2): ops.append((1, lambda x=4*j+c: pe("v_or3_b32 v%d, v%d, v%d, v%d" % (V_T0, V_T0, R+x, R+x+1))))
                        if j == 3:
                            ops.append((1, lambda: pe("v_cmp_lt_u32 vcc, 0x3ff, v%d" % V_T0)))
                            ops.append((0, lambda: pe("s_cbranch_vccnz L_done")))
                elif not (abl & 129):
                    for c in range(4): ops.append((1, lambda x=4*j+c: pe("v_cvt_f32_i32 v%d, v%d" % (R+x, R+x))))
            def wt():
                assert ("t", t) in p.lg or abl
                p.wait(lg=lambda x: x == ("t", t))
            ops.append((0, wt))
            for c in range(4):
                if abl & 1:
                    if not (abl & 2): ops.append((0, lambda c=c: p.lds("ds_write_b64 v%d, v[%d:%d] offset:%d" % (V_WA0, V_PK+2*c, V_PK+2*c+1, WS[t % 2] + c*512), ("w", t))))
                    continue
                if pk:
                    if c % 2 == 0:
                        for j in range(4): ops.append((1, lambda x=4*j+c: pe("v_pk_fma_f32 v[%d:%d], v[%d:%d], v[%d:%d], v[%d:%d]" % (R+x, R+x+1, R+x, R+x+1, V_S+(x & 3), V_S+(x & 3)+1, V_NZ+(x & 3), V_NZ+(x & 3)+1))))
                elif fm:
                    if (fm & 4) and t < fck:
                        for j in (0, 2): ops.append((1, lambda x=4*j+c: pe("v_or3_b32 v%d, v%d, v%d, v%d" % (V_T0, V_T0, R+x, R+x+4))))
                    for j in range(4): ops.append((1, lambda x=4*j+c: pe("v_fma_mix_f32 v%d, v%d, v%d, v%d op_sel_hi:[1,0,0]" % (R+x, R+x, V_S+(x & 3), V_NZ+(x & 3)))))
                else:
                    for j in range(4): ops.append((1, lambda x=4*j+c: pe("v_fma_f32 v%d, v%d, v%d, v%d" % (R+x, R+x, V_S+(x & 3), V_NZ+(x & 3)))))
                ops.append((1, lambda c=c: pe("v_cvt_pk_bf16_f32 v%d, v%d, v%d" % (V_PK+2*c, R+c, R+4+c))))
                ops.append((1, lambda c=c: pe("v_cvt_pk_bf16_f32 v%d, v%d, v%d" % (V_PK+2*c+1, R+8+c, R+12+c))))
                if not (abl & 2) and not ((abl & 4096) and rh == 0 and t >= 1): ops.append((0, lambda c=c: p.lds("ds_write_b64 v%d, v[%d:%d] offset:%d" % (V_WA0, V_PK+2*c, V_PK+2*c+1, WS[t % 2] + c*512), ("w", t)), "w"))
            if wdel:
                o2 = []; held = []
                for o in ops:
                    if len(o) == 3: held.append([wdel, o[:2]]); continue
                    o2.append(o)
                    if o[0]:
                        for h in held: h[0] -= 1
                        while held and held[0][0] <= 0: o2.append(held.pop(0)[1])
                o2 += [h[1] for h in held]
                ops = o2
            ops = [o[:2] for o in ops]
            return ops
        def epilogue(acc, idx):
            ops = []
            V_D, V_E, V_O = (acc, acc+4, acc) if ipe else (48, 52, 56)
            def firstop():
                p.need_mfma_done(acc); p.need_mfma_done(acc+4)
                pe("v_cvt_pk_bf16_f32 v%d, v%d, v%d" % (V_D, acc, acc+4))
            ops.append((1, firstop))
            for r in range(1, 4): ops.append((1, lambda r=r: pe("v_cvt_pk_bf16_f32 v%d, v%d, v%d" % (V_D+r, acc+r, acc+4+r))))
            if epi == 1:
                ops = []
                dd = V_D if idx % 4 < 2 else V_O
                def firstop():
                    p.need_mfma_done(acc); p.need_mfma_done(acc+4)
                    pe("s_add_u32 s%d, s%d, %d" % (S_EO, S_BASE, idx*18432)); pe("s_cmp_ge_u32 s%d, s%d" % (S_EO, S_END)); pe("s_cselect_b32 s%d, s%d, 0" % (S_INV, S_SPAN))
                    pe("v_cvt_pk_bf16_f32 v%d, v%d, v%d" % (dd, acc, acc+4))
                    pe("s_sub_u32 s%d, s%d, s%d" % (S_EO, S_EO, S_INV)); pe("s_lshl_b32 s%d, s%d, 3" % (S_EO, S_EO))
                ops.append((1, firstop))
                for r in range(1, 4): ops.append((1, lambda r=r: pe("v_cvt_pk_bf16_f32 v%d, v%d, v%d" % (dd+r, acc+r, acc+4+r))))
                for r in range(4): ops.append((stc, lambda r=r: p.vmem("buffer_store_dword v%d, v%d, s[%d:%d], s%d offen %s" % (dd+r, V_E+r, S_O, S_O+3, S_EO, spol), "st")))
                return ops
            if sw:
                ops.insert(1, (0, lambda: (pe("s_add_u32 s%d, s%d, %d" % (S_EO, S_BASE, idx*18432)), pe("s_cmp_ge_u32 s%d, s%d" % (S_EO, S_END)), pe("s_cselect_b32 s%d, s%d, 0" % (S_INV, S_SPAN)))))
                ops.insert(3, (0, lambda: (pe("s_sub_u32 s%d, s%d, s%d" % (S_EO, S_EO, S_INV)), pe("s_lshl_b32 s%d, s%d, 3" % (S_EO, S_EO)))))
                ops.append((0, lambda: p.vmem("buffer_store_dwordx4 v[%d:%d], v%d, s[%d:%d], s%d offen %s" % (V_D, V_D+3, V_OUT, S_O, S_O+3, S_EO, spol), "st")))
                return ops
            def dpp(d, s0, s1, ror): pe("v_cndmask_b32_dpp v%d, v%d, v%d, vcc row_ror:%d row_mask:0xf bank_mask:0xf" % (d, s0, s1, ror))
            ops.append((0, lambda: (pe("s_mov_b64 vcc, s[%d:%d]" % (S_M8, S_M8+1)), pe("s_add_u32 s%d, s%d, %d" % (S_EO, S_BASE, idx*18432)))))
            ops.append((1, lambda: dpp(V_E+0, V_D+2, V_D+0, 8)))
            ops.append((1, lambda: dpp(V_E+1, V_D+3, V_D+1, 8)))
            ops.append((0, lambda: (pe("s_mov_b64 vcc, s[%d:%d]" % (S_M8N, S_M8N+1)), pe("s_cmp_ge_u32 s%d, s%d" % (S_EO, S_END)), pe("s_cselect_b32 s%d, s%d, 0" % (S_INV, S_SPAN)))))
            ops.append((1, lambda: dpp(V_E+2, V_D+0, V_D+2, 8)))
            ops.append((1, lambda: dpp(V_E+3, V_D+1, V_D+3, 8)))
            ops.append((0, lambda: (pe("s_mov_b64 vcc, s[%d:%d]" % (S_M4, S_M4+1)), pe("s_sub_u32 s%d, s%d, s%d" % (S_EO, S_EO, S_INV)))))
            ops.append((1, lambda: dpp(V_O+0, V_E+1, V_E+0, 4)))
            ops.append((1, lambda: dpp(V_O+2, V_E+3, V_E+2, 4)))
            ops.append((0, lambda: (pe("s_mov_b64 vcc, s[%d:%d]" % (S_M4N, S_M4N+1)), pe("s_lshl_b32 s%d, s%d, 3" % (S_EO, S_EO)))))
            ops.append((1, lambda: dpp(V_O+1, V_E+0, V_E+1, 12)))
            ops.append((1, lambda: dpp(V_O+3, V_E+2, V_E+3, 12)))
            if abl & 1024: ops = [(c_, (lambda: None) if c_ else f_) for c_, f_ in ops]
            if abl & 8192:
                def st_():
                    lbl[0] += 1
                    pe("s_cmp_lg_u32 s%d, 0" % S_W3L); pe("s_cbranch_scc1 L_s%d" % lbl[0])
                    pe("buffer_store_dwordx4 v[%d:%d], v%d, s[%d:%d], s%d offen %s" % (V_O, V_O+3, V_OUT, S_O, S_O+3, S_EO, spol))
                    a.lab("L_s%d" % lbl[0])
                ops.append((0, st_))
            elif not (abl & 256) or ((abl & 512) and idx >= 12): ops.append((0, lambda: p.vmem("buffer_store_dwordx4 v[%d:%d], v%d, s[%d:%d], s%d offen %s" % (V_O, V_O+3, V_OUT, S_O, S_O+3, S_EO, spol2 if s2lo <= idx < s2hi else spol), "st")))
            return ops
        def guarantees(ep):
            p.wait(vm=lambda x: x[0] == "x" and x[1] <= ep, lg=lambda x: x == ("w", ep))
        tab_reads(0)
        lds_ = load_ops(-1)
        dq = dequant(0)
        k = 0
        for i, (c, f) in enumerate(dq):
            f()
            if i in (0, 15): pstamp(rh)
            if c and i % mid == mid0 and k < len(lds_): lds_[k](); k += 1
        if pro == 2 and rh: tab_build(48, 60)
        while k < len(lds_): lds_[k](); k += 1
        if pro == 1 and rh: tab_build(48, 60)
        nF = len(frag_list) - (18 if rh else 0)
        def acc_of(j): return V_A1 + 8*j if j < P1 else V_S + 8*((j - P1) % 2)
        freg = {}
        def frag_read(f, b=None):
            j, t, e_ = frag_list[f]
            if b is None: b = XF[f % len(XF)]
            r, o = xaddr(gran[(j, t)]*4096, e_)
            if not ((abl & 32) and f > 4): p.lds("ds_read_b128 v[%d:%d], v%d offset:%d" % (b, b+3, r, o), ("f", f))
            freg[f] = b
        dqq = []; dq_at = 0
        epq = []
        ldq = []; ld_at = 0
        m = 0; ntr = 0; cur_ep = -1; m_tr = 0; hq = []
        def run_fill(budget):
            while dqq and m >= dq_at and (budget > 0 or dqq[0][0] == 0):
                c, f = dqq.pop(0); f(); budget -= c
            return budget
        def run_ep(budget):
            while epq and m >= epq[0][0] and (budget > 0 or epq[0][2][0][0] == 0):
                c, f = epq[0][2].pop(0); f(); budget -= c
                if not epq[0][2]: epq.pop(0)
        def flush_ep(upto_acc=None):
            k_ = 0
            while epq and (upto_acc is None or any(x[1] == upto_acc for x in epq)):
                c, f = epq[0][2].pop(0); f(); k_ += 1
                if not epq[0][2]: epq.pop(0)
            if k_ and ipe and upto_acc is not None: pe("s_nop 1")
        def seq_of(f):
            o_ = od if frag_list[f][0] < P1 else od2
            if o_ == 0: return [(0, 0), (1, 0), (0, 1), (1, 1)]
            if o_ == 1: return [(0, 0), (0, 1), (1, 0), (1, 1)]
            if o_ == 3 or (f // 2) % 2 == 0: return [(0, 0), (0, 1), (1, 1), (1, 0)]
            return [(1, 0), (1, 1), (0, 1), (0, 0)]
        acc_used = set()
        for f in range(nF):
            j, t, e_ = frag_list[f]
            if f in bpos:
                ep = bpos.index(f)
                while ldq: ldq.pop(0)()
                while dqq: dqq.pop(0)[1]()
                if rh == trh and ep == trace + 1 and trace >= 0: a.cstamp(ntr, TR); ntr += 1
                if ep == 0: pstamp(rh)
                if ep not in NOB: guarantees(ep)
                if rh == trh and ep == trace + 1 and trace >= 0: a.cstamp(ntr, TR); ntr += 1
                if not ((abl & 64) and 1 <= ep <= 8) and ep not in NOB: pe("s_barrier")
                if rh == trh and ep in (trace, trace + 1) and trace >= 0: a.cstamp(ntr, TR); ntr += 1; m_tr = m
                cur_ep = ep; m_ep = m
                if ep <= 2 and pst == rh: pstamp(rh); p.lg_all()
                if rh == 1 and (pt1 if ep < 9 else pt2): pe("s_setprio %d" % pth); cur_pr = pth
                elif rh == 1 and ep == 9 and pt1: pe("s_setprio %d" % prio)
                if SL and ep in SL and rh == 0:
                    a.stamp(1 + SL.index(ep)); p.lg_all()
                if stamps and stamps < 3 and ep in (0, smid, 9) and not SL:
                    a.stamp({0: 2, smid: 3, 9: 4}[ep]); p.lg_all()
                hq = []
                h_ = hw if (rh == 0 or hw1 < 0) else hw1
                if ep <= 8 and not ((abl & 16) and ep >= 1):
                    for i_, (c, ks) in enumerate(seq_of(first[ep])):
                        if 1:
                            def wr(ks=ks, c=c, ep=ep):
                                r = V_W + 16*ep + 8*ks + 4*c
                                p.lds("ds_read_b128 v[%d:%d], v%d offset:%d" % (r, r+3, V_WR, WS[ep % 2] + ks*8192 + c*512), ("W", ep, ks, c))
                            if h_ and ep >= 1: hq.append([m + h_ + wst*i_, wr])
                            else: wr()
                if ep == 0:
                    for f2 in range(pf + (1 if od else 0)): frag_read(f2)
                if ep + 1 <= 8:
                    if not (abl & 16) and not (tabe == 1 and ep >= 1):
                        if tabe == 2 and ep >= 1: hq.append([m + h_ + 4*wst, lambda ep=ep: tab_reads(ep+1)])
                        else: tab_reads(ep+1)
                    dqq = dequant(ep+1); dq_at = m + (dq1 if rh else dq0)
                    if tabe == 1 and ep + 2 <= 8:
                        k_ = max(i for i, (c_, f_) in enumerate(dqq) if c_) - 2
                        dqq.insert(k_ + 1, (0, lambda ep=ep: tab_reads(ep+2)))
                ldq = load_ops(ep)
                nM = 2*((bpos[ep+1] if ep+1 < NE else nF) - f)
                n_ = len(ldq)
                l0_ = ld0
                if ep == 7 and e7 >= 0: l0_ = e7
                if ep == 8 and e8 >= 0: l0_ = e8
                ldpos = [m + l0_ + int((i + 0.5*rh + 0.25) * (nM - l0_ - ldm) / max(n_, 1)) for i in range(n_)]
                if ep == 7 and xe7 >= 0: ldpos = [m + l0_ + int((i + 0.5*rh + 0.25) * (xe7 - l0_) / max(n_, 1)) for i in range(n_)]
                if ep == 8 and xe8 >= 0: ldpos = [m + l0_ + int((i + 0.5*rh + 0.25) * (xe8 - l0_) / max(n_, 1)) for i in range(n_)]
                if xl0 >= 0 and ep <= 6 and n_ > 4:
                    if xfirst:
                        ldq = ldq[4:] + ldq[:4]; na = n_ - 4
                    else: na = 4
                    ldpos = [m + ld0 + int((i + 0.5*rh + 0.25) * (xl0 - ld0) / na) for i in range(na)] + [m + xl0 + int((i + 0.5*rh + 0.25) * (nM - xl0 - ldm) / (n_ - na)) for i in range(n_ - na)]
            if rh == 0 and f == fidx[(9, 0, 0)]:
                if fall:
                    pe("s_cmp_lg_u32 s%d, 18" % S_NB); pe("s_cbranch_scc1 L_p9"); fall_at = len(a.out); a.lab("L_p9")
                else:
                    pe("s_cmp_eq_u32 s%d, 18" % S_NB); pe("s_cbranch_scc1 L_skip")
                skip_state = ([(x[1], x[3]) for x in epq], [len(x[2]) for x in epq], dict(p.lastmf), p.n)
            late = (hw and f in bpos and f > 0)
            if f + pf < nF and not late and not od: frag_read(f + pf)
            acc = acc_of(j)
            if j >= P1 and t == 0 and e_ == 0: flush_ep(acc)
            for i_, (c, e2) in enumerate(seq_of(f)[2*e_:2*e_+2]):
                ff = f - e_ + e2
                W0 = V_W + 16*t + 8*e2 + 4*c
                if j < P1 and not (abl & 16): assert ("W", t, e2, c) in p.lg
                p.wait(lg=lambda x: x == ("f", ff) or x == ("W", t, e2, c))
                p.mfma(acc + 4*c, freg[ff], W0, (j, c) not in acc_used)
                acc_used.add((j, c))
                m += 1
                pt_ = pt1 if cur_ep < 9 else pt2
                if rh == 1 and pt_ and (m - m_ep) % pt_ == 0: cur_pr = 1 - cur_pr; pe("s_setprio %d" % cur_pr)
                if od:
                    if e_ == 1 and f + pf + i_ < nF: frag_read(f + pf + i_, freg[ff])
                elif late and i_ == 0 and f + pf < nF: frag_read(f + pf)
                while hq and m >= hq[0][0]: hq.pop(0)[1]()
                while ldq and m >= ldpos[0]: ldq.pop(0)(); ldpos.pop(0)
                if rh == trh and cur_ep == trace and (m - m_tr) % tstep == 0 and ntr < len(TR) - 3: a.cstamp(ntr, TR); ntr += 1
                b = run_fill(per1)
                if not dqq:
                    if stag: run_ep(stb if (((m - m_ep + sto) // stag) % 2 == rh) else 0)
                    elif er: run_ep(min(b, (er*(m+1))//12 - (er*m)//12))
                    else: run_ep(min(b, per2))
            if t == 8 and e_ == 1:
                epq.append([m + epd, acc, epilogue(acc, 2*j + rh), 2*j + rh])
        assert not ldq and not dqq
        flush_ep()
        if rh == 0:
            if not fall:
                pe("s_branch L_end")
                a.lab("L_skip")
            sk0 = len(a.out)
            lst, lens, lm, n_ = skip_state
            p.lastmf = {k: p.n - (n_ - v) for k, v in lm.items()}
            for (acc, idx), ln in zip(lst, lens):
                ops = epilogue(acc, idx)
                for c, f in ops[len(ops)-ln:]: f()
            if fall:
                pe("s_branch L_end" if (stamps or pst >= 0) else "s_endpgm")
                blk = a.out[sk0:]; del a.out[sk0:]; a.out[fall_at:fall_at] = blk
            a.lab("L_end")
        if pst == rh:
            pstamp(rh)
            sys.stderr.write("pstamps: %d\n" % psn[0])
            a.dump_regs(PS[:psn[0]], 36, 256*rh)
        if stamps == 3 and rh == trh:
            sys.stderr.write("trace stamps: %d\n" % ntr)
            a.dump_regs(TR[:ntr], 36, 256*trh)
        if SL and rh == 0:
            a.stamp(1 + len(SL))
            a.dump_stamps(2 + len(SL), 36, vtmp=0)
        elif stamps and stamps < 3 and rh == 0:
            a.stamp(5)
            pe("s_waitcnt vmcnt(0)")
            a.stamp(6)
            if stamps == 2: a.dbg_stamps(7, 36)
            else: a.dump_stamps(7, 36, vtmp=0)
        pe("s_endpgm")
    a.lab("L_done")
    e("s_endpgm")
    a.descriptor(KN, 256, 102, 256)
    a.write(path)

if __name__ == "__main__":
    kw = dict(s.split("=") for s in sys.argv[2:])
    for k in kw:
        if k in ("sl", "kst", "xo", "ro", "caps", "nob"): pass
        elif k in ("spol", "spol2", "qpol", "xpol", "tpol"): kw[k] = kw[k].replace("+", " ").replace("plain", "")
        else: kw[k] = int(kw[k])
    build(sys.argv[1], **kw)
```
